```python
import torch

def _softmax(x, axis=-1):
    return torch.softmax(x, dim=axis)

def _gelu(x):
    return torch.nn.functional.gelu(x, approximate='tanh')

def _silu(x):
    return torch.nn.functional.silu(x)

def _sigmoid(x):
    return torch.sigmoid(x)

def _layernorm(x, axis=-1, eps=1e-05):
    m = x.mean(dim=axis, keepdim=True)
    v = x.var(dim=axis, keepdim=True, unbiased=False)
    return (x - m) / torch.sqrt(v + eps)

def _scatter_add(tgt, idx, src, axis=0):
    return tgt.clone().index_add_(axis, idx, src)

def _segment_sum(src, seg, n):
    out = torch.zeros((n,) + src.shape[1:], dtype=src.dtype)
    return out.index_add_(0, seg, src)

def _pad(x, pw):
    flat = tuple((v for pair in reversed(pw) for v in pair))
    return torch.nn.functional.pad(x, flat)
kernel_name = 'adaLN_cond__compressed_kv_cla__glu_gated_geglu__prompt'

def setup_inputs():

    _w = lambda a: (lambda t: t.to(torch.bfloat16) if t.is_floating_point() else t)(torch.as_tensor(a))

    def _A_setup():
        B, H, Sq, Sk, D, M = (1, 32, 2048, 2048, 128, 640)
        Dc = 4 * D
        return {'x': _w((lambda *s: torch.randn(*s, dtype=torch.bfloat16) * 0.1)(B, Sq, M)), 'c_kv': _w((lambda *s: torch.randn(*s, dtype=torch.bfloat16) * 3.2)(B, Sk, Dc)), 'w_q': _w((lambda *s: torch.randn(*s, dtype=torch.bfloat16) * 0.4)(M, H, D) * M ** (-0.5)), 'w_uk': _w((lambda *s: torch.randn(*s, dtype=torch.bfloat16) * 0.4)(Dc, H, D) * Dc ** (-0.5)), 'w_uv': _w((lambda *s: torch.randn(*s, dtype=torch.bfloat16) * 3.2)(Dc, H, D) * Dc ** (-0.5)), 'w_o': _w((lambda *s: torch.randn(*s, dtype=torch.bfloat16) * 3.2)(H, D, M) * (H * D) ** (-0.5))}
    _A_in = _A_setup()

    def _B_setup():
        B, S, Dm, Df = (1, 2048, 640, 1728)
        return {'x': _w((lambda *s: torch.randn(*s, dtype=torch.bfloat16) * 0.1)(B, S, Dm)), 'w_gate': _w((lambda *s: torch.randn(*s, dtype=torch.bfloat16) * 3.2)(Dm, Df) * Dm ** (-0.5)), 'w_up': _w((lambda *s: torch.randn(*s, dtype=torch.bfloat16) * 3.2)(Dm, Df) * Dm ** (-0.5)), 'w_down': _w((lambda *s: torch.randn(*s, dtype=torch.bfloat16) * 3.2)(Df, Dm) * Df ** (-0.5))}
    _B_in = _B_setup()
    return {'A_x': _A_in['x'], 'A_c_kv': _A_in['c_kv'], 'A_w_q': _A_in['w_q'], 'A_w_uk': _A_in['w_uk'], 'A_w_uv': _A_in['w_uv'], 'A_w_o': _A_in['w_o'], 'B_x': _B_in['x'], 'B_w_gate': _B_in['w_gate'], 'B_w_up': _B_in['w_up'], 'B_w_down': _B_in['w_down'], 'c': _w((lambda *s: torch.randn(*s, dtype=torch.bfloat16) * 0.4)(1, 640) * 8.0), 'w_mod': _w((lambda *s: torch.randn(*s, dtype=torch.bfloat16) * 0.4)(640, 6 * 640) * 640 ** (-0.5) * 8.0)}

def reference(A_x, A_c_kv, A_w_q, A_w_uk, A_w_uv, A_w_o, B_x, B_w_gate, B_w_up, B_w_down, c, w_mod):

    def _A_ref(x, c_kv, w_q, w_uk, w_uv, w_o):
        B, Sq, M = (x.shape[0], x.shape[1], x.shape[2])
        Sk = c_kv.shape[1]
        H, D = (w_q.shape[1], w_q.shape[2])
        q = torch.einsum('bqm,mhd->bhqd', x, w_q)
        k = torch.einsum('bkc,chd->bhkd', c_kv, w_uk)
        v = torch.einsum('bkc,chd->bhkd', c_kv, w_uv)
        scores = torch.einsum('bhqd,bhkd->bhqk', q, k) * D ** (-0.5)
        off = Sk - Sq
        qi = torch.arange(Sq)[:, None]
        kj = torch.arange(Sk)[None, :]
        cmask = kj <= qi + off
        scores = torch.where(cmask[None, None], scores, -1000000000.0)
        p = _softmax(scores, axis=-1)
        ctx = torch.einsum('bhqk,bhkd->bhqd', p, v)
        return torch.einsum('bhqd,hdm->bqm', ctx, w_o)

    def _B_ref(x, w_gate, w_up, w_down):
        g = torch.einsum('bsd,df->bsf', x, w_gate)
        u = torch.einsum('bsd,df->bsf', x, w_up)
        h = _gelu(g) * u
        return torch.einsum('bsf,fd->bsd', h, w_down)
    x = A_x
    mod = (_silu(c) @ w_mod).reshape(c.shape[0], 6, 1, -1)
    sa, ca, ga, sb, cb, gb = (mod[:, 0].clone(), mod[:, 1].clone(), mod[:, 2].clone(), mod[:, 3].clone(), mod[:, 4].clone(), mod[:, 5].clone())
    h = _layernorm(x, axis=-1) * (1 + ca) + sa
    x = x + ga * _A_ref(h, A_c_kv, A_w_q, A_w_uk, A_w_uv, A_w_o)
    h = _layernorm(x, axis=-1) * (1 + cb) + sb
    x = x + gb * _B_ref(h, B_w_gate, B_w_up, B_w_down)
    return x
```

```python
import re

def vr(n, c=1): return f"v{n}" if c == 1 else f"v[{n}:{n+c-1}]"
def ar(n, c=1): return f"a{n}" if c == 1 else f"a[{n}:{n+c-1}]"
def sr(n, c=1): return f"s{n}" if c == 1 else f"s[{n}:{n+c-1}]"
def R(spec, off=0, c=1):
    f, b = spec
    return (vr if f == 'v' else ar)(b + off, c)

def mfma16(d, a, b, c=None):
    return f"v_mfma_f32_16x16x32_bf16 {d}, {a}, {b}, {c if c is not None else d}"

def interleave(mf, fill, tail=None):
    out = []
    out += fill.get(-1, [])
    for i, m in enumerate(mf):
        out.append(m)
        out += fill.get(i, [])
    for k in fill:
        assert -1 <= k < len(mf), f"filler gap {k} out of range {len(mf)}"
    return out

class Fill(dict):
    def add(self, gap, *ins, front=False):
        l = self.setdefault(gap, [])
        if front: l[0:0] = list(ins)
        else: l.extend(ins)

_reg = re.compile(r'^(-?\|?)(?:abs\()?([vas])(?:(\d+)|\[(\d+):(\d+)\])\)?\|?$')
def regs_of(op):
    op = op.strip()
    if op in ('vcc',): return [('s', 106), ('s', 107)]
    if op == 'vcc_lo': return [('s', 106)]
    if op == 'vcc_hi': return [('s', 107)]
    if op == 'm0': return [('s', 124)]
    if op == 'exec': return [('s', 126), ('s', 127)]
    m = _reg.match(op)
    if not m: return []
    f = m.group(2)
    if m.group(3) is not None: return [(f, int(m.group(3)))]
    return [(f, i) for i in range(int(m.group(4)), int(m.group(5)) + 1)]

TRANS = ('v_exp_f32', 'v_log_f32', 'v_rcp_f32', 'v_rsq_f32', 'v_sqrt_f32')

class Ins:
    def __init__(self, text):
        self.text = text
        t = text.split(';')[0].strip()
        self.label = t.endswith(':') or t.startswith('.') or t == ''
        if self.label:
            self.op = None; return
        parts = t.split(None, 1)
        self.op = parts[0]
        rest = parts[1] if len(parts) > 1 else ''
        ops = [o.strip() for o in re.split(r',(?![^\[]*\])', rest)] if rest else []
        self.mods = ''
        if ops:
            sp = ops[-1].split(None, 1)
            if len(sp) > 1 and not self.op.startswith('s_waitcnt'):
                ops[-1] = sp[0]; self.mods = sp[1]
        self.ops = ops
        op = self.op
        self.kind = 'salu'
        D, U = [], []
        allr = [regs_of(o) for o in ops]
        if op.startswith('v_mfma'):
            self.kind = 'mfma'; D = allr[0]; self.A, self.B, self.C = allr[1], allr[2], allr[3]; U = self.A + self.B + self.C
            self.passes = 4 if '16x16x32' in op else 8
        elif op.startswith('ds_read') or op.startswith('ds_bpermute') or op.startswith('ds_swizzle'):
            self.kind = 'dsr'; D = allr[0]; U = sum(allr[1:], [])
        elif op.startswith('ds_'):
            self.kind = 'dsw'; U = sum(allr, [])
        elif op.startswith('buffer_load') or op.startswith('global_load'):
            if 'lds' in self.mods.split() or '_lds_' in op:
                self.kind = 'dma'; U = sum(allr, []) + [('s', 124)]
            else:
                self.kind = 'vld'; D = allr[0]; U = sum(allr[1:], [])
        elif op.startswith('buffer_store') or op.startswith('global_store'):
            self.kind = 'vst'; U = sum(allr, [])
            self.data = allr[0] if op.startswith('buffer') else allr[1]
        elif op.startswith('buffer_atomic') or op.startswith('global_atomic'):
            self.kind = 'vst'; U = sum(allr, []); self.data = []
            if 'sc0' in self.mods.split(): D = allr[0]; self.kind = 'vld'
        elif op.startswith('buffer_inv') or op.startswith('buffer_wbl2'):
            self.kind = 'vst'; self.data = []
        elif op.startswith('s_load') or op.startswith('s_memtime') or op.startswith('s_memrealtime'):
            self.kind = 'smem'; D = allr[0]; U = sum(allr[1:], [])
        elif op.startswith('v_'):
            self.kind = 'valu'
            if op.startswith('v_cmp'):
                D = allr[0]; U = sum(allr[1:], [])
            elif op.startswith('v_permlane') and 'swap' in op:
                D = allr[0] + allr[1]; U = allr[0] + allr[1]
            elif op.startswith('v_readfirstlane') or op.startswith('v_readlane'):
                D = allr[0]; U = sum(allr[1:], [])
            elif op.startswith('v_add_co') or op.startswith('v_addc_co'):
                D = allr[0] + allr[1]; U = sum(allr[2:], [])
            elif op == 'v_nop':
                pass
            else:
                D = allr[0]; U = sum(allr[1:], [])
                if op.startswith('v_fmac') or op.startswith('v_dot2c') or 'dpp' in op or 'row_' in self.mods:
                    U = U + allr[0]
            self.dpp = ('row_' in self.mods or 'quad_perm' in self.mods or 'dpp' in op)
        elif op in ('s_waitcnt', 's_barrier', 's_nop', 's_endpgm', 's_setprio', 's_sleep') or op.startswith('s_cbranch') or op == 's_branch':
            self.kind = 'ctl'
        elif op.startswith('s_cmp') or op.startswith('s_bitcmp'):
            U = sum(allr, [])
        else:
            D = allr[0]; U = sum(allr[1:], [])
            if 'saveexec' in op: D = D + [('s',126),('s',127)]
            if op.startswith('s_addk') or op.startswith('s_mulk'): U = U + allr[0]
        self.D, self.U = D, U

def check_trace(lines, name="", verbose=True):
    probs = []
    pos = 0
    lastw = {}
    mfma_c_read = {}
    st_data = {}
    vm = []
    lg = []
    def pend(r):
        for q in (vm, lg):
            for e in q:
                if r in e[0]: return e[1]
        return None
    for ln in lines:
        for sub in ln.split('\n'):
            I = Ins(sub)
            if I.op is None: continue
            def P(msg): probs.append(f"[{name}] {msg}: {I.text.strip()}")
            if I.op == 's_waitcnt':
                t = sub.split(';')[0]
                m = re.search(r'vmcnt\((\d+)\)', t)
                if m:
                    n = int(m.group(1))
                    while len(vm) > n: vm.pop(0)
                m = re.search(r'lgkmcnt\((\d+)\)', t)
                if m:
                    n = int(m.group(1))
                    if any(e[2] == 'smem' for e in lg) and n > 0: P("counted lgkmcnt with smem outstanding")
                    while len(lg) > n: lg.pop(0)
                pos += 1; continue
            if I.op == 's_nop':
                pos += int(I.ops[0], 0) + 1; continue
            for r in I.U + I.D:
                p = pend(r)
                if p is not None: P(f"reg {r} has pending load ({p.strip()})")
            def dist(r):
                w = lastw.get(r)
                return (pos - w[0] - 1, w[1]) if w else (10**6, None)
            for r in I.U:
                d, W = dist(r)
                if W is None: continue
                need = 0
                if W.kind == 'mfma':
                    if I.kind == 'mfma':
                        if r in I.A or r in I.B: need = {4: 8, 8: 12}[W.passes]
                        elif I.C == W.D and I.passes == W.passes: need = 0
                        else: need = {4: 6, 8: 10}[W.passes]
                    else: need = {4: 8, 8: 12}[W.passes]
                elif W.kind == 'valu':
                    if r[0] in 'va':
                        if I.kind == 'mfma': need = 2
                        elif I.op.startswith('v_readfirstlane') or I.op.startswith('v_readlane'): need = 1
                        elif I.op.startswith('v_permlane'): need = 2
                        elif I.kind == 'valu' and I.dpp: need = 2
                        if W.op in TRANS and I.kind in ('valu',) : need = max(need, 1)
                        if W.op in TRANS and I.kind in ('vst','dsw','mfma'): need = max(need, 1)
                    else:
                        if I.kind in ('vld', 'vst', 'dma'): need = 5
                        elif I.kind == 'valu': need = 4 if I.op.startswith('v_readlane') else 2
                elif W.kind == 'salu' and r == ('s', 124) and I.kind == 'dma': need = 1
                if d < need: P(f"RAW {r} dist {d} < {need} after '{W.text.strip()}'")
            for r in I.D:
                d, W = dist(r)
                if W is not None and W.kind == 'mfma' and I.kind != 'mfma':
                    need = {4: 8, 8: 12}[W.passes]
                    if d < need: P(f"WAW {r} dist {d} < {need} after '{W.text.strip()}'")
                if W is not None and W.kind == 'mfma' and I.kind == 'mfma' and I.C != W.D:
                    need = {4: 6, 8: 10}[W.passes]
                    if d < 2: P(f"mfma WAW {r} dist {d}")
                if I.kind == 'valu' and r in mfma_c_read:
                    pp, ps = mfma_c_read[r]
                    need = {4: 3, 8: 7}[ps]
                    if pos - pp - 1 < need: P(f"WAR on SrcC {r}")
                if r in st_data and pos - st_data[r] - 1 < 2: P(f"WAR on store data {r}")
            if I.kind == 'mfma':
                for r in I.C: mfma_c_read[r] = (pos, I.passes)
            if I.kind == 'vst' and len(I.data) >= 3:
                for r in I.data: st_data[r] = pos
            if I.kind in ('vld', 'vst', 'dma'):
                vm.append((set(I.D), I.text, I.kind))
                if len(vm) > 63: P("vmcnt overflow (>63 outstanding)")
            elif I.kind in ('dsr', 'dsw', 'smem'):
                lg.append((set(I.D), I.text, I.kind))
                if len(lg) > 15 : P("lgkmcnt > 15 outstanding (counted waits unreliable)")
            if I.kind not in ('vld', 'dsr', 'smem'):
                for r in I.D: lastw[r] = (pos, I)
            else:
                for r in I.D: lastw.pop(r, None)
            pos += 1
    if verbose:
        seen = set()
        for p in probs:
            if p not in seen:
                print("HAZARD", p); seen.add(p)
    return len(probs)

def kernel_text(name, body, nvgpr, accum, nsgpr=100):
    t = [f".text\n.globl {name}\n.p2align 8\n.type {name},@function\n{name}:"]
    for l in body:
        for s in l.split('\n'):
            t.append(s if s.endswith(':') else "    " + s)
    t.append('.section .rodata,"a"\n.p2align 6')
    t.append(f".amdhsa_kernel {name}")
    t.append(f"  .amdhsa_next_free_vgpr {nvgpr}\n  .amdhsa_next_free_sgpr {nsgpr}\n  .amdhsa_accum_offset {accum}")
    t.append("  .amdhsa_group_segment_fixed_size 0\n  .amdhsa_kernarg_size 120\n  .amdhsa_user_sgpr_count 2")
    t.append("  .amdhsa_user_sgpr_kernarg_segment_ptr 1\n  .amdhsa_system_sgpr_workgroup_id_x 1")
    t.append("  .amdhsa_float_denorm_mode_32 3\n  .amdhsa_float_denorm_mode_16_64 3")
    t.append(".end_amdhsa_kernel")
    return "\n".join(t) + "\n"

def srd(d, ptr, nbytes, off_s=None):
    L = []
    if off_s is None:
        L += [f"s_mov_b32 s{d}, s{ptr}", f"s_mov_b32 s{d+1}, s{ptr+1}"]
    else:
        L += [f"s_add_u32 s{d}, s{ptr}, {off_s}", f"s_addc_u32 s{d+1}, s{ptr+1}, 0"]
    L += [f"s_mov_b32 s{d+2}, {nbytes}", f"s_mov_b32 s{d+3}, 0x20000"]
    return L
```

```python
from asmlib import *
import math

NAME = "adaLN_cond__compressed_kv_cla__glu_gated_geglu__prompt"
KA = dict(x=0, ckv=8, wq=16, wuk=24, wuv=32, wo=40, bx=48, wg=56, wu=64, wd=72, c=80, wmod=88, out=96, dbg=104, ws=112)
WS_MOD  = 0x0
WS_VEC  = 0x8000
WS_STAT = 0x10000
WS_H    = 0x100000
WS_X1P  = 0x400000
WS_X1   = 0x700000
WS_HH   = 0xA00000
WS_WO   = 0x1200000
WS_WD   = 0x1800000
WS_K    = 0x2000000
WS_V    = 0x3000000
WS_CTX  = 0x4000000
WS_SIZE = 0x10000000
QSCALE = math.log2(math.e) / math.sqrt(128.0)

import struct
def f2u(x): return struct.unpack('<I', struct.pack('<f', x))[0]
def fhex(x): return f"0x{f2u(x):08x}"

def ldptr(dst, name): return f"s_load_dwordx2 s[{dst}:{dst+1}], s[0:1], {KA[name]}"

def wave_id(sdst, vtmp):
    return [f"v_lshrrev_b32 v{vtmp}, 6, v0", "s_nop 0", f"v_readfirstlane_b32 s{sdst}, v{vtmp}"]

def tr_addr(vbase, vlane, t0, t1, base_expr_s=None):
    L = []
    L += [f"v_lshrrev_b32 v{t0}, 2, v{vlane}",
          f"v_lshrrev_b32 v{t1}, 3, v{vlane}",
          f"v_and_b32 v{t1}, 3, v{t1}",
          f"v_lshlrev_b32 v{t1}, 5, v{t1}",
          f"v_lshlrev_b32 v{t0}, 7, v{t0}",
          f"v_add_u32 v{t0}, v{t0}, v{t1}",
          f"v_and_b32 v{t1}, 3, v{vlane}",
          f"v_lshlrev_b32 v{t1}, 3, v{t1}",
          f"v_add_u32 v{t0}, v{t0}, v{t1}"]
    if base_expr_s is not None:
        L += [f"v_add_u32 v{t0}, {base_expr_s}, v{t0}"]
    for b in range(4):
        L += [f"v_xor_b32 v{vbase+b}, {b*32}, v{t0}"]
    return L

def wdma_voff(vdst, vlane, t0, t1, rowstride_s, nat):
    L = [f"v_lshrrev_b32 v{t0}, 3, v{vlane}"]
    if nat:
        L += [f"v_and_b32 v{t1}, 4, v{t0}", f"v_add_u32 v{t0}, v{t0}, v{t1}"]
    L += [f"v_mul_lo_u32 v{vdst}, v{t0}, {rowstride_s}",
          f"v_lshrrev_b32 v{t0}, 3, v{vlane}",
          f"v_and_b32 v{t0}, 6, v{t0}",
          f"v_and_b32 v{t1}, 7, v{vlane}",
          f"v_xor_b32 v{t0}, v{t0}, v{t1}",
          f"v_lshlrev_b32 v{t0}, 4, v{t0}",
          f"v_add_u32 v{vdst}, v{vdst}, v{t0}"]
    return L
NATROW = [0, 16, 4, 20]

WS_STAMP = 0x8000000
import os
STAMPS = os.environ.get("STAMPS", "0") == "1"
def stamp(idx):
    if not STAMPS: return []
    return [f"s_memrealtime s[{80+2*idx}:{81+2*idx}]"]
def stamp_out(kidx, n):
    if not STAMPS: return []
    L = stamp(n-1) + ["s_load_dwordx2 s[72:73], s[98:99], 112", "s_waitcnt lgkmcnt(0)"]
    L += srd(76, 72, 0x100000, hex(WS_STAMP + kidx*0x10000))
    L += ["s_mov_b64 exec, -1", "v_mbcnt_lo_u32_b32 v0, -1, 0", "v_mbcnt_hi_u32_b32 v0, -1, v0", "v_cmp_eq_u32 vcc, 0, v0", "s_and_b64 exec, exec, vcc",
          "s_lshl_b32 s74, s97, 8", "s_lshl_b32 s75, s96, 6", "s_add_u32 s74, s74, s75", "v_mov_b32 v1, s74"]
    for i in range(n):
        L += [f"v_mov_b32 v2, s{80+2*i}", f"buffer_store_dword v2, v1, s[76:79], 0 offen offset:{4*i}"]
    L += ["s_waitcnt vmcnt(0)"]
    return L
def stamp_init():
    if not STAMPS: return []
    return stamp(0) + ["s_mov_b32 s98, s0", "s_mov_b32 s99, s1", "s_mov_b32 s97, s2", "v_lshrrev_b32 v1, 6, v0", "s_nop 0", "v_readfirstlane_b32 s96, v1"]
```

```python
from common import *
import re

def resolve_waits(lines):
    out = []; tags = []
    for ln in lines:
        if ln.startswith("WAITVM"):
            parts = ln.split()
            want = parts[1].split(',')
            last = max((i for i, t in enumerate(tags) if t in want), default=None)
            assert last is not None, ln
            n = len(tags) - 1 - last
            extra = " ".join(parts[2:])
            out.append(f"s_waitcnt vmcnt({n}) {extra}".rstrip())
        else:
            if ln.startswith("buffer_") or ln.startswith("global_"):
                m = re.search(r';\s*tag=(\w+)', ln)
                tags.append(m.group(1) if m else None)
            out.append(ln)
    return out

class GA:
    def __init__(s, acc0, hring, wring, v_wv, v_tr, v_l16, srd_w, srd_h, s_soff, s_wadv, s_m0, s_hq, vec=None):
        s.__dict__.update(locals())
    def acc(s, d, q): return vr(s.acc0 + (d*4+q)*4, 4)
    def hf(s, c, q, k): return ar(s.hring + ((c & 3)*8 + q*2 + k)*4, 4)
    def wf(s, d, k): return ar(s.wring + ((d & 3)*2 + k)*4, 4)
    def w_issue(s, c):
        G = []
        for j in range(4):
            g = [f"s_add_u32 m0, s{s.s_m0}, {c*16384}"] if j == 0 else []
            g.append(f"buffer_load_dwordx4 v{s.v_wv}, s[{s.srd_w}:{s.srd_w+3}], s{s.s_soff+j} offen offset:{j*1024} lds ; tag=W{c}")
            G.append(g)
        G[-1].append(f"v_add_u32 v{s.v_wv}, s{s.s_wadv}, v{s.v_wv}")
        return G
    def h_issue(s, c):
        G = []
        for q in range(4):
            for k in range(2):
                G.append([f"buffer_load_dwordx4 {s.hf(c,q,k)}, v{s.v_l16}, s[{s.srd_h}:{s.srd_h+3}], s{s.s_hq+q} offen offset:{((2*c+k)&3)*1024} ; tag=H{c}"])
        if c & 1:
            G[-1] += [f"s_add_u32 s{s.s_hq+q}, s{s.s_hq+q}, 4096" for q in range(4)]
        return G
    def rd_w(s, c, d):
        L = []
        for k in range(2):
            base = s.wring + ((d & 3)*2 + k)*4
            for t in range(2):
                L.append(f"ds_read_b64_tr_b16 {ar(base+2*t,2)}, v{s.v_tr+(d&3)} offset:{(c&3)*16384 + (d>>2)*8192 + k*4096 + t*2048}")
        return L
    def prologue_issue(s):
        L = []
        for c in range(4):
            for g in s.w_issue(c):
                if g[0].startswith("s_add_u32 m0"): L += [g[0], "s_nop 0"] + g[1:]
                else: L += g
            for g in s.h_issue(c): L += g
        return L
    def prologue_reads(s):
        return ["WAITVM W0,H0", "s_barrier"] + s.rd_w(0, 0) + s.rd_w(0, 1) + ["s_waitcnt lgkmcnt(4)"]
    def chunk(s, c, extra_groups=None, extra_fill=None, last_bar=None, extra_mfma=None):
        mf = []
        for d in range(8):
            for q in range(4):
                for k in range(2):
                    mf.append(mfma16(s.acc(d, q), s.wf(d, k), s.hf(c, q, k), "0" if (c == 0 and k == 0) else None))
        F = Fill()
        for d in range(6):
            for i, x in enumerate(s.rd_w(c, d+2)): F.add(d*8 + i, x)
        for d in range(1, 7): F.add(d*8 - 1, "s_waitcnt lgkmcnt(4)")
        groups = []
        if c + 4 <= 9: groups += s.w_issue(c+4)
        if extra_groups: groups += extra_groups
        if c >= 1 and c + 3 <= 9: groups += s.h_issue(c+3)
        slots = [d*8 + o for d in range(6) for o in (4, 6)]
        assert len(groups) <= len(slots), len(groups)
        for g, gap in zip(groups, slots):
            i = [k for k, x in enumerate(g) if x.startswith("buffer_")][0]
            if g[:i]: F.add(gap - 1, *g[:i])
            F.add(gap, *g[i:])
        if c < 9:
            B = [f"WAITVM W{c+1},H{c+1}", "s_barrier"]
            if (c & 3) == 3: B += [f"v_add_u32 v{s.v_tr+b}, 0x10000, v{s.v_tr+b}" for b in range(4)]
            F.add(47, *B)
            for d in range(2):
                for i, x in enumerate(s.rd_w(c+1, d)): F.add(48 + d*8 + i, x)
            F.add(55, "s_waitcnt lgkmcnt(4)")
            F.add(63, "s_waitcnt lgkmcnt(4)")
        else:
            F.add(55, "s_waitcnt lgkmcnt(0)")
            if last_bar: F.add(56, *last_bar)
        if extra_fill:
            for gap, ins in extra_fill: F.add(gap, ins)
        if extra_mfma:
            for gap, ins in extra_mfma: F.add(gap, ins)
        return interleave(mf, F)
```

```python
from common import *

def k0():
    L = []; A = L.append
    A("s_cmp_ge_u32 s2, 468"); A("s_cbranch_scc1 K0_end")
    L += stamp_init()
    A(ldptr(4, 'ws')); A(ldptr(6, 'wmod')); A(ldptr(8, 'c')); A(ldptr(10, 'wo')); A(ldptr(12, 'wd'))
    L += wave_id(3, 1)
    A("v_and_b32 v2, 63, v0")
    A("s_waitcnt lgkmcnt(0)")
    A("s_cmp_ge_u32 s2, 240"); A("s_cbranch_scc1 K0_tr")
    L += srd(16, 6, 640*7680); L += srd(20, 8, 1280); L += srd(24, 4, 3840*4)
    A("v_lshrrev_b32 v3, 1, v0")
    A("s_movk_i32 s28, 7680")
    A("v_mul_lo_u32 v4, v3, s28")
    A("v_and_b32 v5, 1, v0")
    A("v_lshlrev_b32 v6, 4, v5")
    A("v_add_u32 v4, v4, v6")
    A("s_lshl_b32 s29, s2, 5")
    A("v_add_u32 v4, s29, v4")
    A("v_lshlrev_b32 v6, 1, v3")
    for i in range(5):
        A(f"buffer_load_ushort v{8+i}, v6, s[20:23], 0 offen offset:{i*256}")
    for i in range(5):
        A(f"s_mov_b32 s30, {i*128*7680}")
        A(f"buffer_load_dwordx4 v[{16+4*i}:{19+4*i}], v4, s[16:19], s30 offen")
    A("s_waitcnt vmcnt(5)")
    for i in range(5):
        A(f"v_lshlrev_b32 v{8+i}, 16, v{8+i}")
        A(f"v_mul_f32 v13, {fhex(-math.log2(math.e))}, v{8+i}")
        A("v_exp_f32 v13, v13"); A("s_nop 0")
        A("v_add_f32 v13, 1.0, v13")
        A("v_rcp_f32 v13, v13"); A("s_nop 0")
        A(f"v_mul_f32 v13, v13, v{8+i}")
        A(f"v_cvt_pk_bf16_f32 v13, v13, v13")
        A(f"v_lshlrev_b32 v{8+i}, 16, v13")
    for e in range(8): A(f"v_mov_b32 v{40+e}, 0")
    for i in range(5):
        A(f"s_waitcnt vmcnt({4-i})")
        for d in range(4):
            A(f"v_lshlrev_b32 v13, 16, v{16+4*i+d}")
            A(f"v_and_b32 v14, 0xffff0000, v{16+4*i+d}")
            A(f"v_fmac_f32 v{40+2*d}, v13, v{8+i}")
            A(f"v_fmac_f32 v{41+2*d}, v14, v{8+i}")
    A("s_nop 1")
    for sh in (2, 4, 8):
        for e in range(8):
            A(f"v_add_f32 v{40+e}, v{40+e}, v{40+e} row_ror:{sh}")
    A("v_lshrrev_b32 v6, 4, v0"); A("v_lshlrev_b32 v6, 6, v6"); A("v_lshlrev_b32 v7, 5, v5"); A("v_add_u32 v6, v6, v7")
    A("v_and_b32 v7, 15, v0")
    A("v_cmp_gt_u32 vcc, 2, v7")
    A("s_and_saveexec_b64 s[32:33], vcc")
    A("ds_write_b128 v6, v[40:43]"); A("ds_write_b128 v6, v[44:47] offset:16")
    A("s_mov_b64 exec, s[32:33]")
    A("s_waitcnt lgkmcnt(0)"); A("s_barrier")
    A("s_cmp_lg_u32 s3, 0"); A("s_cbranch_scc1 K0_end")
    A("v_lshlrev_b32 v6, 2, v7")
    for h in range(2):
        for i in range(8): A(f"ds_read_b32 v{16+8*h+i}, v6 offset:{(8*h+i)*64}")
        A("s_waitcnt lgkmcnt(0)")
    for i in range(1, 16): A(f"v_add_f32 v16, v16, v{16+i}")
    A("v_cvt_pk_bf16_f32 v16, v16, v16"); A("v_lshlrev_b32 v16, 16, v16")
    A("v_add_f32 v17, 1.0, v16"); A("v_cvt_pk_bf16_f32 v17, v17, v17"); A("v_lshlrev_b32 v17, 16, v17")
    A("s_sub_u32 s30, s2, 40"); A("s_cmp_lt_u32 s30, 40"); A("s_cselect_b32 s31, 1, 0")
    A("s_sub_u32 s30, s2, 160"); A("s_cmp_lt_u32 s30, 40"); A("s_cselect_b32 s30, 1, 0")
    A("s_or_b32 s30, s30, s31"); A("s_cmp_eq_u32 s30, 0"); A("s_cbranch_scc1 K0_noone")
    A("v_mov_b32 v16, v17")
    A("K0_noone:")
    A("s_lshl_b32 s30, s2, 6")
    A("v_cmp_gt_u32 vcc, 16, v0")
    A("s_and_saveexec_b64 s[32:33], vcc")
    A("buffer_store_dword v16, v6, s[24:27], s30 offen")
    A("s_waitcnt vmcnt(0)")
    L += stamp_out(0, 2)
    A("s_endpgm")
    A("K0_tr:")
    A("s_sub_u32 s14, s2, 240"); A("s_lshl_b32 s14, s14, 2"); A("s_add_u32 s14, s14, s3"); A("s_lshl_b32 s14, s14, 1")
    A("s_lshl_b32 s15, s3, 13")
    L += relayout_setup(v_lane=2, v_voff=4, v_tr=8, t0=5, t1=6, s_lds=15, s_tmp=28)
    for u in range(2):
        L += relayout_issue(u, s_unit=14, s_wo=10, s_wd=12, srd_=16, s_lds=15, v_voff=4, s_tmp=28, s_dst=40+u, lab=f"K0_{u}")
    A("s_waitcnt vmcnt(0)")
    L += srd(20, 4, WS_K - WS_WO, off_s=hex(WS_WO))
    A("v_lshlrev_b32 v3, 4, v2")
    for u in range(2):
        L += relayout_finish(u, v_tr=8, v_data=16, v_lane16=3, srd_=20, s_dst=40+u, s_tmp=28)
    A("s_waitcnt vmcnt(0)")
    L += stamp_out(0, 2)
    A("K0_end:")
    A("s_endpgm")
    return L

def relayout_setup(v_lane, v_voff, v_tr, t0, t1, s_lds, s_tmp):
    L = [f"s_movk_i32 s{s_tmp}, 1280"]
    L += wdma_voff(v_voff, v_lane, t0, t1, f"s{s_tmp}", nat=False)
    L += tr_addr(v_tr, v_lane, t0, t1, f"s{s_lds}")
    return L

def relayout_issue(u, s_unit, s_wo, s_wd, srd_, s_lds, v_voff, s_tmp, s_dst, lab):
    t = s_tmp
    L = [f"s_add_u32 s{t}, s{s_unit}, {u}",
         f"s_cmp_lt_u32 s{t}, 1280",
         f"s_cselect_b32 s{srd_}, s{s_wo}, s{s_wd}", f"s_cselect_b32 s{srd_+1}, s{s_wo+1}, s{s_wd+1}",
         f"s_mov_b32 s{srd_+2}, {1728*1280}", f"s_cmov_b32 s{srd_+2}, {4096*1280}", f"s_mov_b32 s{srd_+3}, 0x20000",
         f"s_cselect_b32 s{t+1}, 0, 1280",
         f"s_mov_b32 s{s_dst+2}, {54*1024}", f"s_cmov_b32 s{s_dst+2}, {128*1024}",
         f"s_cselect_b32 s{t+2}, 0, {WS_WD-WS_WO}",
         f"s_sub_u32 s{t}, s{t}, s{t+1}",
         f"s_mul_i32 s{t+1}, s{t}, 6554", f"s_lshr_b32 s{t+1}, s{t+1}, 16",
         f"s_mul_i32 s{t+3}, s{t+1}, 10", f"s_sub_u32 s{t}, s{t}, s{t+3}",
         f"s_mul_i32 s{t+3}, s{t}, s{s_dst+2}", f"s_lshl_b32 s{t+3}, s{t+3}, 2",
         f"s_add_u32 s{t+2}, s{t+2}, s{t+3}", f"s_lshl_b32 s{t+3}, s{t+1}, 10", f"s_add_u32 s{s_dst}, s{t+2}, s{t+3}",
         f"s_add_u32 s{t+3}, s{s_unit}, {u}", f"s_cmp_lt_u32 s{t+3}, 1820", f"s_cselect_b32 s{s_dst}, s{s_dst}, 0xA00000",
         f"s_mul_i32 s{t+1}, s{t+1}, {32*1280}", f"s_lshl_b32 s{t}, s{t}, 7", f"s_add_u32 s{t}, s{t}, s{t+1}",
         f"s_add_u32 m0, s{s_lds}, {u*4096}"]
    for j in range(4):
        L += [f"s_add_u32 s{t+1}, s{t}, {j*(8*1280-1024)}",
              f"buffer_load_dwordx4 v{v_voff}, s[{srd_}:{srd_+3}], s{t+1} offen offset:{j*1024} lds"]
    return L

def relayout_finish(u, v_tr, v_data, v_lane16, srd_, s_dst, s_tmp):
    L = []
    for b in range(4):
        for t in range(2):
            L.append(f"ds_read_b64_tr_b16 v[{v_data+16*u+4*b+2*t}:{v_data+16*u+4*b+2*t+1}], v{v_tr+b} offset:{u*4096+t*2048}")
    L.append(f"s_mov_b32 s{s_tmp}, s{s_dst}")
    for b in range(4):
        L.append(f"s_waitcnt lgkmcnt({6-2*b})")
        L.append(f"buffer_store_dwordx4 v[{v_data+16*u+4*b}:{v_data+16*u+4*b+3}], v{v_lane16}, s[{srd_}:{srd_+3}], s{s_tmp} offen")
        L.append(f"s_add_u32 s{s_tmp}, s{s_tmp}, s{s_dst+2}")
    return L
```

```python
from common import *

V_LANE = 1
V_CV0, V_CV1, V_WV = 2, 3, 4
V_CA = 5
V_TR = 8
V_L16 = 12
ACC_V0 = 32
A_C = 32
A_W = 160

def acc(blk):
    return vr(ACC_V0 + 4*blk, 4) if blk < 56 else ar(4*(blk-56), 4)
def cfrag(buf, kvblk, s): return ar(A_C + buf*64 + (kvblk*2+s)*4, 4)
def wfrag(dblk, s): return ar(A_W + ((dblk & 3)*2+s)*4, 4)

def dma_chunk(stage):
    G = []
    for j in range(8):
        g = []
        if j % 4 == 0: g.append(f"s_add_u32 m0, s40, {stage*32768 + (j>>2)*4096}")
        g.append(f"buffer_load_dwordx4 v{V_WV}, s[12:15], s{44+j} offen offset:{(j&3)*1024} lds")
        G.append(g)
    for j in range(8):
        g = []
        if j % 4 == 0: g.append(f"s_add_u32 m0, s40, {65536 + stage*32768 + (j>>2)*4096}")
        g.append(f"buffer_load_dwordx4 v{V_CV0 + (j&1)}, s[8:11], s{52+j} offen offset:{(j&3)*1024} lds")
        G.append(g)
    adv = [f"v_add_u32 v{V_WV}, s41, v{V_WV}", f"v_add_u32 v{V_CV0}, 128, v{V_CV0}", f"v_add_u32 v{V_CV1}, 128, v{V_CV1}"]
    return G, adv

def rd_c(stage, buf, kvblk, s):
    return f"ds_read_b128 {cfrag(buf,kvblk,s)}, v{V_CA+s} offset:{stage*32768 + kvblk*2048}"
def rd_w(stage, dblk, s):
    base = A_W + ((dblk & 3)*2+s)*4
    return [f"ds_read_b64_tr_b16 {ar(base+2*t,2)}, v{V_TR+(dblk&3)} offset:{stage*32768 + (dblk>>2)*8192 + s*4096 + t*2048}" for t in range(2)]

def chunk_body(par, isK, first, do_next, do_dma):
    mf = []
    for d in range(8):
        for k in range(8):
            for s in range(2):
                a, b = (wfrag(d, s), cfrag(par, k, s)) if isK else (cfrag(par, k, s), wfrag(d, s))
                c = "0" if (first and s == 0) else None
                mf.append(mfma16(acc(d*8+k), a, b, c))
    F = Fill()
    for d in range(6):
        r = rd_w(par, d+2, 0) + rd_w(par, d+2, 1)
        for i, x in enumerate(r): F.add(d*16 + 1 + 2*i, x)
    for d in range(1, 7):
        F.add(d*16 - 1, "s_waitcnt lgkmcnt(4)")
    bar = 6*16 + 1
    if do_next:
        F.add(bar, "s_waitcnt vmcnt(0) lgkmcnt(0)", "s_barrier")
        nxt = []
        w0 = rd_w(par ^ 1, 0, 0) + rd_w(par ^ 1, 0, 1)
        w1 = rd_w(par ^ 1, 1, 0) + rd_w(par ^ 1, 1, 1)
        cs = [rd_c(par ^ 1, par ^ 1, k, s) for k in range(8) for s in range(2)]
        nxt = cs[:8] + w0 + cs[8:] + w1
        g = bar + 1
        for i, x in enumerate(nxt):
            if i == 12: F.add(g, "s_waitcnt lgkmcnt(3)")
            F.add(g, x); g += 1
        F.add(127, "s_waitcnt lgkmcnt(4)")
    else:
        F.add(7*16 - 1, "s_waitcnt lgkmcnt(0)")
    return mf, F

def add_dma(F, stage, start, step):
    G, adv = dma_chunk(stage)
    g = start
    for grp in G:
        if len(grp) == 2:
            F.add(g - 1, grp[0]); F.add(g, grp[1], front=True)
        else:
            F.add(g, grp[0], front=True)
        g += step
    F.add(g, *adv)

def k1():
    L = []; A = L.append
    A("s_cmp_ge_u32 s2, 256"); A("s_cbranch_scc1 K1_end")
    L += stamp_init()
    A(ldptr(4, 'ws')); A(ldptr(6, 'ckv')); A(ldptr(20, 'wuk')); A(ldptr(22, 'wuv')); A(ldptr(24, 'x'))
    L += wave_id(3, 1)
    A(f"v_and_b32 v{V_LANE}, 63, v0")
    A("s_and_b32 s26, s2, 7"); A("s_lshl_b32 s26, s26, 2"); A("s_bfe_u32 s27, s2, 0x20003"); A("s_add_u32 s26, s26, s27")
    A("s_lshr_b32 s27, s2, 5")
    A("s_lshl_b32 s40, s3, 13")
    A(f"s_mov_b32 s41, {64*8192}")
    for j in range(8):
        A(f"s_mov_b32 s{44+j}, {(NATROW[j&3] + 32*(j>>2))*8192 - (j&3)*1024}")
        A(f"s_mov_b32 s{52+j}, {j*8192 - (j&3)*1024}")
    A("s_movk_i32 s28, 8192")
    L += wdma_voff(V_WV, V_LANE, 13, 14, "s28", nat=True)
    A(f"v_lshrrev_b32 v13, 3, v{V_LANE}"); A("v_lshrrev_b32 v14, 1, v13"); A(f"v_and_b32 v15, 7, v{V_LANE}")
    A("v_xor_b32 v14, v14, v15"); A("v_lshlrev_b32 v14, 4, v14"); A("v_lshlrev_b32 v13, 10, v13")
    A("v_add_u32 v13, v13, v14"); A("s_lshl_b32 s28, s3, 16"); A(f"v_add_u32 v{V_CV0}, s28, v13")
    A(f"v_xor_b32 v{V_CV1}, 64, v{V_CV0}")
    A("s_waitcnt lgkmcnt(0)")
    A("s_lshl_b32 s28, s27, 18")
    L += srd(8, 6, 262144, "s28")
    A("s_cmp_ge_u32 s3, 2"); A("s_cselect_b32 s20, s22, s20"); A("s_cselect_b32 s21, s23, s21")
    A("s_lshl_b32 s28, s26, 8"); A("s_and_b32 s29, s3, 1"); A("s_lshl_b32 s29, s29, 7"); A("s_add_u32 s28, s28, s29")
    A("s_add_u32 s12, s20, s28"); A("s_addc_u32 s13, s21, 0"); A(f"s_sub_u32 s14, {512*8192}, s28"); A("s_mov_b32 s15, 0x20000")
    for st in range(2):
        G, adv = dma_chunk(st)
        for g in G:
            if len(g) == 2: A(g[0]); A("s_nop 0"); A(g[1])
            else: A(g[0])
        L += adv
    A("s_lshr_b32 s28, s3, 1"); A("s_lshl_b32 s28, s28, 14")
    L += tr_addr(V_TR, V_LANE, 13, 14, "s28")
    A(f"v_and_b32 v13, 15, v{V_LANE}"); A(f"v_lshrrev_b32 v14, 4, v{V_LANE}"); A("v_lshrrev_b32 v15, 1, v13")
    A("v_xor_b32 v14, v14, v15"); A("v_lshlrev_b32 v14, 4, v14"); A("v_lshlrev_b32 v13, 7, v13"); A("v_add_u32 v13, v13, v14")
    A("s_and_b32 s28, s3, 1"); A("s_lshl_b32 s28, s28, 14"); A("s_add_u32 s28, s28, 65536")
    A(f"v_add_u32 v{V_CA}, s28, v13"); A(f"v_xor_b32 v{V_CA+1}, 64, v{V_CA}")
    A(f"v_lshlrev_b32 v{V_L16}, 4, v{V_LANE}")
    A("s_cmp_ge_u32 s3, 2"); A(f"s_mov_b32 s28, {hex(WS_K)}"); A(f"s_cmov_b32 s28, {hex(WS_V)}")
    A("s_lshl_b32 s29, s26, 19"); A("s_add_u32 s28, s28, s29"); A("s_lshl_b32 s29, s27, 16"); A("s_add_u32 s28, s28, s29")
    A("s_and_b32 s29, s3, 1"); A("s_lshl_b32 s29, s29, 15"); A("s_add_u32 s28, s28, s29")
    L += srd(16, 4, 32768, "s28")
    A("s_waitcnt vmcnt(16)"); A("s_barrier")
    L += stamp(1) + (["s_waitcnt lgkmcnt(0)"] if STAMPS else [])
    pre = [rd_c(0, 0, k, s) for k in range(8) for s in range(2)]
    L += pre[:8] + rd_w(0, 0, 0) + rd_w(0, 0, 1); A("s_waitcnt lgkmcnt(3)")
    L += pre[8:] + rd_w(0, 1, 0) + rd_w(0, 1, 1)
    A("s_waitcnt lgkmcnt(4)")
    A("s_cmp_ge_u32 s3, 2"); A("s_cbranch_scc1 K1_V")
    traces = []
    for isK in (True, False):
        t = "K" if isK else "V"
        B = []
        if not isK: B.append("K1_V:")
        mf, F = chunk_body(0, isK, True, True, False)
        c0 = interleave(mf, F)
        mf, F = chunk_body(1, isK, False, True, True); add_dma(F, 0, 2, 4); c1 = interleave(mf, F)
        mf, F = chunk_body(0, isK, False, True, True); add_dma(F, 1, 2, 4); c2 = interleave(mf, F)
        mf, F = chunk_body(1, isK, False, False, False); c7 = interleave(mf, F)
        B += c0
        B += ["s_mov_b32 s42, 3", f"K1_{t}loop:"] + c1 + c2 + ["s_sub_u32 s42, s42, 1", "s_cmp_lg_u32 s42, 0", f"s_cbranch_scc1 K1_{t}loop"]
        B += c7
        E = ["s_nop 7"] + stamp(2)
        def getblk(blk, tmp):
            if blk < 56: return ACC_V0 + 4*blk, []
            return tmp, [f"v_accvgpr_read_b32 v{tmp+i}, a{4*(blk-56)+i}" for i in range(4)]
        n = 0
        for i in range(32):
            if isK:
                k, tt = i >> 2, i & 3
                b0, b1 = (2*tt)*8 + k, (2*tt+1)*8 + k
                off = (k >> 2)*16384 + ((k & 3)*4 + tt)*1024
            else:
                u, d = i >> 3, i & 7
                b0, b1 = d*8 + 2*u, d*8 + 2*u + 1
                off = (u >> 1)*16384 + ((u & 1)*8 + d)*1024
            r0, m0 = getblk(b0, 16); r1, m1 = getblk(b1, 20)
            E += m0 + m1
            o = 24 + 4*(i & 1)
            E += [f"v_cvt_pk_bf16_f32 v{o}, v{r0}, v{r0+1}", f"v_cvt_pk_bf16_f32 v{o+1}, v{r0+2}, v{r0+3}",
                  f"v_cvt_pk_bf16_f32 v{o+2}, v{r1}, v{r1+1}", f"v_cvt_pk_bf16_f32 v{o+3}, v{r1+2}, v{r1+3}"]
            E += [f"s_movk_i32 s28, {off & ~0xfff}", f"buffer_store_dwordx4 v[{o}:{o+3}], v{V_L16}, s[16:19], s28 offen offset:{off & 0xfff}"]
        B += E
        if isK: B.append("s_branch K1_tail")
        traces.append(L + c0 + c1 + c2 + c1 + c2 + c7 + E)
        if isK: LK = B
        else: LV = B
    L += LK + LV
    A("K1_tail:")
    L += stamp(3)
    T = hjob()
    L += T
    A("K1_end:")
    A("s_endpgm")
    for tr in traces: check_trace(tr + T, "k1")
    return L

def hjob():
    L = []; A = L.append
    L += srd(8, 24, 2048*1280)
    L += srd(12, 4, 3840*4)
    A("s_cmp_ge_u32 s3, 2"); A("s_cbranch_scc1 K1_vec")
    A(f"v_lshrrev_b32 v13, 4, v{V_LANE}"); A("s_lshl_b32 s28, s2, 3"); A("s_lshl_b32 s29, s3, 2"); A("s_add_u32 s28, s28, s29")
    A("v_add_u32 v13, s28, v13")
    A(f"v_and_b32 v14, 15, v{V_LANE}")
    A("s_movk_i32 s28, 1280"); A("v_mul_lo_u32 v15, v13, s28"); A("v_lshl_add_u32 v15, v14, 4, v15")
    for n in range(5): A(f"buffer_load_dwordx4 v[{32+4*n}:{35+4*n}], v15, s[8:11], 0 offen offset:{n*256}")
    A("v_lshlrev_b32 v16, 5, v14")
    A("s_movk_i32 s29, 2560")
    for n in range(5):
        for hh in range(2):
            A(f"buffer_load_dwordx4 v[{96+8*n+4*hh}:{99+8*n+4*hh}], v16, s[12:15], 0 offen offset:{n*512+hh*16}")
            A(f"buffer_load_dwordx4 v[{136+8*n+4*hh}:{139+8*n+4*hh}], v16, s[12:15], s29 offen offset:{n*512+hh*16}")
    A("s_waitcnt vmcnt(20)")
    for j in range(20):
        A(f"v_lshlrev_b32 v{56+2*j}, 16, v{32+j}"); A(f"v_and_b32 v{57+2*j}, 0xffff0000, v{32+j}")
    A("v_add_f32 v17, v56, v57")
    for j in range(2, 40): A(f"v_add_f32 v17, v17, v{56+j}")
    for sh in (8, 4, 2, 1):
        A("s_nop 1"); A(f"v_add_f32 v17, v17, v17 row_ror:{sh}")
    A(f"v_mul_f32 v17, {fhex(1/640)}, v17")
    for j in range(40): A(f"v_sub_f32 v{56+j}, v{56+j}, v17")
    A("v_mul_f32 v18, v56, v56")
    for j in range(1, 40): A(f"v_fmac_f32 v18, v{56+j}, v{56+j}")
    for sh in (8, 4, 2, 1):
        A("s_nop 1"); A(f"v_add_f32 v18, v18, v18 row_ror:{sh}")
    A(f"v_mov_b32 v19, {fhex(1e-5)}")
    A(f"v_fmac_f32 v19, {fhex(1/640)}, v18")
    A("v_rsq_f32 v19, v19")
    A(f"s_mov_b32 s28, {fhex(QSCALE)}")
    A("s_waitcnt vmcnt(0)")
    for j in range(40):
        A(f"v_mul_f32 v{56+j}, v{56+j}, v19")
        A(f"v_fma_f32 v{56+j}, v{56+j}, v{136+j}, v{96+j}")
        A(f"v_mul_f32 v{56+j}, s28, v{56+j}")
    for j in range(20): A(f"v_cvt_pk_bf16_f32 v{32+j}, v{56+2*j}, v{57+2*j}")
    L += srd(8, 4, 128*20*1024, hex(WS_H))
    A("v_lshrrev_b32 v15, 4, v13"); A("v_mul_u32_u24 v15, 20, v15"); A("v_lshrrev_b32 v16, 2, v14"); A("v_add_u32 v15, v15, v16")
    A("v_lshlrev_b32 v15, 6, v15"); A("v_and_b32 v16, 3, v14"); A("v_lshl_add_u32 v15, v16, 4, v15")
    A("v_and_b32 v16, 15, v13"); A("v_add_u32 v15, v15, v16"); A("v_lshlrev_b32 v15, 4, v15")
    for n in range(5):
        A(f"s_movk_i32 s28, {n*4096}")
        A(f"buffer_store_dwordx4 v[{32+4*n}:{35+4*n}], v15, s[8:11], s28 offen")
    A("s_waitcnt vmcnt(0)")
    L += stamp_out(1, 5)
    A("s_endpgm")
    A("K1_vec:")
    A("s_cmp_lg_u32 s3, 2"); A("s_cbranch_scc1 K1_fin"); A("s_cmp_ge_u32 s2, 20"); A("s_cbranch_scc1 K1_fin")
    A(f"v_and_b32 v13, 15, v{V_LANE}"); A(f"v_lshrrev_b32 v14, 4, v{V_LANE}")
    A("v_cmp_eq_u32 vcc, 0, v13"); A(f"v_mov_b32 v15, {3*2560}"); A(f"v_mov_b32 v16, {4*2560}"); A("v_cndmask_b32 v15, v15, v16, vcc")
    A("v_lshl_add_u32 v15, v14, 4, v15"); A("s_lshl_b32 s28, s2, 7")
    A("buffer_load_dwordx4 v[32:35], v15, s[12:15], s28 offen"); A("buffer_load_dwordx4 v[36:39], v15, s[12:15], s28 offen offset:64")
    A("v_cmp_gt_u32 vcc, 2, v13")
    A("s_waitcnt vmcnt(0)")
    for j in range(4):
        A(f"v_cvt_pk_bf16_f32 v{40+j}, v{32+2*j}, v{33+2*j}"); A(f"v_cndmask_b32 v{40+j}, 0, v{40+j}, vcc")
    L += srd(8, 4, 20*1024, hex(WS_VEC))
    A("s_lshl_b32 s28, s2, 10")
    A(f"buffer_store_dwordx4 v[40:43], v{V_L16}, s[8:11], s28 offen")
    A("K1_fin:")
    A("s_waitcnt vmcnt(0)")
    L += stamp_out(1, 5)
    return L
```

```python
from common import *
from gemma import *

V_LANE, V_L16, V_WV, V_KVD, V_KA, V_VA, V_Y, V_NEG = 1, 2, 3, 4, 5, 6, 7, 12
V_TR = 8
V_T = 13
ONES = 24
S0, S1, CI, LS = 32, 64, 96, 112
VF = 128
QACC = 128
A_O, A_Q, A_K = 0, 128, 192
S_W = 3; S_HEAD = 26; S_I = 27; S_2D = 30; S_Q = 31; S_KOFF = 32; S_VOFF = 33; S_KM0 = 34; S_VM0 = 35
S_KCNT = 36; S_VCNT = 37; S_RETRY = 38; S_W2K = 39; S_YA = 60; S_YB = 61
SRD_W, SRD_H, SRD_K, SRD_V, SRD_O = 8, 12, 16, 20, 64
LTHRESH = 2.0**64

def Sb(p, pair, half): return (S0 if p == 0 else S1) + pair*8 + half*4
def Of(d, q): return ar(A_O + (d*4+q)*4, 4)
def Qf(q, ds): return ar(A_Q + (q*4+ds)*4, 4)
def Kf(j): return ar(A_K + j*4, 4)
def Vf(j): return vr(VF + j*4, 4)
def rdK(p, j): return f"ds_read_b128 {Kf(j)}, v{V_KA} offset:{p*16384 + j*1024}"
def rdV(p, j): return f"ds_read_b128 {Vf(j)}, v{V_VA} offset:{p*16384 + j*1024}"

_lab = [0]
def kv_issue(which, force):
    srd_, off, m0, cnt = (SRD_K, S_KOFF, S_KM0, S_KCNT) if which == 'K' else (SRD_V, S_VOFF, S_VM0, S_VCNT)
    ld = lambda o: f"buffer_load_dwordx4 v{V_KVD}, s[{srd_}:{srd_+3}], s{off} offen offset:{o} lds ; tag={which}"
    G = [[f"s_mov_b32 m0, s{m0}", ld(0)], [ld(1024), f"s_add_u32 s{off}, s{off}, 8192"]]
    second = [[f"s_add_u32 m0, s{m0}, 8192", ld(0)], [ld(1024), f"s_add_u32 s{off}, s{off}, 8192"]]
    base = 0 if which == 'K' else 65536
    upd = [f"s_add_u32 s{m0}, s{m0}, 16384", f"s_and_b32 s{m0}, s{m0}, 0xffff"] + ([f"s_or_b32 s{m0}, s{m0}, 0x10000"] if base else []) + [f"s_add_u32 s{cnt}, s{cnt}, 1"]
    if force == 's': G += second
    elif force is None:
        _lab[0] += 1; lab = f"K2_sk{_lab[0]}"
        G[-1] += [f"s_cmp_lt_u32 s{cnt}, s{S_2D}", f"s_cbranch_scc1 {lab}", second[0][0], "s_nop 0", second[0][1], second[1][0], second[1][1], f"{lab}:"]
    G[-1] += upd
    return G

def flat(G):
    L = []
    for g in G:
        if g[0].startswith("s_") and "m0," in g[0]: L += [g[0], "s_nop 0"] + g[1:]
        else: L += g
    return L

def sm_half(p, half):
    E, C = [], []
    for pair in range(4):
        n = Sb(p, pair, 0); b = n + 4*half
        for r in range(4): E.append(f"v_exp_f32 v{b+r}, v{b+r}")
        C.append(f"v_cvt_pk_bf16_f32 v{n+2*half}, v{b}, v{b+1}")
        C.append(f"v_cvt_pk_bf16_f32 v{n+2*half+1}, v{b+2}, v{b+3}")
    return E, C

def place_common(F, p_sm, half, egaps):
    E, C = sm_half(p_sm, half)
    for e, g in zip(E, egaps): F.add(g, e)
    for i, c in enumerate(C): F.add(egaps[2*i+1] + 1, c)

def place_groups(F, G, gaps):
    for g, gap in zip(G, gaps):
        i = [k for k, x in enumerate(g) if x.startswith("buffer_")][0]
        if g[:i]: F.add(gap - 1, *g[:i], front=True)
        F.add(gap, *g[i:])
    assert len(G) <= len(gaps)

def qk_block(T, p, mfma=True):
    mf = []
    if T == 'd':
        for kv in range(2):
            for q in range(4):
                for ds in range(4):
                    d = vr(Sb(p, q, kv), 4)
                    mf.append(mfma16(d, Kf(kv*4+ds), Qf(q, ds), vr(CI+4*q, 4) if ds == 0 else None))
    else:
        for kv in range(4):
            for q in range(2):
                for ds in range(4):
                    d = vr(Sb(p, (kv >> 1)*2 + q, kv & 1), 4)
                    mf.append(mfma16(d, Kf(kv*4+ds), Qf(2+q, ds), vr(CI+4*(2+q), 4) if ds == 0 else None))
    F = Fill()
    if p == 1: F.add(0, f"v_xor_b32 v{V_VA}, 0x8000, v{V_VA}")
    F.add(0, f"s_add_u32 s{S_Q}, s{S_Q}, 1", front=True)
    place_common(F, 1-p, 1, [2*i for i in range(16)])
    if T == 'd':
        place_groups(F, kv_issue('K', None), [1, 5])
        F.add(9, "s_waitcnt vmcnt(8)", "s_barrier", front=True)
        for j in range(8): F.add(11 + 2*j, rdV(1-p, j), front=True)
    else:
        for j in range(8): F.add([1, 1, 3, 5, 5, 7, 9, 9][j], rdK(p, 8+j), front=True)
        place_groups(F, kv_issue('K', 's'), [11, 13, 17, 21])
        F.add(15, "s_waitcnt vmcnt(14) lgkmcnt(0)", "s_barrier", front=True)
        for j in range(8): F.add([19, 19, 23, 25, 25, 27, 29, 29][j], rdV(1-p, j), front=True)
    F.add(31, "s_waitcnt lgkmcnt(0)")
    if not mfma:
        return [x for g in sorted(F) for x in F[g]]
    return interleave(mf, F)

def pv_block(T, p):
    mf = []
    P = lambda pair: vr(Sb(p, pair, 0), 4)
    if T == 'd':
        for d in range(8):
            for q in range(4): mf.append(mfma16(Of(d, q), Vf(d), P(q)))
            if d & 1: mf.append(mfma16(vr(LS + 4*(d >> 1), 4), vr(ONES, 4), P(d >> 1)))
    else:
        for j in range(16):
            ks, d = j >> 3, j & 7
            for q in range(2): mf.append(mfma16(Of(d, 2+q), Vf(j), P(ks*2+q)))
            if (j & 3) == 3:
                pr = j >> 2
                mf.append(mfma16(vr(LS + 4*(2 + (pr & 1)), 4), vr(ONES, 4), P(pr)))
    F = Fill()
    if p == 0: F.add(1, f"v_xor_b32 v{V_KA}, 0x8000, v{V_KA}")
    eg = [0, 2, 4, 6, 9, 11, 13, 15, 18, 20, 22, 24, 27, 29, 31, 33]
    place_common(F, 1-p, 0, eg)
    if T == 'd':
        place_groups(F, kv_issue('V', None), [8, 17])
        for j in range(8): F.add([5, 7, 10, 14, 19, 23, 26, 28][j], rdK(p, j), front=True)
    else:
        for j in range(8): F.add([1, 3, 5, 5, 7, 10, 10, 12][j], rdV(p, 8+j), front=True)
        place_groups(F, kv_issue('V', 's'), [8, 14, 26, 32])
        F.add(17, "s_waitcnt lgkmcnt(0)")
        for j in range(8): F.add([19, 19, 21, 23, 23, 25, 28, 28][j], rdK(p, j), front=True)
    F.add(35, "s_waitcnt lgkmcnt(0)")
    return interleave(mf, F)

def mask_ops(blocks, vy):
    L = []
    for reg, cst in blocks:
        for r in range(4): L.append(f"v_cmp_gt_i32 s[{44+2*r}:{45+2*r}], {cst+r}, v{vy}")
        for r in range(4): L.append(f"v_cndmask_b32 v{reg+r}, v{reg+r}, v{V_NEG}, s[{44+2*r}:{45+2*r}]")
    return L

def mask_block(T, p):
    L = []
    if T == 'd':
        L += [f"s_lshl_b32 s28, s{S_Q}, 5", f"s_sub_u32 s28, s{S_YA}, s28"]
        blocks = [(Sb(p, q, kv), 16*kv - 16*q) for kv in range(2) for q in range(2)]
    else:
        L += [f"s_lshl_b32 s28, s{S_Q}, 6", f"s_sub_u32 s28, s{S_YB}, s28"]
        blocks = [(Sb(p, (kv >> 1)*2+q, kv & 1), 16*kv - 16*q) for kv in range(4) for q in range(2)]
    L += [f"v_add_u32 v{V_T}, s28, v{V_Y}", "s_nop 4"]
    L += mask_ops(blocks, V_T)
    return L

def xmax(reg, tmp):
    return [f"v_mov_b32 v{tmp}, v{reg}", "s_nop 1", f"v_permlane32_swap_b32 v{reg}, v{tmp}", f"v_max_f32 v{reg}, v{reg}, v{tmp}",
            f"v_mov_b32 v{tmp}, v{reg}", "s_nop 1", f"v_permlane16_swap_b32 v{reg}, v{tmp}", f"v_max_f32 v{reg}, v{reg}, v{tmp}"]

def kv_init_state():
    return [f"s_mov_b32 s{S_KOFF}, 0", f"s_mov_b32 s{S_VOFF}, 0", f"s_mov_b32 s{S_KM0}, s{S_W2K}", f"s_add_u32 s{S_VM0}, s{S_W2K}, 0x10000",
            f"s_mov_b32 s{S_KCNT}, 0", f"s_mov_b32 s{S_VCNT}, 0", f"s_mov_b32 s{S_Q}, -1",
            f"v_mov_b32 v{V_KA}, v{V_L16}", f"v_add_u32 v{V_VA}, 0x18000, v{V_L16}"]

def k2():
    L = []; A = L.append
    A("s_cmp_ge_u32 s2, 256"); A("s_cbranch_scc1 K2_end")
    L += stamp_init()
    A(ldptr(4, 'ws')); A(ldptr(6, 'wq'))
    L += wave_id(S_W, 1)
    A(f"v_and_b32 v{V_LANE}, 63, v0"); A(f"v_lshlrev_b32 v{V_L16}, 4, v{V_LANE}")
    A(f"s_and_b32 s{S_HEAD}, s2, 7"); A(f"s_lshl_b32 s{S_HEAD}, s{S_HEAD}, 2"); A("s_bfe_u32 s28, s2, 0x20003"); A(f"s_add_u32 s{S_HEAD}, s{S_HEAD}, s28")
    A(f"s_lshr_b32 s{S_I}, s2, 5")
    ga = GA(acc0=QACC, hring=0, wring=A_K, v_wv=V_WV, v_tr=V_TR, v_l16=V_L16, srd_w=SRD_W, srd_h=SRD_H, s_soff=44, s_wadv=41, s_m0=40, s_hq=52)
    A(f"s_lshl_b32 s40, s{S_W}, 12"); A(f"s_mov_b32 s41, {64*8192}")
    for j in range(4): A(f"s_mov_b32 s{44+j}, {NATROW[j]*8192 - j*1024}")
    A("s_movk_i32 s28, 8192")
    L += wdma_voff(V_WV, V_LANE, V_T, V_T+1, "s28", nat=True)
    A(f"s_lshl_b32 s28, s{S_I}, 3"); A(f"s_lshl_b32 s29, s{S_W}, 1"); A("s_add_u32 s56, s28, s29"); A("s_add_u32 s57, s56, 1")
    A("s_sub_u32 s58, 120, s28"); A("s_add_u32 s58, s58, s29"); A("s_add_u32 s59, s58, 1")
    for q in range(4): A(f"s_mul_i32 s{52+q}, s{56+q}, 20480")
    A("s_waitcnt lgkmcnt(0)")
    A(f"s_lshl_b32 s28, s{S_HEAD}, 8"); A(f"s_lshr_b32 s29, s{S_W}, 1"); A("s_lshl_b32 s29, s29, 7"); A("s_add_u32 s28, s28, s29")
    A(f"s_and_b32 s29, s{S_W}, 1"); A("s_lshl_b32 s29, s29, 18"); A("s_add_u32 s28, s28, s29")
    A(f"s_add_u32 s{SRD_W}, s6, s28"); A(f"s_addc_u32 s{SRD_W+1}, s7, 0"); A(f"s_sub_u32 s{SRD_W+2}, {640*8192}, s28"); A(f"s_mov_b32 s{SRD_W+3}, 0x20000")
    L += srd(SRD_H, 4, 128*20*1024, hex(WS_H))
    L += ga.prologue_issue()
    L += tr_addr(V_TR, V_LANE, V_T, V_T+1)
    A(f"s_lshl_b32 s{S_2D}, s{S_I}, 2"); A(f"s_add_u32 s{S_2D}, s{S_2D}, 4")
    A(f"s_lshl_b32 s28, s{S_HEAD}, 19"); A(f"s_add_u32 s29, s28, {hex(WS_K)}")
    A(f"s_add_u32 s{SRD_K}, s4, s29"); A(f"s_addc_u32 s{SRD_K+1}, s5, 0")
    A(f"s_add_u32 s29, s28, {hex(WS_V)}"); A(f"s_add_u32 s{SRD_V}, s4, s29"); A(f"s_addc_u32 s{SRD_V+1}, s5, 0")
    A(f"s_lshl_b32 s28, s{S_I}, 15"); A(f"s_sub_u32 s{SRD_K+2}, {32*16384}, s28"); A(f"s_mov_b32 s{SRD_V+2}, s{SRD_K+2}")
    A(f"s_mov_b32 s{SRD_K+3}, 0x20000"); A(f"s_mov_b32 s{SRD_V+3}, 0x20000")
    A(f"s_lshl_b32 s28, s{S_HEAD}, 12"); A(f"s_add_u32 s28, s28, {hex(WS_CTX)}")
    A(f"s_add_u32 s{SRD_O}, s4, s28"); A(f"s_addc_u32 s{SRD_O+1}, s5, 0"); A(f"s_mov_b32 s{SRD_O+2}, {1<<24}"); A(f"s_mov_b32 s{SRD_O+3}, 0x20000")
    A(f"s_lshl_b32 s{S_W2K}, s{S_W}, 11"); A(f"v_add_u32 v{V_KVD}, s{S_W2K}, v{V_L16}")
    L += kv_init_state()
    A(f"s_mov_b32 s{S_RETRY}, 0")
    A(f"v_and_b32 v{V_T}, 15, v{V_LANE}"); A(f"v_lshrrev_b32 v{V_T+1}, 4, v{V_LANE}"); A(f"v_lshlrev_b32 v{V_T+1}, 2, v{V_T+1}")
    A(f"v_sub_u32 v{V_Y}, v{V_T}, v{V_T+1}")
    A(f"s_lshl_b32 s{S_YA}, s56, 4"); A(f"s_lshl_b32 s{S_YB}, s58, 4"); A(f"s_lshl_b32 s28, s{S_2D}, 5"); A(f"s_add_u32 s{S_YB}, s{S_YB}, s28")
    A(f"v_mov_b32 v{V_NEG}, 0xff800000")
    for r in range(4): A(f"v_mov_b32 v{ONES+r}, 0x3f803f80")
    for r in range(16): A(f"v_mov_b32 v{CI+r}, 0"); A(f"v_mov_b32 v{LS+r}, 0")
    L += ga.prologue_reads()
    L += stamp(1) + (["s_waitcnt lgkmcnt(0)"] if STAMPS else [])
    init = {6: ['K'], 7: ['K'], 8: ['V', 'K'], 9: ['V']}
    nk = 0
    for c in range(10):
        eg = []
        for wch in init.get(c, []):
            g = kv_issue(wch, 'd')
            if wch == 'K' and nk == 0:
                g = [[x.replace("tag=K", "tag=K0") for x in y] for y in g]
            if wch == 'K': nk += 1
            eg += g
        ef = []
        if c >= 7:
            sl = (c - 1) & 3
            gaps = [d*8 + o for d in range(8) for o in (1, 2, 5, 7)]
            ef = [(gaps[r], f"v_accvgpr_write_b32 a{sl*32+r}, 0") for r in range(32)]
        lb = ["WAITVM K0", "s_barrier"] if c == 9 else None
        L += ga.chunk(c, eg, ef, lb)
    for r in range(32): A(f"v_accvgpr_write_b32 a{32+r}, 0")
    for j in range(8): A(rdK(0, j))
    for q in range(4):
        for ds in range(4):
            r0 = QACC + ((2*ds)*4+q)*4; r1 = QACC + ((2*ds+1)*4+q)*4; t = V_T + 4*(ds & 1)
            A(f"v_cvt_pk_bf16_f32 v{t}, v{r0}, v{r0+1}"); A(f"v_cvt_pk_bf16_f32 v{t+1}, v{r0+2}, v{r0+3}")
            A(f"v_cvt_pk_bf16_f32 v{t+2}, v{r1}, v{r1+1}"); A(f"v_cvt_pk_bf16_f32 v{t+3}, v{r1+2}, v{r1+3}")
            for r in range(4): A(f"v_accvgpr_write_b32 a{A_Q+(q*4+ds)*4+r}, v{t+r}")
    L += stamp(2)
    A("s_waitcnt lgkmcnt(0)")
    A("s_branch K2_QKd0")
    L = resolve_waits(L); A = L.append
    pre = list(L)
    B = {}
    for T in 'ds':
        for p in range(2):
            B['QK'+T+str(p)] = qk_block(T, p); B['PV'+T+str(p)] = pv_block(T, p); B['M'+T+str(p)] = mask_block(T, p)
    nxt_single = [f"s_add_u32 s28, s{S_Q}, 1", f"s_cmp_ge_u32 s28, s{S_2D}"]
    mtest_d = [f"s_add_u32 s28, s{S_Q}, 4", f"s_cmp_ge_u32 s28, s{S_2D}"]
    mtest_s = [f"s_cmp_ge_u32 s{S_Q}, 32"]
    A(".p2align 6")
    A("K2_PVd1:"); L += B['PVd1'] + nxt_single; A("s_cbranch_scc1 K2_QKs1")
    A("K2_QKd1:"); L += B['QKd1'] + mtest_d; A("s_cbranch_scc1 K2_Md1")
    A("K2_PVd0:"); L += B['PVd0'] + nxt_single; A("s_cbranch_scc1 K2_QKs0")
    A("K2_QKd0:"); L += B['QKd0'] + mtest_d; A("s_cbranch_scc1 K2_Md0")
    A("K2_QKd0r:"); A(f"s_cmp_lg_u32 s{S_Q}, 0"); A("s_cbranch_scc1 K2_PVd1")
    first = []
    first += [f"s_cmp_lg_u32 s{S_RETRY}, 0", "s_cbranch_scc1 K2_nomax", "s_nop 4"]
    for q in range(4):
        n = Sb(0, q, 0); m = V_T + q
        first += [f"v_max3_f32 v{m}, v{n}, v{n+1}, v{n+2}", f"v_max3_f32 v{m}, v{m}, v{n+3}, v{n+4}", f"v_max3_f32 v{m}, v{m}, v{n+5}, v{n+6}", f"v_max_f32 v{m}, v{m}, v{n+7}"]
    for q in range(4): first += xmax(V_T+q, V_T+4)
    for q in range(4):
        n = Sb(0, q, 0); m = V_T + q
        for r in range(4): first.append(f"v_sub_f32 v{CI+4*q+r}, 0, v{m}")
        for r in range(8): first.append(f"v_sub_f32 v{n+r}, v{n+r}, v{m}")
    first += ["K2_nomax:", "s_nop 4"]
    first += [rdK(1, j) for j in range(8)]
    first += flat(kv_issue('V', 'd'))
    E, C = sm_half(0, 0)
    first += E + C + ["s_waitcnt lgkmcnt(0)", "s_branch K2_QKd1"]
    L += first
    A("K2_Md1:"); L += B['Md1']; A("s_branch K2_PVd0")
    A("K2_Md0:"); L += B['Md0']; A("s_branch K2_QKd0r")
    A("K2_Ms1:"); L += B['Ms1']; A("s_branch K2_PVs0")
    A("K2_Ms0:"); L += B['Ms0']; A("s_branch K2_QKs0r")
    A(".p2align 6")
    A("K2_PVs1:"); L += B['PVs1']; A(f"s_cmp_ge_u32 s{S_Q}, 34"); A("s_cbranch_scc1 K2_done")
    A("K2_QKs1:"); L += B['QKs1'] + mtest_s; A("s_cbranch_scc1 K2_Ms1")
    A("K2_PVs0:"); L += B['PVs0']; A(f"s_cmp_ge_u32 s{S_Q}, 33"); A("s_cbranch_scc1 K2_tail")
    A("K2_QKs0:"); L += B['QKs0'] + mtest_s; A("s_cbranch_scc1 K2_Ms0")
    A("K2_QKs0r:"); A(f"s_cmp_lg_u32 s{S_Q}, s{S_2D}"); A("s_cbranch_scc1 K2_PVs1"); A("s_branch K2_PVd1")
    E, C = sm_half(1, 1)
    tail = [f"s_add_u32 s{S_Q}, s{S_Q}, 1", "s_waitcnt vmcnt(0)", "s_barrier"] + [rdV(1, j) for j in range(8)] + E + C + ["s_waitcnt lgkmcnt(0)", "s_branch K2_PVs1"]
    A("K2_tail:"); L += tail
    fin = []
    fin += stamp(3)
    fin += ["s_nop 7", f"v_max3_f32 v{V_T}, v{LS}, v{LS+4}, v{LS+8}", f"v_max_f32 v{V_T}, v{V_T}, v{LS+12}",
            f"v_add_f32 v{V_T+1}, v{LS}, v{LS+4}", f"v_add_f32 v{V_T+1}, v{V_T+1}, v{LS+8}", f"v_add_f32 v{V_T+1}, v{V_T+1}, v{LS+12}",
            f"v_mov_b32 v{V_T+2}, {fhex(float(os.environ.get('LTH', LTHRESH)))}",
            f"v_cmp_nle_f32 vcc, v{V_T+1}, v{V_T+2}", "s_nop 1",
            "s_cmp_lg_u64 vcc, 0", "s_cselect_b32 s28, 1, 0",
            f"v_mov_b32 v{V_T}, s28", f"s_lshl_b32 s29, s{S_W}, 2", "s_add_u32 s29, s29, 0x20000", f"v_mov_b32 v{V_T+1}, s29",
            f"ds_write_b32 v{V_T+1}, v{V_T}", f"v_mov_b32 v{V_T+1}, 0x20000",
            "s_waitcnt vmcnt(0) lgkmcnt(0)", "s_barrier",
            f"ds_read_b128 v[{16}:{19}], v{V_T+1}"]
    for q in range(4): fin.append(f"v_rcp_f32 v{LS+4*q}, v{LS+4*q}")
    fin += ["s_waitcnt lgkmcnt(0)", "v_or3_b32 v16, v16, v17, v18", "v_or_b32 v16, v16, v19", "s_nop 0", "v_readfirstlane_b32 s28, v16",
            f"s_andn2_b32 s28, s28, s{S_RETRY}", "s_cmp_lg_u32 s28, 0", "s_cbranch_scc1 K2_slow"]
    i = 0
    for q in range(4):
        fin.append(f"s_lshl_b32 s28, s{56+q}, 17")
        for t in range(4):
            b = 32 + 12*(i & 1); i += 1
            for hf in range(2):
                for r in range(4): fin.append(f"v_accvgpr_read_b32 v{b+4*hf+r}, a{A_O+((2*t+hf)*4+q)*4+r}")
            for r in range(8): fin.append(f"v_mul_f32 v{b+r}, v{b+r}, v{LS+4*q}")
            for r in range(4): fin.append(f"v_cvt_pk_bf16_f32 v{b+8+r}, v{b+2*r}, v{b+2*r+1}")
            fin.append(f"buffer_store_dwordx4 v[{b+8}:{b+11}], v{V_L16}, s[{SRD_O}:{SRD_O+3}], s28 offen offset:{t*1024}")
    fin += ["s_waitcnt vmcnt(0)"] + stamp_out(2, 5) + ["s_endpgm"]
    A("K2_done:"); L += fin
    sl = ["K2_slow:", f"s_mov_b32 s{S_RETRY}, 1", "s_barrier"]
    for q in range(4): sl.append(f"v_mov_b32 v{LS+q}, v{V_NEG}")
    sl += [f"v_mov_b32 v{V_KA}, v{V_L16}", f"s_mov_b32 s{S_KOFF}, 0", f"s_mov_b32 s{S_Q}, 0", f"s_lshr_b32 s{S_KCNT}, s{SRD_K+2}, 13",
           f"s_lshl_b32 s62, s58, 4",
           "K2_slowloop:", f"s_mov_b32 m0, s{S_W2K}", "s_nop 0",
           f"buffer_load_dwordx4 v{V_KVD}, s[{SRD_K}:{SRD_K+3}], s{S_KOFF} offen lds",
           f"buffer_load_dwordx4 v{V_KVD}, s[{SRD_K}:{SRD_K+3}], s{S_KOFF} offen offset:1024 lds",
           f"s_add_u32 s{S_KOFF}, s{S_KOFF}, 8192", "s_waitcnt vmcnt(0)", "s_barrier"]
    sl += [rdK(0, j) for j in range(8)] + ["s_waitcnt lgkmcnt(0)", "s_barrier"]
    for kv in range(2):
        for q in range(4):
            for ds in range(4):
                sl.append(mfma16(vr(Sb(0, q, kv), 4), Kf(kv*4+ds), Qf(q, ds), "0" if ds == 0 else None))
    sl += [f"s_lshl_b32 s28, s{S_Q}, 5", f"s_sub_u32 s29, s{S_YA}, s28", f"v_add_u32 v{V_T}, s29, v{V_Y}",
           f"s_sub_u32 s29, s62, s28", f"v_add_u32 v{V_T+1}, s29, v{V_Y}", "s_nop 7"]
    sl += mask_ops([(Sb(0, q, kv), 16*kv - 16*q) for kv in range(2) for q in range(2)], V_T)
    sl += mask_ops([(Sb(0, 2+q, kv), 16*kv - 16*q) for kv in range(2) for q in range(2)], V_T+1)
    for q in range(4):
        n = Sb(0, q, 0)
        for r in range(4): sl.append(f"v_max3_f32 v{LS+q}, v{LS+q}, v{n+2*r}, v{n+2*r+1}")
    sl += [f"s_add_u32 s{S_Q}, s{S_Q}, 1", f"s_cmp_lt_u32 s{S_Q}, s{S_KCNT}", "s_cbranch_scc1 K2_slowloop"]
    for q in range(4): sl += xmax(LS+q, V_T+4)
    for q in range(4):
        for r in range(4): sl.append(f"v_sub_f32 v{CI+4*q+r}, 0, v{LS+q}")
    for r in range(16): sl.append(f"v_mov_b32 v{LS+r}, 0")
    for r in range(128): sl.append(f"v_accvgpr_write_b32 a{r}, 0")
    sl += kv_init_state()
    for wch in 'KKVKV': sl += flat(kv_issue(wch, 'd'))
    sl += ["s_waitcnt vmcnt(8)", "s_barrier"] + [rdK(0, j) for j in range(8)] + ["s_waitcnt lgkmcnt(0)", "s_branch K2_QKd0"]
    L += sl
    A("K2_end:"); A("s_endpgm")
    for i in (0, 3, 7):
        D2 = 4*i + 4
        tr = list(pre)
        def qk(h):
            T = 'd' if h < D2 else 's'
            t = strip_cond(B['QK'+T+str(h & 1)], h + 3 >= D2)
            if (T == 'd' and h + 4 >= D2) or (T == 's' and h >= 32): t = t + B['M'+T+str(h & 1)]
            return t
        def pv(h): return strip_cond(B["PV"+("d" if h < D2 else "s")+str(h & 1)], h + 3 >= D2)
        tr += qk(0) + first + qk(1)
        for h in range(0, 32): tr += pv(h) + qk(h+2)
        tr += pv(32) + tail + pv(33) + fin + sl
        check_trace(tr, f"k2 i={i}")
    return L

def strip_cond(blk, taken_extra):
    if taken_extra: return blk
    out = []; skip = None
    for x in blk:
        if skip:
            if x == skip + ":": skip = None
            continue
        if x.startswith("s_cbranch_scc1 K2_sk"): skip = x.split()[1]
        out.append(x)
    return out
```

```python
from common import *
from gemma import resolve_waits

V_LANE, V_L16 = 1, 2
V_AQ, V_AW = 4, 8
V_T = 13
ACC = 32
SLOT3 = 112
EP = 184
SRD_A, SRD_W, SRD_X, SRD_M, SRD_O1, SRD_O2, SRD_ST = 8, 12, 16, 20, 32, 36, 40

def fr(slot, idx):
    return ar(slot*72 + idx*4, 4) if slot < 3 else vr(SLOT3 + idx*4, 4)
def acc(mb, q): return vr(ACC + (mb*4+q)*4, 4)

def xsum(reg, tmp):
    return [f"v_mov_b32 v{tmp}, v{reg}", "s_nop 1", f"v_permlane32_swap_b32 v{reg}, v{tmp}", f"v_add_f32 v{reg}, v{reg}, v{tmp}",
            f"v_mov_b32 v{tmp}, v{reg}", "s_nop 1", f"v_permlane16_swap_b32 v{reg}, v{tmp}", f"v_add_f32 v{reg}, v{reg}, v{tmp}"]

def gemmb(tag, nk, ngroups, ws_act, ws_w, mode, kidx):
    L = []; A = L.append
    A("s_cmp_ge_u32 s2, 256"); A(f"s_cbranch_scc1 {tag}_end")
    L += stamp_init()
    A(ldptr(4, 'ws')); A(ldptr(6, 'x' if mode == 3 else 'out'))
    L += wave_id(3, 1)
    A(f"v_and_b32 v{V_LANE}, 63, v0"); A(f"v_lshlrev_b32 v{V_L16}, 4, v{V_LANE}")
    A("s_bfe_u32 s26, s2, 0x20001"); A("s_lshl_b32 s26, s26, 3"); A("s_lshr_b32 s28, s2, 5"); A("s_add_u32 s26, s26, s28")
    A("s_and_b32 s27, s2, 1"); A("s_lshl_b32 s27, s27, 2"); A("s_bfe_u32 s28, s2, 0x20003"); A("s_add_u32 s27, s27, s28")
    A(f"s_mul_i32 s28, s26, {4*nk*1024}")
    for q in range(4):
        A(f"v_add_u32 v{V_AQ+q}, s28, v{V_L16}"); A(f"s_add_u32 s28, s28, {nk*1024}")
    A(f"s_mul_i32 s28, s27, {5*nk*1024}")
    for mb in range(5):
        A(f"v_add_u32 v{V_AW+mb}, s28, v{V_L16}"); A(f"s_add_u32 s28, s28, {nk*1024}")
    A(f"s_mul_i32 s30, s3, {ngroups*2048}")
    A("s_waitcnt lgkmcnt(0)")
    L += srd(SRD_A, 4, 128*nk*1024, hex(ws_act)); L += srd(SRD_W, 4, 40*nk*1024, hex(ws_w))
    def issue(g):
        G = []
        sl = g & 3
        pre = []
        if nk % 8 and g == ngroups - 1:
            pre = ["s_cmp_eq_u32 s3, 3", "s_cselect_b32 s30, 0x1000000, s30"]
        for k in range(2):
            for mb in range(5):
                G.append([f"buffer_load_dwordx4 {fr(sl, k*9+mb)}, v{V_AW+mb}, s[{SRD_W}:{SRD_W+3}], s30 offen offset:{k*1024} ; tag=G{g}"])
            for q in range(4):
                G.append([f"buffer_load_dwordx4 {fr(sl, k*9+5+q)}, v{V_AQ+q}, s[{SRD_A}:{SRD_A+3}], s30 offen offset:{k*1024} ; tag=G{g}"])
        G[0] = pre + G[0]
        G[-1].append("s_add_u32 s30, s30, 2048")
        return G
    for g in range(3):
        for x in issue(g): L += x
    A(f"v_and_b32 v{V_T}, 15, v{V_LANE}"); A(f"v_lshrrev_b32 v{V_T+1}, 4, v{V_LANE}")
    A("s_lshl_b32 s28, s26, 6"); A("s_lshl_b32 s29, s3, 4"); A("s_add_u32 s28, s28, s29")
    A(f"v_add_u32 v{V_T}, s28, v{V_T}")
    A("s_movk_i32 s29, 1280"); A(f"v_mul_lo_u32 v{V_T+2}, v{V_T}, s29")
    A("s_mul_i32 s29, s27, 160"); A(f"v_lshl_add_u32 v{V_T+2}, v{V_T+1}, 3, v{V_T+2}"); A(f"v_add_u32 v{V_T+2}, s29, v{V_T+2}")
    A("s_mul_i32 s29, s27, 320"); A(f"v_lshlrev_b32 v{V_T+3}, 4, v{V_T+1}"); A(f"v_add_u32 v{V_T+3}, s29, v{V_T+3}")
    L += srd(SRD_M, 4, 3840*4)
    if mode == 3:
        L += srd(SRD_X, 6, 2048*1280); L += srd(SRD_O1, 4, 2048*1280, hex(WS_X1)); L += srd(SRD_O2, 4, 128*20*1024, hex(WS_X1P))
        L += srd(SRD_ST, 4, 2048*64, hex(WS_STAT))
    else:
        L += srd(SRD_X, 4, 2048*1280, hex(WS_X1)); L += srd(SRD_O1, 6, 2048*1280)
    ep = []
    XR, GA_, CB = EP, EP + 12, EP + 32
    ep.append([f"s_movk_i32 s31, {(2 if mode == 3 else 5)*2560}"])
    for mb in range(5):
        ep.append([f"buffer_load_dwordx2 v[{XR+2*mb}:{XR+2*mb+1}], v{V_T+2}, s[{SRD_X}:{SRD_X+3}], 0 offen offset:{mb*32} ; tag=EP"])
        ep.append([f"buffer_load_dwordx4 v[{GA_+4*mb}:{GA_+4*mb+3}], v{V_T+3}, s[{SRD_M}:{SRD_M+3}], s31 offen offset:{mb*64} ; tag=EP"])
    ep[1] = ep[0] + ep[1]; ep = ep[1:]
    if mode == 3:
        for mb in range(5):
            ep.append(([f"s_movk_i32 s31, {4*2560}"] if mb == 0 else []) + [f"buffer_load_dwordx4 v[{CB+4*mb}:{CB+4*mb+3}], v{V_T+3}, s[{SRD_M}:{SRD_M+3}], s31 offen offset:{mb*64} ; tag=EP"])
    for g in range(ngroups):
        sl = g & 3
        mf = []
        for mb in range(5):
            for q in range(4):
                for k in range(2):
                    mf.append(mfma16(acc(mb, q), fr(sl, k*9+mb), fr(sl, k*9+5+q), "0" if (g == 0 and k == 0) else None))
        F = Fill()
        F.add(-1, f"WAITVM G{g}")
        if g == 0 and STAMPS: F.add(-1, *stamp(1))
        G = issue(g+3) if g + 3 < ngroups else (ep if g + 3 == ngroups else [])
        for i, x in enumerate(G): F.add(2*i, *x)
        L += interleave(mf, F)
    L += stamp(2)
    A(f"s_mul_i32 s28, s3, 20480"); A(f"v_add_u32 v{V_T+4}, s28, v{V_L16}")
    A(f"s_lshl_b32 s28, s3, 10"); A(f"v_add_u32 v{V_T+5}, s28, v{V_L16}"); A(f"v_add_u32 v{V_T+6}, 0xa000, v{V_T+5}")
    A("s_nop 2")
    for b in range(20):
        A(f"ds_write_b128 v{V_T+4}, v[{ACC+4*b}:{ACC+4*b+3}] offset:{b*1024}")
        if b % 10 == 9: A("s_waitcnt lgkmcnt(0)")
    A("s_barrier")
    for w in range(4):
        for mb in range(5):
            A(f"ds_read_b128 v[{ACC+(w*5+mb)*4}:{ACC+(w*5+mb)*4+3}], v{V_T+5+(w>>1)} offset:{(w&1)*20480 + mb*4096}")
        if w & 1: A("s_waitcnt lgkmcnt(0)")
    for i in range(20):
        A(f"v_add_f32 v{ACC+i}, v{ACC+i}, v{ACC+20+i}"); A(f"v_add_f32 v{ACC+40+i}, v{ACC+40+i}, v{ACC+60+i}")
    for i in range(20): A(f"v_add_f32 v{ACC+i}, v{ACC+i}, v{ACC+40+i}")
    A("WAITVM EP")
    Y = ACC; U = ACC + 20; PK = ACC + 40
    for mb in range(5):
        for d in range(2):
            A(f"v_lshlrev_b32 v{U+4*mb+2*d}, 16, v{XR+2*mb+d}"); A(f"v_and_b32 v{U+4*mb+2*d+1}, 0xffff0000, v{XR+2*mb+d}")
    for i in range(20): A(f"v_fma_f32 v{Y+i}, v{Y+i}, v{GA_+i}, v{U+i}")
    for i in range(10): A(f"v_cvt_pk_bf16_f32 v{PK+i}, v{Y+2*i}, v{Y+2*i+1}")
    for mb in range(5):
        A(f"buffer_store_dwordx2 v[{PK+2*mb}:{PK+2*mb+1}], v{V_T+2}, s[{SRD_O1}:{SRD_O1+3}], 0 offen offset:{mb*32}")
    if mode == 3:
        for i in range(10):
            A(f"v_lshlrev_b32 v{Y+2*i}, 16, v{PK+i}"); A(f"v_and_b32 v{Y+2*i+1}, 0xffff0000, v{PK+i}")
        for i in range(20): A(f"v_mul_f32 v{U+i}, v{Y+i}, v{CB+i}")
        P2 = PK + 10
        for i in range(10): A(f"v_cvt_pk_bf16_f32 v{P2+i}, v{U+2*i}, v{U+2*i+1}")
        A("s_lshl_b32 s28, s26, 2"); A("s_add_u32 s28, s28, s3"); A("s_mul_i32 s28, s28, 20480"); A("s_mul_i32 s29, s27, 5")
        for mb in range(5):
            A(f"s_add_u32 s44, s29, {mb}"); A("s_lshr_b32 s45, s44, 1"); A("s_lshl_b32 s45, s45, 10"); A("s_and_b32 s44, s44, 1"); A("s_lshl_b32 s44, s44, 3")
            A("s_add_u32 s44, s44, s45"); A("s_add_u32 s44, s44, s28")
            A(f"buffer_store_dwordx2 v[{P2+2*mb}:{P2+2*mb+1}], v{V_L16}, s[{SRD_O2}:{SRD_O2+3}], s44 offen")
        S = V_T + 8
        S = 22
        A(f"v_add_f32 v{S}, v{Y}, v{Y+1}")
        for i in range(2, 20): A(f"v_add_f32 v{S}, v{S}, v{Y+i}")
        L += xsum(S, 24)
        A(f"v_mul_f32 v{S}, {fhex(1/80)}, v{S}")
        for i in range(20): A(f"v_sub_f32 v{Y+i}, v{Y+i}, v{S}")
        A(f"v_mul_f32 v{S+1}, v{Y}, v{Y}")
        for i in range(1, 20): A(f"v_fmac_f32 v{S+1}, v{Y+i}, v{Y+i}")
        L += xsum(S+1, 24)
        A(f"v_lshlrev_b32 v24, 6, v{V_T}"); A("s_lshl_b32 s28, s27, 3")
        A(f"v_cmp_gt_u32 vcc, 16, v{V_LANE}"); A("s_and_saveexec_b64 s[46:47], vcc")
        A(f"buffer_store_dwordx2 v[{S}:{S+1}], v24, s[{SRD_ST}:{SRD_ST+3}], s28 offen")
    A("s_waitcnt vmcnt(0)")
    L += stamp_out(kidx, 4)
    A(f"{tag}_end:"); A("s_endpgm")
    L = resolve_waits(L)
    check_trace(L, tag)
    return L

def k3(): return gemmb("K3", 128, 16, WS_CTX, WS_WO, 3, 1)
def k5(): return gemmb("K5", 54, 7, WS_HH, WS_WD, 5, 3)
```

```python
from common import *
from gemma import *
from k3 import xsum

V_LANE, V_L16, V_WV = 1, 2, 3
V_TR = 8; V_T = 12
VACC = 24
ACC = 128
A_VEC = 128
SRD_W, SRD_H, SRD_VEC, SRD_ST, SRD_O = 8, 12, 16, 20, 32

def k4():
    L = []; A = L.append
    A("s_cmp_ge_u32 s2, 216"); A("s_cbranch_scc1 K4_end")
    L += stamp_init()
    A(ldptr(4, 'ws')); A(ldptr(6, 'wg')); A(ldptr(24, 'wu'))
    L += wave_id(3, 1)
    A(f"v_and_b32 v{V_LANE}, 63, v0"); A(f"v_lshlrev_b32 v{V_L16}, 4, v{V_LANE}")
    A("s_and_b32 s26, s2, 7"); A("s_lshr_b32 s27, s2, 3")
    ga = GA(acc0=ACC, hring=0, wring=192, v_wv=V_WV, v_tr=V_TR, v_l16=V_L16, srd_w=SRD_W, srd_h=SRD_H, s_soff=44, s_wadv=41, s_m0=40, s_hq=52)
    A("s_lshl_b32 s40, s3, 12"); A(f"s_mov_b32 s41, {64*3456}")
    for j in range(4): A(f"s_mov_b32 s{44+j}, {8*j*3456 - j*1024}")
    A("s_movk_i32 s28, 3456")
    L += wdma_voff(V_WV, V_LANE, V_T, V_T+1, "s28", nat=False)
    A("s_lshl_b32 s28, s26, 4"); A("s_lshl_b32 s29, s3, 2"); A("s_add_u32 s56, s28, s29")
    for q in range(4):
        A(f"s_add_u32 s28, s56, {q}"); A(f"s_mul_i32 s{52+q}, s28, 20480")
    A("s_mov_b32 s57, 0")
    A("s_waitcnt lgkmcnt(0)")
    A("s_cmp_ge_u32 s3, 2"); A("s_cselect_b32 s6, s24, s6"); A("s_cselect_b32 s7, s25, s7")
    A("s_lshl_b32 s28, s27, 7"); A("s_and_b32 s29, s3, 1"); A(f"s_mul_i32 s29, s29, {32*3456}"); A("s_add_u32 s28, s28, s29")
    A(f"s_add_u32 s{SRD_W}, s6, s28"); A(f"s_addc_u32 s{SRD_W+1}, s7, 0"); A(f"s_sub_u32 s{SRD_W+2}, {640*3456}, s28"); A(f"s_mov_b32 s{SRD_W+3}, 0x20000")
    L += srd(SRD_H, 4, 128*20*1024, hex(WS_X1P)); L += srd(SRD_VEC, 4, 20*1024, hex(WS_VEC))
    vf = lambda c, k: ar(A_VEC + ((c & 3)*2 + k)*4, 4)
    base_h = ga.h_issue
    def h_issue(c):
        G = base_h(c)
        for k in range(2):
            G[k] = G[k] + [f"buffer_load_dwordx4 {vf(c,k)}, v{V_L16}, s[{SRD_VEC}:{SRD_VEC+3}], s57 offen offset:{((2*c+k)&3)*1024} ; tag=H{c}"]
        if c & 1: G[-1] += ["s_add_u32 s57, s57, 4096"]
        return G
    ga.h_issue = h_issue
    L += ga.prologue_issue()
    L += tr_addr(V_TR, V_LANE, V_T, V_T+1)
    A("s_lshl_b32 s28, s3, 5")
    for b in range(4): A(f"v_xor_b32 v{V_TR+b}, s28, v{V_TR+b}")
    L += srd(SRD_ST, 4, 2048*64, hex(WS_STAT)); L += srd(SRD_O, 4, 128*54*1024, hex(WS_HH))
    A(f"v_and_b32 v{V_T}, 15, v{V_LANE}"); A(f"v_lshrrev_b32 v{V_T+1}, 4, v{V_LANE}")
    A(f"v_lshlrev_b32 v4, 6, v{V_T}"); A(f"v_lshl_add_u32 v4, v{V_T+1}, 4, v4"); A("s_lshl_b32 s58, s56, 10")
    A(f"v_lshlrev_b32 v5, 4, v{V_T+1}"); A("s_lshl_b32 s28, s3, 7"); A("v_add_u32 v5, s28, v5")
    A(f"v_lshl_add_u32 v6, v{V_T}, 6, v5")
    L += ga.prologue_reads()
    L += stamp(1) + (["s_waitcnt lgkmcnt(0)"] if STAMPS else [])
    ST = 32
    for c in range(10):
        em = []
        for half in range(2):
            d = 4*half
            for k in range(2):
                em.append((d*8 + 7, mfma16(vr(VACC+4*half, 4), ga.wf(d, k), vf(c, k), "0" if (c == 0 and k == 0) else None)))
        eg = None
        if c == 8:
            eg = [[f"buffer_load_dwordx4 v[{ST+4*q}:{ST+4*q+3}], v4, s[{SRD_ST}:{SRD_ST+3}], s58 offen offset:{q*1024} ; tag=ST"] for q in range(4)]
        L += ga.chunk(c, eg, None, None, em)
    L += stamp(2)
    A(f"v_cmp_gt_u32 vcc, 2, v{V_T}"); A("s_and_saveexec_b64 s[60:61], vcc")
    A(f"ds_write_b128 v6, v[{VACC}:{VACC+3}]"); A(f"ds_write_b128 v6, v[{VACC+4}:{VACC+7}] offset:512")
    A("s_mov_b64 exec, s[60:61]")
    A("WAITVM ST lgkmcnt(0)"); A("s_barrier")
    NM, RS = 48, 52
    for q in range(4):
        s = ST + 4*q
        A(f"v_add_f32 v{NM+q}, v{s}, v{s+2}")
    for q in range(4): L += xsum(NM+q, V_T+2)
    for q in range(4):
        s = ST + 4*q
        A(f"v_mul_f32 v{NM+q}, -0.125, v{NM+q}".replace("-0.125", fhex(-0.125)))
        A(f"v_add_f32 v{s}, v{s}, v{NM+q}"); A(f"v_add_f32 v{s+2}, v{s+2}, v{NM+q}")
        A(f"v_mul_f32 v{s}, v{s}, v{s}"); A(f"v_fmac_f32 v{s}, v{s+2}, v{s+2}")
        A(f"v_add_f32 v{RS+q}, v{s+1}, v{s+3}"); A(f"v_fmac_f32 v{RS+q}, {fhex(80.0)}, v{s}")
    for q in range(4): L += xsum(RS+q, V_T+2)
    for q in range(4):
        A(f"v_mov_b32 v{V_T+2}, {fhex(1e-5)}"); A(f"v_fmac_f32 v{V_T+2}, {fhex(1/640)}, v{RS+q}"); A(f"v_rsq_f32 v{RS+q}, v{V_T+2}")
    c1 = -2*0.7978845608028654*math.log2(math.e); c2 = c1*0.044715
    A(f"s_mov_b32 s62, {fhex(c2)}"); A(f"v_mov_b32 v7, {fhex(c1)}")
    UV = 64
    for b in range(4):
        A(f"v_xor_b32 v{V_T+2}, {b*128}, v5")
        for half in range(2):
            for vec in range(2):
                r = UV + b*16 + half*8 + vec*4
                A(f"ds_read_b128 v[{r}:{r+3}], v{V_T+2} offset:{half*512 + vec*64}")
        if b & 1: A("s_waitcnt lgkmcnt(0)")
    for b in range(4):
        A(f"s_xor_b32 s28, s3, {b}"); A("s_lshr_b32 s29, s28, 1"); A("s_lshl_b32 s29, s29, 10"); A("s_and_b32 s28, s28, 1"); A("s_lshl_b32 s28, s28, 3")
        A(f"s_add_u32 s{44+b}, s28, s29")
    A(f"s_mul_i32 s28, s56, {54*1024}"); A("s_lshl_b32 s29, s27, 11"); A("s_add_u32 s28, s28, s29"); A(f"v_add_u32 v4, s28, v{V_L16}")
    T0 = 32
    n = 0
    for q in range(4):
        for b in range(4):
            g0 = ACC + (b*4+q)*4; u0 = ACC + ((4+b)*4+q)*4; uv = UV + b*16
            t = T0 + 4*(n & 1); o = 40 + 2*(n & 3); n += 1
            for r in range(4): A(f"v_fma_f32 v{g0+r}, v{NM+q}, v{uv+r}, v{g0+r}")
            for r in range(4): A(f"v_fma_f32 v{g0+r}, v{g0+r}, v{RS+q}, v{uv+4+r}")
            for r in range(4): A(f"v_mul_f32 v{t+r}, v{g0+r}, v{g0+r}")
            for r in range(4): A(f"v_fma_f32 v{t+r}, v{t+r}, s62, v7")
            for r in range(4): A(f"v_mul_f32 v{t+r}, v{t+r}, v{g0+r}")
            for r in range(4): A(f"v_exp_f32 v{t+r}, v{t+r}")
            for r in range(4): A(f"v_fma_f32 v{u0+r}, v{NM+q}, v{uv+8+r}, v{u0+r}")
            for r in range(4): A(f"v_add_f32 v{t+r}, 1.0, v{t+r}")
            for r in range(4): A(f"v_rcp_f32 v{t+r}, v{t+r}")
            for r in range(4): A(f"v_fma_f32 v{u0+r}, v{u0+r}, v{RS+q}, v{uv+12+r}")
            for r in range(4): A(f"v_mul_f32 v{g0+r}, v{g0+r}, v{t+r}")
            for r in range(4): A(f"v_mul_f32 v{g0+r}, v{g0+r}, v{u0+r}")
            A(f"v_cvt_pk_bf16_f32 v{o}, v{g0}, v{g0+1}"); A(f"v_cvt_pk_bf16_f32 v{o+1}, v{g0+2}, v{g0+3}")
            A(f"buffer_store_dwordx2 v[{o}:{o+1}], v4, s[{SRD_O}:{SRD_O+3}], s{44+b} offen")
        if q < 3: A(f"v_add_u32 v4, {54*1024}, v4")
    A("s_waitcnt vmcnt(0)")
    L += stamp_out(2, 4)
    A("K4_end:"); A("s_endpgm")
    L = resolve_waits(L)
    check_trace(L, "k4")
    return L
```

```python
import sys
from common import *
import importlib
def build(kernels, path):
    hdr = open("cdna_kernels/" + NAME + ".s.ref").read().split("; Override launch")[0]
    out = [hdr.rstrip()]
    for (name, fn, grid, block, lds, nv, acc) in kernels:
        out.append(f"; @launch kernel={name} grid=({grid},1,1) block=({block},1,1) lds={lds}")
    out.append('.amdgcn_target "amdgcn-amd-amdhsa--gfx950"')
    done = set()
    for (name, fn, grid, block, lds, nv, acc) in kernels:
        if name in done: continue
        done.add(name)
        out.append(kernel_text(name, fn(), nv, acc))
    open(path, "w").write("\n".join(out))

def kernels():
    import k0, k1
    K = [("k0_kernel", k0.k0, 468, 256, 32768, 64, 64),
         ("k1_kernel", k1.k1, 256, 256, 131072, 512, 256)]
    try:
        import k2; K.append(("k2_kernel", k2.k2, 256, 256, 163840, 512, 256))
        import k3; K.append(("k3_kernel", k3.k3, 256, 256, 81920, 512, 256))
        import k4; K.append(("k4_kernel", k4.k4, 216, 256, 163840, 512, 256))
        K.append(("k5_kernel", k3.k5, 256, 256, 81920, 512, 256))
    except ImportError as e:
        print("partial build:", e)
    return K
if __name__ == "__main__":
    p = sys.argv[1] if len(sys.argv) > 1 else "all.s"
    build(kernels(), p)
```

```python
import re

def vr(n, c=1): return f"v{n}" if c == 1 else f"v[{n}:{n+c-1}]"
def ar(n, c=1): return f"a{n}" if c == 1 else f"a[{n}:{n+c-1}]"
def sr(n, c=1): return f"s{n}" if c == 1 else f"s[{n}:{n+c-1}]"
def R(spec, off=0, c=1):
    f, b = spec
    return (vr if f == 'v' else ar)(b + off, c)

def mfma16(d, a, b, c=None):
    return f"v_mfma_f32_16x16x32_bf16 {d}, {a}, {b}, {c if c is not None else d}"

def interleave(mf, fill, tail=None):
    out = []
    out += fill.get(-1, [])
    for i, m in enumerate(mf):
        out.append(m)
        out += fill.get(i, [])
    for k in fill:
        assert -1 <= k < len(mf), f"filler gap {k} out of range {len(mf)}"
    return out

class Fill(dict):
    def add(self, gap, *ins, front=False):
        l = self.setdefault(gap, [])
        if front: l[0:0] = list(ins)
        else: l.extend(ins)

_reg = re.compile(r'^(-?\|?)(?:abs\()?([vas])(?:(\d+)|\[(\d+):(\d+)\])\)?\|?$')
def regs_of(op):
    op = op.strip()
    if op in ('vcc',): return [('s', 106), ('s', 107)]
    if op == 'vcc_lo': return [('s', 106)]
    if op == 'vcc_hi': return [('s', 107)]
    if op == 'm0': return [('s', 124)]
    if op == 'exec': return [('s', 126), ('s', 127)]
    m = _reg.match(op)
    if not m: return []
    f = m.group(2)
    if m.group(3) is not None: return [(f, int(m.group(3)))]
    return [(f, i) for i in range(int(m.group(4)), int(m.group(5)) + 1)]

TRANS = ('v_exp_f32', 'v_log_f32', 'v_rcp_f32', 'v_rsq_f32', 'v_sqrt_f32')

class Ins:
    def __init__(self, text):
        self.text = text
        t = text.split(';')[0].strip()
        self.label = t.endswith(':') or t.startswith('.') or t == ''
        if self.label:
            self.op = None; return
        parts = t.split(None, 1)
        self.op = parts[0]
        rest = parts[1] if len(parts) > 1 else ''
        ops = [o.strip() for o in re.split(r',(?![^\[]*\])', rest)] if rest else []
        self.mods = ''
        if ops:
            sp = ops[-1].split(None, 1)
            if len(sp) > 1 and not self.op.startswith('s_waitcnt'):
                ops[-1] = sp[0]; self.mods = sp[1]
        self.ops = ops
        op = self.op
        self.kind = 'salu'
        D, U = [], []
        allr = [regs_of(o) for o in ops]
        if op.startswith('v_mfma'):
            self.kind = 'mfma'; D = allr[0]; self.A, self.B, self.C = allr[1], allr[2], allr[3]; U = self.A + self.B + self.C
            self.passes = 4 if '16x16x32' in op else 8
        elif op.startswith('ds_read') or op.startswith('ds_bpermute') or op.startswith('ds_swizzle'):
            self.kind = 'dsr'; D = allr[0]; U = sum(allr[1:], [])
        elif op.startswith('ds_'):
            self.kind = 'dsw'; U = sum(allr, [])
        elif op.startswith('buffer_load') or op.startswith('global_load'):
            if 'lds' in self.mods.split() or '_lds_' in op:
                self.kind = 'dma'; U = sum(allr, []) + [('s', 124)]
            else:
                self.kind = 'vld'; D = allr[0]; U = sum(allr[1:], [])
        elif op.startswith('buffer_store') or op.startswith('global_store'):
            self.kind = 'vst'; U = sum(allr, [])
            self.data = allr[0] if op.startswith('buffer') else allr[1]
        elif op.startswith('buffer_atomic') or op.startswith('global_atomic'):
            self.kind = 'vst'; U = sum(allr, []); self.data = []
            if 'sc0' in self.mods.split(): D = allr[0]; self.kind = 'vld'
        elif op.startswith('buffer_inv') or op.startswith('buffer_wbl2'):
            self.kind = 'vst'; self.data = []
        elif op.startswith('s_load') or op.startswith('s_memtime') or op.startswith('s_memrealtime'):
            self.kind = 'smem'; D = allr[0]; U = sum(allr[1:], [])
        elif op.startswith('v_'):
            self.kind = 'valu'
            if op.startswith('v_cmp'):
                D = allr[0]; U = sum(allr[1:], [])
            elif op.startswith('v_permlane') and 'swap' in op:
                D = allr[0] + allr[1]; U = allr[0] + allr[1]
            elif op.startswith('v_readfirstlane') or op.startswith('v_readlane'):
                D = allr[0]; U = sum(allr[1:], [])
            elif op.startswith('v_add_co') or op.startswith('v_addc_co'):
                D = allr[0] + allr[1]; U = sum(allr[2:], [])
            elif op == 'v_nop':
                pass
            else:
                D = allr[0]; U = sum(allr[1:], [])
                if op.startswith('v_fmac') or op.startswith('v_dot2c') or 'dpp' in op or 'row_' in self.mods:
                    U = U + allr[0]
            self.dpp = ('row_' in self.mods or 'quad_perm' in self.mods or 'dpp' in op)
        elif op in ('s_waitcnt', 's_barrier', 's_nop', 's_endpgm', 's_setprio', 's_sleep') or op.startswith('s_cbranch') or op == 's_branch':
            self.kind = 'ctl'
        elif op.startswith('s_cmp') or op.startswith('s_bitcmp'):
            U = sum(allr, [])
        else:
            D = allr[0]; U = sum(allr[1:], [])
            if 'saveexec' in op: D = D + [('s',126),('s',127)]
            if op.startswith('s_addk') or op.startswith('s_mulk'): U = U + allr[0]
        self.D, self.U = D, U

def check_trace(lines, name="", verbose=True):
    probs = []
    pos = 0
    lastw = {}
    mfma_c_read = {}
    st_data = {}
    scc = [None]
    vm = []
    lg = []
    def pend(r):
        for q in (vm, lg):
            for e in q:
                if r in e[0]: return e[1]
        return None
    for ln in lines:
        for sub in ln.split('\n'):
            I = Ins(sub)
            if I.op is None: continue
            def P(msg): probs.append(f"[{name}] {msg}: {I.text.strip()}")
            if I.op == 's_waitcnt':
                t = sub.split(';')[0]
                m = re.search(r'vmcnt\((\d+)\)', t)
                if m:
                    n = int(m.group(1))
                    while len(vm) > n: vm.pop(0)
                m = re.search(r'lgkmcnt\((\d+)\)', t)
                if m:
                    n = int(m.group(1))
                    if any(e[2] == 'smem' for e in lg) and n > 0: P("counted lgkmcnt with smem outstanding")
                    while len(lg) > n: lg.pop(0)
                pos += 1; continue
            if I.op == 's_nop':
                pos += int(I.ops[0], 0) + 1; continue
            if I.op.startswith('s_cbranch_scc') or I.op.startswith('s_cselect') or I.op.startswith('s_cmov'):
                if scc[0] is None or not scc[0].startswith(('s_cmp', 's_bitcmp')): P(f"SCC last written by {scc[0]}")
            if I.op.startswith('s_addc'):
                if scc[0] != 's_add_u32': P(f"SCC last written by {scc[0]}")
            if I.kind == 'salu' and not re.match(r's_(mov|cmov|cselect|movk|mul_i32|getpc|getreg|mul_hi)', I.op): scc[0] = I.op
            for r in I.U + ([] if '; pf' in sub else I.D):
                p = pend(r)
                if p is not None: P(f"reg {r} has pending load ({p.strip()})")
            def dist(r):
                w = lastw.get(r)
                return (pos - w[0] - 1, w[1]) if w else (10**6, None)
            for r in I.U:
                d, W = dist(r)
                if W is None: continue
                need = 0
                if W.kind == 'mfma':
                    if I.kind == 'mfma':
                        if r in I.A or r in I.B: need = {4: 8, 8: 12}[W.passes]
                        elif I.C == W.D and I.passes == W.passes: need = 0
                        else: need = {4: 6, 8: 10}[W.passes]
                    else: need = {4: 8, 8: 12}[W.passes]
                elif W.kind == 'valu':
                    if r[0] in 'va':
                        if I.kind == 'mfma': need = 2
                        elif I.op.startswith('v_readfirstlane') or I.op.startswith('v_readlane'): need = 1
                        elif I.op.startswith('v_permlane'): need = 2
                        elif I.kind == 'valu' and I.dpp: need = 2
                        if W.op in TRANS and I.kind in ('valu',) : need = max(need, 1)
                        if W.op in TRANS and I.kind in ('vst','dsw','mfma'): need = max(need, 1)
                    else:
                        if I.kind in ('vld', 'vst', 'dma'): need = 5
                        elif I.kind == 'valu': need = 4 if I.op.startswith('v_readlane') else 2
                elif W.kind == 'salu' and r == ('s', 124) and I.kind == 'dma': need = 1
                if d < need: P(f"RAW {r} dist {d} < {need} after '{W.text.strip()}'")
            for r in I.D:
                d, W = dist(r)
                if W is not None and W.kind == 'mfma' and I.kind != 'mfma':
                    need = {4: 8, 8: 12}[W.passes]
                    if d < need: P(f"WAW {r} dist {d} < {need} after '{W.text.strip()}'")
                if W is not None and W.kind == 'mfma' and I.kind == 'mfma' and I.C != W.D:
                    need = {4: 6, 8: 10}[W.passes]
                    if d < 2: P(f"mfma WAW {r} dist {d}")
                if I.kind == 'valu' and r in mfma_c_read:
                    pp, ps = mfma_c_read[r]
                    need = {4: 3, 8: 7}[ps]
                    if pos - pp - 1 < need: P(f"WAR on SrcC {r}")
                if r in st_data and pos - st_data[r] - 1 < 2: P(f"WAR on store data {r}")
            if I.kind == 'mfma':
                for r in I.C: mfma_c_read[r] = (pos, I.passes)
            if I.kind == 'vst' and len(I.data) >= 3:
                for r in I.data: st_data[r] = pos
            if I.kind in ('vld', 'vst', 'dma'):
                vm.append((set(I.D), I.text, I.kind))
                if len(vm) > 63: P("vmcnt overflow (>63 outstanding)")
            elif I.kind in ('dsr', 'dsw', 'smem'):
                lg.append((set(I.D), I.text, I.kind))
                if len(lg) > 15 : P("lgkmcnt > 15 outstanding (counted waits unreliable)")
            if I.kind not in ('vld', 'dsr', 'smem'):
                for r in I.D: lastw[r] = (pos, I)
            else:
                for r in I.D: lastw.pop(r, None)
            pos += 1
    if verbose:
        seen = set()
        for p in probs:
            if p not in seen and len(seen) < 12:
                print("HAZARD", p); seen.add(p)
    return len(probs)

def kernel_text(name, body, nvgpr, accum, nsgpr=102):
    t = [f".text\n.globl {name}\n.p2align 8\n.type {name},@function\n{name}:"]
    for l in body:
        for s in l.split('\n'):
            t.append(s if s.endswith(':') else "    " + s)
    t.append('.section .rodata,"a"\n.p2align 6')
    t.append(f".amdhsa_kernel {name}")
    t.append(f"  .amdhsa_next_free_vgpr {nvgpr}\n  .amdhsa_next_free_sgpr {nsgpr}\n  .amdhsa_accum_offset {accum}")
    t.append("  .amdhsa_group_segment_fixed_size 0\n  .amdhsa_kernarg_size 120\n  .amdhsa_user_sgpr_count 2")
    t.append("  .amdhsa_user_sgpr_kernarg_segment_ptr 1\n  .amdhsa_system_sgpr_workgroup_id_x 1")
    t.append("  .amdhsa_float_denorm_mode_32 3\n  .amdhsa_float_denorm_mode_16_64 3")
    t.append(".end_amdhsa_kernel")
    return "\n".join(t) + "\n"

def srd(d, ptr, nbytes, off_s=None):
    L = []
    if off_s is None:
        L += [f"s_mov_b32 s{d}, s{ptr}", f"s_mov_b32 s{d+1}, s{ptr+1}"]
    else:
        L += [f"s_add_u32 s{d}, s{ptr}, {off_s}", f"s_addc_u32 s{d+1}, s{ptr+1}, 0"]
    L += [f"s_mov_b32 s{d+2}, {nbytes}", f"s_mov_b32 s{d+3}, 0x20000"]
    return L

def cls_of(ins):
    op = ins.split('\n')[-1].split()[0]
    if op in ('WAITVM', 'WAITLG'): return 'S'
    if op == 's_barrier': return 'B'
    if op.startswith('s_cbranch') or op == 's_branch': return 'J'
    if op.startswith('s_'): return 'S'
    if op.startswith('ds_'): return 'L'
    if op.startswith('buffer_') or op.startswith('global_'): return 'D'
    if op in TRANS: return 'T'
    if op.startswith('v_mfma'): return 'M'
    if op.endswith(':'): return 'N'
    return 'V'

class Packer:
    ORD = {'S': 0, 'L': 1, 'V': 2, 'T': 2, 'D': 1, 'B': 1, 'J': 1, 'N': 3}
    def __init__(s, mf):
        s.mf = list(mf); n = len(mf)
        s.g = [[] for _ in range(n)]; s.ns = [0]*n; s.nv = [0]*n; s.excl = [False]*n
    def fits(s, g, c):
        if s.excl[g]: return c == 'N'
        if c == 'S': return s.ns[g] == 0 or (s.ns[g] + s.nv[g] < 3 and s.nv[g] == 0)
        if c in 'DBJ': return s.ns[g] == 0 and s.nv[g] == 0
        if c == 'N': return True
        w = 2 if c == 'T' else 1
        return s.nv[g] + w + max(0, s.ns[g] - 1) <= 2
    def stream(s, items, start=0, step=0, limit=None, dstep=0):
        prev, pc = start, None
        nd = 0
        for n_, it in enumerate(items):
            ins, d = (it, step) if isinstance(it, str) else it
            c = cls_of(ins)
            g = prev + (d if pc is not None else 0)
            if pc is not None and g == prev and (s.ORD[c] < s.ORD[pc] or pc in 'DBJ') and c != 'N': g += 1
            if c == 'D': g = max(g, int(start + nd * dstep)); nd += 1
            while True:
                assert g < len(s.mf), f"packer overflow: {ins}"
                if s.fits(g, c): break
                g += 1
            if limit is not None: assert g <= limit, f"{ins} placed at {g} > {limit}"
            s.g[g].append((s.ORD[c], len(s.g[g]), ins))
            if c == 'S': s.ns[g] += 1
            elif c in 'DBJ': s.excl[g] = True
            elif c != 'N': s.nv[g] += 2 if c == 'T' else 1
            prev, pc = g, c
        return prev
    def emit(s):
        out = []
        for m, g in zip(s.mf, s.g):
            out.append(m)
            out += [x[2] for x in sorted(g)]
        return out

def resolve_waits(lines):
    out = []; vt = []; lt = []
    def cnt(tags, want, ln):
        idx = [i for i, t in enumerate(tags) if t in want]
        assert idx, ln
        return len(tags) - 1 - max(idx)
    for ln in lines:
        if ln.startswith("WAITVM") or ln.startswith("WAITLG"):
            p = ln.split(); w = []
            if p[0] == "WAITVM":
                w.append(f"vmcnt({cnt(vt, p[1].split(','), ln)})")
                if len(p) > 3 and p[2] == 'LG': w.append(f"lgkmcnt({min(15, cnt(lt, p[3].split(','), ln))})")
                elif len(p) > 2: w += p[2:]
            else:
                w.append(f"lgkmcnt({min(15, cnt(lt, p[1].split(','), ln))})")
            out.append("s_waitcnt " + " ".join(w))
        else:
            m = re.search(r';\s*tag=(\w+)', ln); tg = m.group(1) if m else None
            if ln.startswith("buffer_") or ln.startswith("global_"): vt.append(tg)
            elif ln.startswith("ds_"): lt.append(tg)
            out.append(ln.split(';')[0].rstrip() if m else ln)
    return out
```

```python
from common import *

V_LANE, V_L16, V_WV, V_KVD, V_KA, V_VA, V_Y, V_NEG = 1, 2, 3, 4, 5, 6, 7, 12
V_TR = 8
V_T = 13
ONES = 24
S0, S1, CI, LS = 32, 64, 96, 112
VF = 128
QACC = 128
A_O, A_Q, A_K = 0, 128, 192
S_W = 3; S_HEAD = 26; S_I = 27; S_2D = 30; S_Q = 31; S_KOFF = 32; S_VOFF = 33; S_KM0 = 34; S_VM0 = 35
S_KCNT = 36; S_2DM1 = 37; S_2DM4 = 42; S_RETRY = 38; S_W2K = 39; S_LIM = 43; S_YA = 60; S_YB = 61
SRD_W, SRD_H, SRD_K, SRD_V, SRD_O = 8, 12, 16, 20, 64
LTHRESH = 2.0**64
KBASE, KXOR, VBASE, VXOR = 0x18000, 0x38000, 0x8000, 0x18000
SC = ' sc1' if os.environ.get('KVSC', '1') == '1' else ''

def Sb(p, pair, half): return (S0 if p == 0 else S1) + pair*8 + half*4
def Of(d, q): return ar(A_O + (d*4+q)*4, 4)
def Qf(q, ds): return ar(A_Q + (q*4+ds)*4, 4)
def Kf(j): return ar(A_K + j*4, 4)
def Vf(j): return vr(VF + j*4, 4)
def rdK(p, j): return f"ds_read_b128 {Kf(j)}, v{V_KA} offset:{p*16384 + j*1024}"
def rdV(p, j): return f"ds_read_b128 {Vf(j)}, v{V_VA} offset:{p*16384 + j*1024}"

_lab = [0]
V_KVD2 = 28
def ld(which, half, o):
    srd_, off = (SRD_K, S_KOFF) if which == 'K' else (SRD_V, S_VOFF)
    return f"buffer_load_dwordx4 v{V_KVD2 if half else V_KVD}, s[{srd_}:{srd_+3}], s{off} offen offset:{o}{SC} lds ; tag={which}"
def setm0(which, par, half):
    return f"s_add_u32 m0, s{S_KM0 if which == 'K' else S_VM0}, {par*16384 + half*8192}"
def adv(which, n):
    off = S_KOFF if which == 'K' else S_VOFF
    return f"s_add_u32 s{off}, s{off}, {n}"
def togm0(which):
    r = S_KM0 if which == 'K' else S_VM0
    return f"s_xor_b32 s{r}, s{r}, {hex(KXOR if which == 'K' else VXOR)}"
def kv_simple(which, idx):
    G = [[setm0(which, idx & 1, 0), ld(which, 0, 0)], [ld(which, 0, 1024), adv(which, 8192)]]
    if idx & 1: G[-1].append(togm0(which))
    return G

def flat(G):
    L = []
    for g in G:
        if g[0].startswith("s_") and "m0," in g[0]: L += [g[0], "s_nop 0"] + g[1:]
        else: L += g
    return L

def sm_half(p, half):
    E, C = [], []
    for pair in range(4):
        n = Sb(p, pair, 0); b = n + 4*half
        for r in range(4): E.append(f"v_exp_f32 v{b+r}, v{b+r}")
        C.append(f"v_cvt_pk_bf16_f32 v{n+2*half}, v{b}, v{b+1}")
        C.append(f"v_cvt_pk_bf16_f32 v{n+2*half+1}, v{b+2}, v{b+3}")
    return E, C

def pack(mf, toks, E, C, Rd, D, scal, misc, need):
    assert len(toks) == len(mf), (len(toks), len(mf))
    E, C, Rd, D, J = list(E), list(C), list(Rd), list(D), list(misc.get('J', []))
    issued = [f"P{j}" for j in range(8)]
    ne = nc = 0
    out = []
    for g, (m, tk) in enumerate(zip(mf, toks)):
        out.append(m)
        sc = scal.get(g)
        if sc is not None:
            assert tk not in ('D', 'B', 'J'), (g, tk)
            if sc.startswith("WAITLG"):
                _, name, *ex = sc.split()
                n = len(issued) - 1 - issued.index(name)
                sc = ("s_waitcnt " + " ".join(ex) + f" lgkmcnt({n})").replace("  ", " ")
            out.append(sc)
        for ch in tk:
            if ch == 'E': out.append(E.pop(0)); ne += 1
            elif ch == 'c':
                assert ne >= 2*nc + 2, (g, ne, nc); out.append(C.pop(0)); nc += 1
            elif ch == 'r':
                nm, ins = Rd.pop(0); issued.append(nm); out.append(ins)
            elif ch == 't':
                if misc.get('t'): out.append(misc['t'])
            elif ch == 'D': out.append(D.pop(0))
            elif ch == 'B': out.append("s_barrier")
            elif ch == 'J': out += J.pop(0)
    assert not (E or C or Rd or D or J), (E, C, Rd, D, J)
    drop = os.environ.get("DROP", "")
    pref = {'B': "s_barrier", 'W': "s_waitcnt", 'D': "buffer_load", 'E': "v_exp", 'C': "v_cvt", 'R': "ds_read", 'x': "nothing"}
    for k in drop: out = [x for x in out if not x.startswith(pref[k])]
    return out

def qk_mfmas(T, p):
    mf = []
    if T == 'd':
        for kv in range(2):
            for q in range(4):
                for ds in range(4):
                    d = vr(Sb(p, q, kv), 4)
                    mf.append(mfma16(d, Kf(kv*4+ds), Qf(q, ds), vr(CI+4*q, 4) if ds == 0 else None))
    else:
        for kv in range(4):
            for q in range(2):
                for ds in range(4):
                    d = vr(Sb(p, (kv >> 1)*2 + q, kv & 1), 4)
                    mf.append(mfma16(d, Kf(kv*4+ds), Qf(2+q, ds), vr(CI+4*(2+q), 4) if ds == 0 else None))
    return mf

def qk_block(T, p, endbr):
    E, C = sm_half(1-p, 1)
    pre = [(f"N{j}", rdV(1-p, j)) for j in range(8)]
    D = [ld('K', 0, 0), ld('K', 0, 1024)]
    inc = f"s_add_u32 s{S_Q}, s{S_Q}, 1"
    if T == 'd':
        toks = "E D E c E D E c E . E c E B E rc E rr E rc E rr E rc E E rc E E c . J".split()
        scal = {0: setm0('K', 1-p, 0), 2: inc, 4: "WAITLG P7", 12: "s_waitcnt vmcnt(8)", 28: endbr[0], 30: "WAITLG N4"}
        Rd = pre
    else:
        toks = "E rr E rr E rr E rr E D E cc E D E B E rr E rc E rc E rr E rc E rc E E cc J".split()
        scal = {2: inc, 6: "WAITLG P7", 8: setm0('K', 1-p, 0), 14: "WAITLG O7 vmcnt(14)", 29: endbr[0], 30: "WAITLG N3"}
        Rd = [(f"O{j}", rdK(p, 8+j)) for j in range(8)] + pre
    return pack(qk_mfmas(T, p), toks, E, C, Rd, D, scal, {'J': [[endbr[1]]]}, {})

def pv_block(T, p, endbr):
    mf = []
    P = lambda pair: vr(Sb(p, pair, 0), 4)
    if T == 'd':
        for d in range(8):
            for q in range(4): mf.append(mfma16(Of(d, q), Vf(d), P(q)))
            if d & 1: mf.append(mfma16(vr(LS + 4*(d >> 1), 4), vr(ONES, 4), P(d >> 1)))
    else:
        for j in range(16):
            ks, d = j >> 3, j & 7
            for q in range(2): mf.append(mfma16(Of(d, 2+q), Vf(j), P(ks*2+q)))
            if (j & 3) == 3:
                pr = j >> 2
                mf.append(mfma16(vr(LS + 4*(2 + (pr & 1)), 4), vr(ONES, 4), P(pr)))
    E, C = sm_half(1-p, 0)
    pre = [(f"N{j}", rdK(p, j)) for j in range(8)]
    tg = f"v_xor_b32 v{V_KA}, {hex(KXOR)}, v{V_KA}" if p == 0 else f"v_xor_b32 v{V_VA}, {hex(VXOR)}, v{V_VA}"
    tm = togm0('K') if p == 1 else togm0('V')
    extra = None
    if T == 'd':
        lab = f"K2_X{p}"
        toks = "E . E ct E J E rc E D E rc E D E rc E r E rc E r E rc E . E rc E . E c . . . J".split()
        scal = {1: f"s_add_u32 s28, s{S_Q}, 3", 2: "WAITLG P7", 4: f"s_cmp_ge_u32 s28, s{S_2D}", 8: setm0('V', 1-p, 0),
                14: adv('V', 8192), 16: adv('K', 8192), 18: tm, 33: endbr[0], 34: "WAITLG N4"}
        D = [ld('V', 0, 0), ld('V', 0, 1024)]
        J = [[f"s_cbranch_scc1 {lab}", f"{lab}r:"], [endbr[1]]]
        Rd = pre
        extra = [f"{lab}:", setm0('K', p, 1), "s_nop 0", ld('K', 1, 0), ld('K', 1, 1024), adv('K', 8192),
                 f"s_cmp_eq_u32 s28, s{S_2D}", f"s_cbranch_scc1 {lab}r",
                 setm0('V', 1-p, 1), "s_nop 0", ld('V', 1, 0), ld('V', 1, 1024), f"s_mov_b32 s29, 8192", f"s_branch {lab}r"]
        scal[14] = f"s_add_u32 s{S_VOFF}, s{S_VOFF}, s29"
        scal[20] = adv('V', 8192)
        scal[0] = "s_mov_b32 s29, 0"
    else:
        toks = "E rr E rr E D rr E rr E D ct E D E rc E D rc E rc E D rc E rr E D E rc E rc E E c J".split()
        scal = {2: "WAITLG P7", 4: setm0('K', p, 1), 11: adv('K', 16384), 12: setm0('V', 1-p, 0), 16: "WAITLG O7", 21: setm0('V', 1-p, 1),
                28: adv('V', 16384), 30: tm, 33: endbr[0], 34: "WAITLG N3"}
        D = [ld('K', 1, 0), ld('K', 1, 1024), ld('V', 0, 0), ld('V', 0, 1024), ld('V', 1, 0), ld('V', 1, 1024)]
        J = [[endbr[1]]]
        Rd = [(f"O{j}", rdV(p, 8+j)) for j in range(8)] + pre
    return pack(mf, toks, E, C, Rd, D, scal, {'t': tg, 'J': J}, {}), extra

def mask_ops(blocks, vy):
    L = []
    for reg, cst in blocks:
        for r in range(4): L.append(f"v_cmp_gt_i32 s[{44+2*r}:{45+2*r}], {cst+r}, v{vy}")
        for r in range(4): L.append(f"v_cndmask_b32 v{reg+r}, v{reg+r}, v{V_NEG}, s[{44+2*r}:{45+2*r}]")
    return L

def mask_block(T, p):
    L = []
    if T == 'd':
        L += [f"s_lshl_b32 s28, s{S_Q}, 5", f"s_sub_u32 s28, s{S_YA}, s28"]
        blocks = [(Sb(p, q, kv), 16*kv - 16*q) for kv in range(2) for q in range(2)]
    else:
        L += [f"s_lshl_b32 s28, s{S_Q}, 6", f"s_sub_u32 s28, s{S_YB}, s28"]
        blocks = [(Sb(p, (kv >> 1)*2+q, kv & 1), 16*kv - 16*q) for kv in range(4) for q in range(2)]
    L += [f"v_add_u32 v{V_T}, s28, v{V_Y}", "s_nop 4"]
    L += mask_ops(blocks, V_T)
    return L

def xmax(reg, tmp):
    return [f"v_mov_b32 v{tmp}, v{reg}", "s_nop 1", f"v_permlane32_swap_b32 v{reg}, v{tmp}", f"v_max_f32 v{reg}, v{reg}, v{tmp}",
            f"v_mov_b32 v{tmp}, v{reg}", "s_nop 1", f"v_permlane16_swap_b32 v{reg}, v{tmp}", f"v_max_f32 v{reg}, v{reg}, v{tmp}"]

def kv_init_state():
    return [f"s_mov_b32 s{S_KOFF}, 0", f"s_mov_b32 s{S_VOFF}, 0", f"s_add_u32 s{S_KM0}, s{S_W2K}, {hex(KBASE)}", f"s_add_u32 s{S_VM0}, s{S_W2K}, {hex(VBASE)}",
            f"s_mov_b32 s{S_Q}, -1", f"s_mov_b32 s{S_LIM}, 0",
            f"v_add_u32 v{V_KA}, {hex(KBASE)}, v{V_L16}", f"v_add_u32 v{V_VA}, {hex(VBASE)}, v{V_L16}"]

def attn_part(pre, tail_issue, tail_finish, kidx, nst):
    L = []; A = L.append
    B = {}; X = {}
    c_single = f"s_cmp_ge_u32 s{S_Q}, s{S_2DM1}"
    c_md = f"s_cmp_ge_u32 s{S_Q}, s{S_2DM4}"
    c_ms = f"s_cmp_ge_u32 s{S_Q}, 32"
    B['PVd1'], X[1] = pv_block('d', 1, (c_single, "s_cbranch_scc1 K2_QKs1"))
    B['QKd1'] = qk_block('d', 1, (c_md, "s_cbranch_scc1 K2_Md1"))
    B['PVd0'], X[0] = pv_block('d', 0, (c_single, "s_cbranch_scc1 K2_QKs0"))
    B['QKd0'] = qk_block('d', 0, (f"s_cmp_lt_u32 s{S_Q}, s{S_LIM}", "s_cbranch_scc1 K2_PVd1"))
    B['PVs1'], _ = pv_block('s', 1, (f"s_cmp_ge_u32 s{S_Q}, 34", "s_cbranch_scc1 K2_done"))
    B['QKs1'] = qk_block('s', 1, (c_ms, "s_cbranch_scc1 K2_Ms1"))
    B['PVs0'], _ = pv_block('s', 0, (f"s_cmp_ge_u32 s{S_Q}, 33", "s_cbranch_scc1 K2_tail"))
    B['QKs0'] = qk_block('s', 0, (f"s_cmp_lt_u32 s{S_Q}, s{S_LIM}", "s_cbranch_scc1 K2_PVs1"))
    for T in 'ds':
        for p in range(2): B['M'+T+str(p)] = mask_block(T, p)
    A(".p2align 6")
    for n in ('PVd1', 'QKd1', 'PVd0', 'QKd0'):
        A(f"K2_{n}:"); L += B[n]
    A(c_md); A("s_cbranch_scc1 K2_Md0")
    A("K2_QKd0r:"); A(f"s_cmp_lg_u32 s{S_Q}, 0"); A("s_cbranch_scc1 K2_PVd1")
    first = []
    first += [f"s_cmp_lg_u32 s{S_RETRY}, 0", "s_cbranch_scc1 K2_nomax", "s_nop 4"]
    for q in range(4):
        n = Sb(0, q, 0); m = V_T + q
        first += [f"v_max3_f32 v{m}, v{n}, v{n+1}, v{n+2}", f"v_max3_f32 v{m}, v{m}, v{n+3}, v{n+4}", f"v_max3_f32 v{m}, v{m}, v{n+5}, v{n+6}", f"v_max_f32 v{m}, v{m}, v{n+7}"]
    for q in range(4): first += xmax(V_T+q, V_T+4)
    for q in range(4):
        n = Sb(0, q, 0); m = V_T + q
        for r in range(4): first.append(f"v_sub_f32 v{CI+4*q+r}, 0, v{m}")
        for r in range(8): first.append(f"v_sub_f32 v{n+r}, v{n+r}, v{m}")
    first += ["K2_nomax:", "s_nop 4"]
    first += [rdK(1, j) for j in range(8)]
    first += flat(kv_simple('V', 2)) + [adv('K', 8192), togm0('K'), f"s_mov_b32 s{S_LIM}, s{S_2DM4}"]
    E, C = sm_half(0, 0)
    first += E + C + ["s_waitcnt lgkmcnt(0)", "s_branch K2_QKd1"]
    L += first
    A("K2_Md1:"); L += B['Md1']; A("s_branch K2_PVd0")
    A("K2_Md0:"); L += B['Md0']; A("s_branch K2_QKd0r")
    A("K2_Ms1:"); L += B['Ms1']; A("s_branch K2_PVs0")
    A("K2_Ms0:"); L += B['Ms0']; A("s_branch K2_QKs0r")
    L += X[0] + X[1]
    A(".p2align 6")
    for n in ('PVs1', 'QKs1', 'PVs0', 'QKs0'):
        A(f"K2_{n}:"); L += B[n]
    A(f"s_mov_b32 s{S_LIM}, 32"); A(c_ms); A("s_cbranch_scc1 K2_Ms0")
    A("K2_QKs0r:"); A(f"s_cmp_lg_u32 s{S_Q}, s{S_2D}"); A("s_cbranch_scc1 K2_PVs1"); A("s_branch K2_PVd1")
    E, C = sm_half(1, 1)
    tail = [f"s_add_u32 s{S_Q}, s{S_Q}, 1", "s_waitcnt vmcnt(0)", "s_barrier"] + [rdV(1, j) for j in range(8)] + E + C + ["s_waitcnt lgkmcnt(0)", "s_branch K2_PVs1"]
    A("K2_tail:"); L += tail
    fin = []
    fin += stamp(nst-2)
    fin += ["s_nop 7",
            f"v_add_f32 v{V_T+1}, v{LS}, v{LS+4}", f"v_add_f32 v{V_T+1}, v{V_T+1}, v{LS+8}", f"v_add_f32 v{V_T+1}, v{V_T+1}, v{LS+12}",
            f"v_mov_b32 v{V_T+2}, {fhex(float(os.environ.get('LTH', LTHRESH)))}",
            f"v_cmp_nle_f32 vcc, v{V_T+1}, v{V_T+2}", "s_nop 1",
            "s_cmp_lg_u64 vcc, 0", "s_cselect_b32 s28, 1, 0",
            f"v_mov_b32 v{V_T}, s28", f"s_lshl_b32 s29, s{S_W}, 2", f"s_add_u32 s29, s29, {hex(KBASE)}", f"v_mov_b32 v{V_T+1}, s29",
            f"ds_write_b32 v{V_T+1}, v{V_T}", f"v_mov_b32 v{V_T+1}, {hex(KBASE)}",
            "s_waitcnt vmcnt(0) lgkmcnt(0)", "s_barrier",
            f"ds_read_b128 v[{16}:{19}], v{V_T+1}"]
    for q in range(4): fin.append(f"v_rcp_f32 v{LS+4*q}, v{LS+4*q}")
    fin += ["s_waitcnt lgkmcnt(0)", "v_or3_b32 v16, v16, v17, v18", "v_or_b32 v16, v16, v19", "s_nop 0", "v_readfirstlane_b32 s28, v16",
            f"s_andn2_b32 s28, s28, s{S_RETRY}", "s_cmp_lg_u32 s28, 0" if not os.environ.get("DROP") else "s_cmp_eq_u32 s28, 77", "s_cbranch_scc1 K2_slow"]
    fin += tail_issue
    i = 0
    for q in range(4):
        fin.append(f"s_lshl_b32 s28, s{56+q}, 17")
        for t in range(4):
            b = 32 + 12*(i & 1); i += 1
            for hf in range(2):
                for r in range(4): fin.append(f"v_accvgpr_read_b32 v{b+4*hf+r}, a{A_O+((2*t+hf)*4+q)*4+r}")
            for r in range(8): fin.append(f"v_mul_f32 v{b+r}, v{b+r}, v{LS+4*q}")
            for r in range(4): fin.append(f"v_cvt_pk_bf16_f32 v{b+8+r}, v{b+2*r}, v{b+2*r+1}")
            fin.append(f"buffer_store_dwordx4 v[{b+8}:{b+11}], v{V_L16}, s[{SRD_O}:{SRD_O+3}], s28 offen offset:{t*1024}")
    fin += tail_finish
    fin += ["s_waitcnt vmcnt(0)"] + stamp_out(kidx, nst) + ["s_endpgm"]
    A("K2_done:"); L += fin
    sl = ["K2_slow:", f"s_mov_b32 s{S_RETRY}, 1", "s_barrier"]
    for q in range(4): sl.append(f"v_mov_b32 v{LS+q}, v{V_NEG}")
    sl += [f"v_add_u32 v{V_KA}, {hex(KBASE)}, v{V_L16}", f"s_mov_b32 s{S_KOFF}, 0", f"s_mov_b32 s{S_Q}, 0", f"s_lshr_b32 s{S_KCNT}, s{SRD_K+2}, 13",
           f"s_lshl_b32 s62, s58, 4",
           "K2_slowloop:", f"s_add_u32 m0, s{S_W2K}, {hex(KBASE)}", "s_nop 0",
           f"buffer_load_dwordx4 v{V_KVD}, s[{SRD_K}:{SRD_K+3}], s{S_KOFF} offen{SC} lds",
           f"buffer_load_dwordx4 v{V_KVD}, s[{SRD_K}:{SRD_K+3}], s{S_KOFF} offen offset:1024{SC} lds",
           f"s_add_u32 s{S_KOFF}, s{S_KOFF}, 8192", "s_waitcnt vmcnt(0)", "s_barrier"]
    sl += [rdK(0, j) for j in range(8)] + ["s_waitcnt lgkmcnt(0)", "s_barrier"]
    for kv in range(2):
        for q in range(4):
            for ds in range(4):
                sl.append(mfma16(vr(Sb(0, q, kv), 4), Kf(kv*4+ds), Qf(q, ds), "0" if ds == 0 else None))
    sl += [f"s_lshl_b32 s28, s{S_Q}, 5", f"s_sub_u32 s29, s{S_YA}, s28", f"v_add_u32 v{V_T}, s29, v{V_Y}",
           f"s_sub_u32 s29, s62, s28", f"v_add_u32 v{V_T+1}, s29, v{V_Y}", "s_nop 7"]
    sl += mask_ops([(Sb(0, q, kv), 16*kv - 16*q) for kv in range(2) for q in range(2)], V_T)
    sl += mask_ops([(Sb(0, 2+q, kv), 16*kv - 16*q) for kv in range(2) for q in range(2)], V_T+1)
    for q in range(4):
        n = Sb(0, q, 0)
        for r in range(4): sl.append(f"v_max3_f32 v{LS+q}, v{LS+q}, v{n+2*r}, v{n+2*r+1}")
    sl += [f"s_add_u32 s{S_Q}, s{S_Q}, 1", f"s_cmp_lt_u32 s{S_Q}, s{S_KCNT}", "s_cbranch_scc1 K2_slowloop"]
    for q in range(4): sl += xmax(LS+q, V_T+4)
    for q in range(4):
        for r in range(4): sl.append(f"v_sub_f32 v{CI+4*q+r}, 0, v{LS+q}")
    for r in range(16): sl.append(f"v_mov_b32 v{LS+r}, 0")
    for r in range(128): sl.append(f"v_accvgpr_write_b32 a{r}, 0")
    sl += kv_init_state()
    for wch, idx in (('K', 0), ('K', 1), ('V', 0), ('K', 2), ('V', 1)): sl += flat(kv_simple(wch, idx))
    sl += ["s_waitcnt vmcnt(8)", "s_barrier"] + [rdK(0, j) for j in range(8)] + ["s_waitcnt lgkmcnt(0)", "s_branch K2_QKd0"]
    L += sl
    for i in (0, 3, 7):
        D2 = 4*i + 4
        tr = list(pre)
        def qk(h):
            T = 'd' if h < D2 else 's'
            t = list(B['QK'+T+str(h & 1)])
            if (T == 'd' and h + 4 >= D2) or (T == 's' and h >= 32): t = t + B['M'+T+str(h & 1)]
            return t
        def pv(h):
            t = list(B["PV"+("d" if h < D2 else "s")+str(h & 1)])
            if h < D2 and h + 4 >= D2:
                k = t.index(f"K2_X{h&1}r:")
                x = X[h & 1] if h + 3 >= D2 else X[h & 1][:8]
                t = t[:k] + x + t[k:]
            return t
        tr += qk(0) + first + qk(1)
        for h in range(0, 32): tr += pv(h) + qk(h+2)
        tr += pv(32) + tail + pv(33) + fin + sl
        check_trace(tr, f"k2 i={i}")
    return L
```

```python
from asmlib import *
import math

NAME = "adaLN_cond__compressed_kv_cla__glu_gated_geglu__prompt"
KA = dict(x=0, ckv=8, wq=16, wuk=24, wuv=32, wo=40, bx=48, wg=56, wu=64, wd=72, c=80, wmod=88, out=96, dbg=104, ws=112)
WS_MOD  = 0x0
WS_VEC  = 0x8000
WS_CNT  = 0x4000
WS_STAT = 0x10000
WS_H    = 0x100000
WS_X1P  = 0x400000
WS_X1   = 0x700000
WS_HH   = 0xA00000
WS_WO   = 0x1200000
WS_WD   = 0x1800000
WS_K    = 0x2000000
WS_V    = 0x3000000
WS_CTX  = 0x4000000
WS_SIZE = 0x10000000
QSCALE = math.log2(math.e) / math.sqrt(128.0)

import struct
def f2u(x): return struct.unpack('<I', struct.pack('<f', x))[0]
def fhex(x): return f"0x{f2u(x):08x}"

def ldptr(dst, name): return f"s_load_dwordx2 s[{dst}:{dst+1}], s[0:1], {KA[name]}"

def wave_id(sdst, vtmp):
    return [f"v_lshrrev_b32 v{vtmp}, 6, v0", "s_nop 0", f"v_readfirstlane_b32 s{sdst}, v{vtmp}"]

def tr_addr(vbase, vlane, t0, t1, base_expr_s=None):
    L = []
    L += [f"v_lshrrev_b32 v{t0}, 2, v{vlane}",
          f"v_lshrrev_b32 v{t1}, 3, v{vlane}",
          f"v_and_b32 v{t1}, 3, v{t1}",
          f"v_lshlrev_b32 v{t1}, 5, v{t1}",
          f"v_lshlrev_b32 v{t0}, 7, v{t0}",
          f"v_add_u32 v{t0}, v{t0}, v{t1}",
          f"v_and_b32 v{t1}, 3, v{vlane}",
          f"v_lshlrev_b32 v{t1}, 3, v{t1}",
          f"v_add_u32 v{t0}, v{t0}, v{t1}"]
    if base_expr_s is not None:
        L += [f"v_add_u32 v{t0}, {base_expr_s}, v{t0}"]
    for b in range(4):
        L += [f"v_xor_b32 v{vbase+b}, {b*32}, v{t0}"]
    return L

def wdma_voff(vdst, vlane, t0, t1, rowstride_s, nat):
    L = [f"v_lshrrev_b32 v{t0}, 3, v{vlane}"]
    if nat:
        L += [f"v_and_b32 v{t1}, 4, v{t0}", f"v_add_u32 v{t0}, v{t0}, v{t1}"]
    L += [f"v_mul_lo_u32 v{vdst}, v{t0}, {rowstride_s}",
          f"v_lshrrev_b32 v{t0}, 3, v{vlane}",
          f"v_and_b32 v{t0}, 6, v{t0}",
          f"v_and_b32 v{t1}, 7, v{vlane}",
          f"v_xor_b32 v{t0}, v{t0}, v{t1}",
          f"v_lshlrev_b32 v{t0}, 4, v{t0}",
          f"v_add_u32 v{vdst}, v{vdst}, v{t0}"]
    return L
NATROW = [0, 16, 4, 20]

WS_STAMP = 0x8000000
import os
STAMPS = int(os.environ.get("STAMPS", "0"))
def stamp(idx):
    if not STAMPS: return []
    return [f"{'s_memrealtime' if STAMPS == 1 else 's_memtime'} s[100:101]", "s_waitcnt lgkmcnt(0)", f"s_mov_b32 s{88+idx}, s100"]
def stamp_out(kidx, n):
    if not STAMPS: return []
    L = stamp(n-1) + ["s_load_dwordx2 s[72:73], s[0:1], 112", "s_waitcnt lgkmcnt(0)"]
    L += srd(76, 72, 0x100000, hex(WS_STAMP + kidx*0x10000))
    L += ["s_mov_b64 exec, -1", "v_mbcnt_lo_u32_b32 v0, -1, 0", "v_mbcnt_hi_u32_b32 v0, -1, v0", "v_cmp_eq_u32 vcc, 0, v0", "s_and_b64 exec, exec, vcc",
          "s_lshl_b32 s74, s2, 8", "s_lshl_b32 s75, s3, 6", "s_add_u32 s74, s74, s75", "v_mov_b32 v1, s74"]
    for i in range(n):
        L += [f"v_mov_b32 v2, s{88+i}", f"buffer_store_dword v2, v1, s[76:79], 0 offen offset:{4*i}"]
    L += ["s_waitcnt vmcnt(0)"]
    return L
def stamp_init():
    if not STAMPS: return []
    return stamp(0)
```

```python
from common import *
from attn import *
import k0

V_CA0, V_CA1, V_CV0, V_CV1 = 5, 6, 7, 12
V_TR2 = 24; V_WV0 = 28; V_SIG = 29; V_ONE = 30; V_POLL = 31; V_HST = 0; V_MODA = 23
SRD_C = 12; SRD_WQ = 68; SRD_WS = 72; SRD_DBG = 76
A_C = 128; A_W = 192; A_N = 224; A_CS = 32; A_DUM = 249
S_M0W = 40; S_M0C = 41; S_XF = 63; S_WOFF = 43
CBASE = [0x20000, 0x18000]
HUGE = 0x7ffffff0

def acc_idx(n, kv):
    if n < 8: return 2*((n >> 1)*4 + kv) + (n & 1)
    return 2*(16 + (n - 8)*2 + (kv >> 1)) + (kv & 1)
def accr(a): return vr(32 + 4*a, 4) if a < 56 else ar(4*(a-56), 4)
def cf(c, kv, k): return ar(A_C + (c & 1)*32 + (kv*2+k)*4, 4)
def wf(n, k): return ar(A_W + ((n & 3)*2+k)*4, 4)
def hf(c, q, k): return ar((((c+1) & 3)*8 + q*2 + k)*4, 4)
def qacc(d, q): return vr(QACC + (d*4+q)*4, 4)

def rd_w(sc, grp, n, tag):
    st = sc % 3
    L = []
    for k in range(2):
        base = A_W + ((n & 3)*2+k)*4
        for t in range(2):
            av = (V_TR2 if st == 2 else V_TR) + (n & 3)
            L.append(f"ds_read_b64_tr_b16 {ar(base+2*t,2)}, v{av} offset:{(st&1)*32768 + grp*8192 + k*4096 + t*2048} ; tag={tag}")
    return L
def w_issue(sc):
    L = []
    srd_ = SRD_W if sc < 8 else SRD_WQ
    if sc == 8: L.append(f"v_subrev_u32 v{V_WV}, {8*64*8192}, v{V_WV}")
    for j in range(8):
        if j % 4 == 0: L.append(f"s_add_u32 m0, s{S_M0W}, {(sc % 3)*32768 + (j >> 2)*4096}")
        L.append(f"buffer_load_dwordx4 v{V_WV}, s[{srd_}:{srd_+3}], s{44+j} offen offset:{(j&3)*1024} lds ; tag=W{sc}")
    L.append(f"v_add_u32 v{V_WV}, {(64 if sc < 8 else 128)*8192}, v{V_WV}")
    return L
def c_issue(c):
    L = []
    for j in range(8):
        if j % 4 == 0: L.append(f"s_add_u32 m0, s{S_M0W}, {CBASE[c & 1] + (j >> 2)*4096}")
        L.append(f"buffer_load_dwordx4 v{V_CV1 if j & 1 else V_CV0}, s[{SRD_C}:{SRD_C+3}], s{52+j} offen offset:{(j&3)*1024} lds ; tag=C{c}")
    L += [f"v_add_u32 v{V_CV0}, 128, v{V_CV0}", f"v_add_u32 v{V_CV1}, 128, v{V_CV1}"]
    return L
def rd_c(c):
    return [f"ds_read_b128 {cf(c, kv, k)}, v{V_CA0 + k} offset:{CBASE[c & 1] - 0x18000 + kv*2048} ; tag=RC{c}" for kv in range(4) for k in range(2)]
def h_issue(c):
    L = [f"buffer_load_dwordx4 {hf(c,q,k)}, v{V_L16}, s[{SRD_WS}:{SRD_WS+3}], s{52+q} offen offset:{((2*c+k)&3)*1024} sc1 ; tag=H{c}" for q in range(4) for k in range(2)]
    if c & 1: L += [f"s_add_u32 s{52+q}, s{52+q}, 4096" for q in range(4)]
    return L
def nop_m0(L):
    out = []
    for x in L:
        out.append(x)
        if x.startswith("s_add_u32 m0"): out.append("s_nop 0")
    return out

spins = []
SLEEP = int(os.environ.get('SLEEP', '8'))
def poll_addr(n8):
    if not n8: return [], V_SIG
    return [f"v_lshrrev_b32 v{V_POLL}, 3, v{V_LANE}", f"v_lshl_or_b32 v{V_POLL}, v{V_POLL}, 26, s{S_WOFF}", f"v_lshl_or_b32 v{V_POLL}, v{V_LANE}, 7, v{V_POLL}"], V_POLL
def poll_issue(srd_, soff, tag, n8=False):
    pre, va = poll_addr(n8)
    return pre + [f"buffer_load_dword v{V_POLL}, v{va}, s[{srd_}:{srd_+3}], {soff} offen sc1" + (f" ; tag={tag}" if tag else "")]
def poll_check(name, srd_, soff, target, n8=False, bar=True):
    msk = 0xff if n8 else 1
    spins.append([f"KA_spin_{name}:", f"s_cmp_lg_u32 s{S_W}, 0", f"s_cbranch_scc1 KA_ret_{name}",
                  "s_mov_b32 s29, 0x20000", f"KA_spinl_{name}:", f"s_sleep {SLEEP}"] + poll_issue(srd_, soff, None, n8) +
                 ["s_waitcnt vmcnt(0)", f"v_cmp_gt_u32 vcc, {target}, v{V_POLL}", "s_sub_u32 s29, s29, 1", "s_cmp_eq_u32 s29, 0", f"s_cbranch_scc1 KA_ret_{name}",
                  f"s_and_b32 s28, vcc_lo, {msk}", "s_cmp_lg_u32 s28, 0", f"s_cbranch_scc1 KA_spinl_{name}", f"s_branch KA_ret_{name}"])
    return [f"v_cmp_gt_u32 vcc, {target}, v{V_POLL}", (f"s_and_b32 s28, vcc_lo, {msk}", 1), f"s_cmp_lg_u32 s28, 0\ns_cbranch_scc1 KA_spin_{name}", f"KA_ret_{name}:"] + (["s_barrier"] if bar else [])
def signal(srd_, soff, vaddr=V_SIG, val=V_ONE): return f"buffer_atomic_add v{val}, v{vaddr}, s[{srd_}:{srd_+3}], {soff} offen"

ORDER = int(os.environ.get("ORDER", "1"))
WARM = int(os.environ.get("WARM", "1"))
DST = float(os.environ.get("DST", "6"))
WARMS = {0: [('wuk', 512*8192), ('wuv', 512*8192), ('ckv', 2048*1024), ('code', 0)], 1: [('wq', 640*8192)], 5: [('wo', 4096*1280), ('wd', 1728*1280)], 6: [('wg', 640*3456), ('wu', 640*3456)]}
WARMN = [0]
PM_GAP = int(os.environ.get("PM_GAP", "24"))
WQC = int(os.environ.get("WQC", "4"))
HS_GAP = int(os.environ.get("HS_GAP", "44"))
STPOS = os.environ.get("STPOS", "p,c7,q").split(",")
def pst(name):
    if not STAMPS or name not in STPOS: return []
    return stamp(1 + STPOS.index(name)) + ["s_waitcnt lgkmcnt(0)"]

A_MW = 72; A_S = 244; A_X = 96
MACC = 14
V_MU, V_RS = 30, 4

A_PF = 124; A_MW2 = 224
_dum = [0]
PFS = os.environ.get('PFS', 'mqi')
def dum():
    _dum[0] += 1
    return f"a{A_DUM + _dum[0] % 7}"
def pfw(step, v):
    if step < 4 and 'w' not in PFS: return []
    if step >= 4 and 'q' not in PFS: return []
    if step < 4: return [f"s_mov_b32 s41, {step*128*8192}", f"buffer_load_dword {dum()}, v{v}, s[{SRD_W}:{SRD_W+3}], s41 offen"]
    return [f"s_lshr_b32 s41, s{S_W}, 1", "s_lshl_b32 s41, s41, 19", f"s_add_u32 s41, s41, {(step-4)*256*8192}", f"buffer_load_dword {dum()}, v{v}, s[{SRD_WQ}:{SRD_WQ+3}], s41 offen"]
def pfc(step, v): return [] if 'c' not in PFS else [f"buffer_load_dword {dum()}, v{v}, s[{SRD_C}:{SRD_C+3}], 0 offen offset:{step*256}"]
def pf(step, v):
    if not WARM: return []
    L = [f"v_accvgpr_read_b32 v{v}, a{A_PF}"] + pfw(step, v)
    if step < 4: L += [f"v_accvgpr_read_b32 v{v}, a{A_PF+1}"] + pfc(step, v)
    return L

def prologue():
    L = []; A = L.append
    A("s_cmp_ge_u32 s2, 256"); A("s_cbranch_scc1 KA_end")
    L += stamp_init()
    A("s_load_dwordx4 s[16:19], s[0:1], 0")
    A("s_load_dwordx4 s[20:23], s[0:1], 24")
    A("s_load_dwordx4 s[32:35], s[0:1], 80")
    A("s_load_dwordx4 s[36:39], s[0:1], 104")
    A(ldptr(6, 'wq'))
    if 'i' in PFS:
        A("s_getpc_b64 s[8:9]"); A("s_mov_b32 s10, KA_end-ka_kernel-64"); A("s_mov_b32 s11, 0x20000")
        A("s_lshr_b32 s28, s2, 3"); A("s_lshl_b32 s28, s28, 7"); A("v_lshlrev_b32 v1, 12, v0")
        A(f"buffer_load_dword {dum()}, v1, s[8:11], s28 offen")
    L += wave_id(S_W, 1)
    A(f"v_and_b32 v{V_LANE}, 63, v0")
    A(f"s_and_b32 s{S_HEAD}, s2, 7"); A(f"s_lshl_b32 s{S_HEAD}, s{S_HEAD}, 2"); A("s_bfe_u32 s28, s2, 0x20003"); A(f"s_add_u32 s{S_HEAD}, s{S_HEAD}, s28")
    A(f"s_lshr_b32 s{S_I}, s2, 5")
    A(f"s_lshl_b32 s{S_M0W}, s{S_W}, 13")
    for j in range(8):
        A(f"s_mov_b32 s{44+j}, {(NATROW[j&3] + 32*(j>>2))*8192 - (j&3)*1024}")
        A(f"s_mov_b32 s{52+j}, {j*8192 - (j&3)*1024}")
    A("s_movk_i32 s28, 8192")
    L += wdma_voff(V_WV, V_LANE, 13, 14, "s28", nat=True)
    A(f"v_lshrrev_b32 v13, 3, v{V_LANE}"); A("v_lshrrev_b32 v16, 1, v13"); A(f"v_and_b32 v15, 7, v{V_LANE}")
    A("v_xor_b32 v14, v16, v15"); A("v_lshlrev_b32 v14, 4, v14"); A(f"v_lshl_add_u32 v{V_CV0}, v13, 10, v14")
    A(f"v_xor_b32 v{V_CV1}, 64, v{V_CV0}")
    A(f"s_lshl_b32 s30, s{S_I}, 18"); A(f"s_lshl_b32 s29, s{S_W}, 16"); A("s_add_u32 s30, s30, s29")
    A(f"s_lshl_b32 s28, s{S_HEAD}, 8"); A(f"s_and_b32 s29, s{S_W}, 1"); A("s_lshl_b32 s29, s29, 7"); A("s_add_u32 s28, s28, s29")
    A("v_and_b32 v36, 0xfe, v0")
    A("s_lshr_b32 s31, s2, 3"); A("s_lshl_b32 s31, s31, 1"); A(f"s_and_b32 s41, s{S_W}, 1"); A("s_add_u32 s31, s31, s41"); A("s_lshl_b32 s31, s31, 13")
    A("s_and_b32 s41, s28, 0x3ff"); A("s_sub_u32 s31, s31, s41")
    A("v_lshlrev_b32 v22, 19, v13"); A("v_lshl_add_u32 v22, v15, 7, v22"); A("v_add_u32 v22, s31, v22"); A("v_lshl_or_b32 v22, v16, 26, v22")
    A(f"v_lshrrev_b32 v23, 1, v{V_LANE}"); A(f"s_and_b32 s31, s{S_HEAD}, 3"); A("s_lshl_b32 s31, s31, 14"); A(f"v_lshl_add_u32 v23, v23, 10, s31")
    A(f"v_and_b32 v17, 1, v{V_LANE}"); A("v_lshl_add_u32 v23, v17, 7, v23"); A(f"v_lshrrev_b32 v17, 5, v{V_LANE}"); A("v_lshl_or_b32 v23, v17, 26, v23")
    A("s_waitcnt lgkmcnt(0)")
    L += srd(SRD_C, 18, 65536, "s30")
    A(f"s_cmp_ge_u32 s{S_W}, 2"); A("s_cselect_b32 s20, s22, s20"); A("s_cselect_b32 s21, s23, s21")
    A(f"s_add_u32 s{SRD_W}, s20, s28"); A(f"s_addc_u32 s{SRD_W+1}, s21, 0"); A(f"s_sub_u32 s{SRD_W+2}, {512*8192}, s28"); A(f"s_mov_b32 s{SRD_W+3}, 0x20000")
    if WARM: L += pfw(0, 22) + pfc(0, 23)
    L += srd(68, 32, 1280)
    for i in range(5): A(f"buffer_load_ushort v{40+i}, v36, s[68:71], 0 offen offset:{i*256} ; tag=MC")
    L += nop_m0(w_issue(0) + c_issue(0))
    if WARM: L += pfw(1, 22) + pfc(1, 23)
    A(f"v_accvgpr_write_b32 a{A_PF}, v22"); A(f"v_accvgpr_write_b32 a{A_PF+1}, v23")
    L += pst("p0")
    mark0 = len(L)
    A(f"v_lshlrev_b32 v{V_L16}, 4, v{V_LANE}")
    A("s_mov_b32 s4, s38"); A("s_mov_b32 s5, s39")
    A(f"s_lshr_b32 s29, s{S_W}, 1"); A("s_lshl_b32 s29, s29, 19"); A("s_add_u32 s28, s28, s29")
    A(f"s_add_u32 s{SRD_WQ}, s6, s28"); A(f"s_addc_u32 s{SRD_WQ+1}, s7, 0"); A(f"s_sub_u32 s{SRD_WQ+2}, {640*8192}, s28"); A(f"s_mov_b32 s{SRD_WQ+3}, 0x20000")
    L += srd(SRD_WS, 4, 0x1000000); L += srd(SRD_DBG, 36, 256)
    A(f"s_lshl_b32 s60, s{S_I}, 5"); A(f"s_add_u32 s60, s60, s{S_HEAD}")
    L += srd(64, 34, 640*7680)
    A("s_lshr_b32 s28, s2, 3"); A("s_lshl_b32 s28, s28, 2"); A(f"s_add_u32 s28, s28, s{S_W}"); A(f"s_mul_i32 s28, s28, {5*7680}")
    A("s_and_b32 s29, s2, 7"); A("s_lshl_b32 s29, s29, 7"); A("s_add_u32 s28, s28, s29")
    A(f"v_and_b32 v13, 7, v{V_LANE}"); A("v_mul_u32_u24 v14, 7680, v13"); A(f"v_lshrrev_b32 v15, 3, v{V_LANE}"); A("v_lshl_add_u32 v14, v15, 10, v14"); A("v_add_u32 v14, s28, v14")
    A("v_add_u32 v13, 3, v13"); A("v_lshrrev_b32 v13, 3, v13"); A("v_lshl_or_b32 v14, v13, 26, v14")
    A(f"v_accvgpr_write_b32 a{A_PF-1}, v14")
    A("v_add_u32 v13, 5, v15"); A("v_lshrrev_b32 v13, 3, v13"); A("v_lshl_or_b32 v14, v13, 26, v14")
    if 'm' in PFS: A(f"buffer_load_dword {dum()}, v14, s[64:67], 0 offen")
    A("s_cmp_lt_u32 s60, 80"); A("s_cselect_b32 s66, s66, 0")
    L += srd(SRD_V, 16, 2048*1280)
    A("v_lshrrev_b32 v33, 1, v0"); A("s_movk_i32 s28, 7680"); A("v_mul_lo_u32 v28, v33, s28"); A("v_and_b32 v35, 1, v0")
    A("v_lshl_add_u32 v28, v35, 4, v28"); A("s_lshl_b32 s29, s60, 5"); A("v_add_u32 v28, s29, v28"); A(f"v_accvgpr_write_b32 a{A_PF+2}, v28")
    A(f"v_lshrrev_b32 v37, 5, v{V_LANE}"); A("s_lshl_b32 s28, s2, 3"); A(f"s_lshl_b32 s29, s{S_W}, 1"); A("s_add_u32 s28, s28, s29"); A("v_add_u32 v37, s28, v37")
    A(f"v_and_b32 v38, 31, v{V_LANE}"); A("s_movk_i32 s28, 1280"); A("v_mul_lo_u32 v31, v37, s28"); A("v_lshl_add_u32 v30, v38, 3, v31"); A("v_lshl_add_u32 v31, v38, 4, v31")
    A(f"v_mov_b32 v13, {hex(HUGE)}"); A("v_cmp_eq_u32 vcc, 0, v0"); A("s_nop 1"); A(f"v_cndmask_b32 v{V_SIG}, v13, 0, vcc")
    A(f"s_getreg_b32 s{S_XF}, hwreg(HW_REG_XCC_ID, 0, 3)"); A(f"s_lshl_b32 s{S_XF}, s{S_XF}, 2")
    A("v_lshlrev_b32 v15, 7, v0"); A("s_cmp_eq_u32 s2, 0"); A("s_cselect_b32 s28, 64, 0"); A("v_cmp_gt_u32 vcc, s28, v0"); A("v_mov_b32 v16, 0"); A("v_mov_b32 v17, 0")
    A(f"s_movk_i32 s28, {WS_CNT}"); A("v_cndmask_b32 v15, v13, v15, vcc"); A(f"s_movk_i32 s29, {WS_CNT + 8192}")
    A(f"buffer_store_dwordx2 v[16:17], v15, s[{SRD_WS}:{SRD_WS+3}], s28 offen sc1 ; tag=ZI")
    A(f"buffer_store_dwordx2 v[16:17], v15, s[{SRD_WS}:{SRD_WS+3}], s29 offen sc1 ; tag=ZI")
    A(f"s_cmp_eq_u32 s{S_W}, 0"); A(f"s_cselect_b32 s{S_WOFF}, 0, {1 << 26}")
    A("s_cmp_eq_u32 s2, 0"); A("s_cselect_b32 s31, 0, 0x1000")
    L += tr_addr(V_TR, V_LANE, 13, 14)
    for b in range(4): A(f"v_add_u32 v{V_TR2+b}, 0x10000, v{V_TR+b}")
    A(f"v_and_b32 v13, 15, v{V_LANE}"); A(f"v_lshrrev_b32 v14, 4, v{V_LANE}"); A("v_lshrrev_b32 v15, 1, v13")
    A("v_xor_b32 v14, v14, v15"); A("v_lshlrev_b32 v14, 4, v14"); A("v_lshl_add_u32 v13, v13, 7, v14")
    A(f"s_add_u32 s28, s{S_M0W}, 0x18000"); A(f"v_add_u32 v{V_CA0}, s28, v13"); A(f"v_xor_b32 v{V_CA1}, 64, v{V_CA0}")
    A("v_lshrrev_b32 v13, 4, v37"); A("v_mul_u32_u24 v13, 20, v13"); A("v_lshrrev_b32 v14, 3, v38"); A("v_add_u32 v13, v13, v14"); A("v_lshlrev_b32 v13, 6, v13")
    A("v_bfe_u32 v14, v38, 1, 2"); A("v_lshl_add_u32 v13, v14, 4, v13"); A("v_and_b32 v14, 15, v37"); A("v_add_u32 v13, v13, v14"); A("v_lshlrev_b32 v13, 4, v13")
    A("v_and_b32 v14, 1, v38"); A("v_lshl_add_u32 v13, v14, 3, v13"); A(f"v_add_u32 v13, {WS_H + 16384}, v13"); A(f"v_accvgpr_write_b32 a{A_PF+3}, v13")
    A("v_lshrrev_b32 v13, 4, v37"); A("v_mul_u32_u24 v13, 20480, v13"); A("v_lshl_add_u32 v13, v38, 8, v13"); A("v_and_b32 v14, 15, v37"); A("v_lshl_add_u32 v13, v14, 4, v13")
    A(f"v_add_u32 v{V_HST}, {WS_H}, v13")
    A(f"s_lshl_b32 s{S_W2K}, s{S_W}, 11")
    A(f"s_lshl_b32 s{S_2D}, s{S_I}, 2"); A(f"s_add_u32 s{S_2D}, s{S_2D}, 4")
    A(f"s_sub_u32 s{S_2DM1}, s{S_2D}, 1"); A(f"s_sub_u32 s{S_2DM4}, s{S_2D}, 4"); A(f"s_mov_b32 s{S_RETRY}, 0")
    A("s_lshr_b32 s28, s2, 4"); A("s_sub_u32 s29, 15, s28"); A("s_min_u32 s28, s28, s29"); A("s_lshl_b32 s28, s28, 3"); A("s_and_b32 s29, s2, 7"); A("s_add_u32 s28, s28, s29")
    A("s_lshl_b32 s28, s28, 7"); A(f"s_add_u32 s24, s28, {WS_CNT + 8*128}")
    A(f"s_lshl_b32 s28, s{S_I}, 10"); A(f"s_add_u32 s25, s28, {WS_CNT + 8*128}")
    A(f"s_lshl_b32 s28, s{S_HEAD}, 7"); A(f"s_add_u32 s62, s28, {WS_CNT + 72*128}")
    A(f"s_lshl_b32 s28, s{S_I}, 16"); A(f"s_lshl_b32 s29, s{S_W}, 14"); A("s_add_u32 s32, s28, s29")
    for j in range(1, 4): A(f"s_add_u32 s{32+j}, s32, {j*4096}")
    A("s_and_b32 s28, s60, 7"); A("s_lshl_b32 s28, s28, 7"); A(f"s_add_u32 s28, s28, {WS_CNT}")
    A("s_cmp_lt_u32 s60, 80"); A(f"s_cselect_b32 s61, s28, 0x2000000")
    A("s_mul_i32 s28, s60, 1639"); A("s_lshr_b32 s28, s28, 16")
    A("s_mov_b32 s80, 0"); A("s_cmp_eq_u32 s28, 1"); A("s_cmov_b32 s80, 1.0"); A("s_cmp_eq_u32 s28, 4"); A("s_cmov_b32 s80, 1.0")
    A("s_mov_b32 s81, 1.0"); A("s_cmp_eq_u32 s28, 0"); A(f"s_cmov_b32 s81, {fhex(QSCALE)}")
    A("s_cmp_lt_u32 s60, 80"); A("s_cselect_b32 s82, 16, 0")
    A("s_sub_u32 s29, s60, 80"); A("s_cmp_lt_u32 s29, 160"); A("s_cselect_b32 s6, 16, 0"); A(f"s_cselect_b32 s7, {640*7680}, 0")
    A("s_mul_i32 s29, s28, 40"); A("s_sub_u32 s29, s60, s29"); A("s_lshr_b32 s36, s29, 1"); A("s_lshl_b32 s36, s36, 10")
    A("s_and_b32 s29, s29, 1"); A("s_lshl_b32 s29, s29, 3"); A("s_add_u32 s36, s36, s29"); A(f"s_add_u32 s36, s36, {WS_VEC}")
    A("s_cmp_eq_u32 s28, 3"); A("s_cselect_b32 s29, 16, 0"); A("s_add_u32 s36, s36, s29")
    A("s_sub_u32 s28, s28, 3"); A("s_cmp_lt_u32 s28, 2"); A("s_cselect_b32 s83, 16, 0")
    A(f"s_cmp_lg_u32 s{S_W}, 0"); A("s_cmov_b32 s82, 0"); A("s_cmov_b32 s83, 0"); A("s_cmov_b32 s6, 0"); A("s_lshl_b32 s60, s60, 6")
    A("WAITVM MC")
    for i in range(5):
        A(f"v_lshlrev_b32 v{40+i}, 16, v{40+i}"); A(f"v_mul_f32 v{70+i}, {fhex(-math.log2(math.e))}, v{40+i}")
    for i in range(5): A(f"v_exp_f32 v{70+i}, v{70+i}")
    for i in range(5): A(f"v_add_f32 v{70+i}, 1.0, v{70+i}")
    for i in range(5): A(f"v_rcp_f32 v{70+i}, v{70+i}")
    for i in range(5): A(f"v_mul_f32 v{70+i}, v{70+i}, v{40+i}")
    for i in range(5): A(f"v_cvt_pk_bf16_f32 v{70+i}, v{70+i}, v{70+i}");
    for i in range(5): A(f"v_lshlrev_b32 v{40+i}, 16, v{70+i}")
    for i in range(5): A(f"v_accvgpr_write_b32 a{A_S+i}, v{40+i}")
    L += nop_m0(w_issue(1) + c_issue(1))
    L += pst("p3")
    A("WAITVM W0,C0"); A("s_barrier")
    L += pst("p")
    L += rd_c(0) + rd_w(0, 0, 0, "P0") + ["s_waitcnt lgkmcnt(2)"] + rd_w(0, 0, 1, "P1") + ["WAITLG P0"]
    return L

def rsum32(r, t):
    o = []
    for sh in (8, 4, 2, 1): o += [(f"v_add_f32 v{r}, v{r}, v{r} row_ror:{sh}", 2)]
    o += [f"v_mov_b32 v{t}, v{r}", (f"v_permlane16_swap_b32 v{r}, v{t}", 2), f"v_add_f32 v{r}, v{r}, v{t}"]
    return o
def xunpack(j): return [f"v_accvgpr_read_b32 v22, a{A_X+j}", "v_lshlrev_b32 v23, 16, v22", "v_and_b32 v22, 0xffff0000, v22"]
def sig(srd_, soff): return ["v_mov_b32 v13, 1", signal(srd_, soff, val=13)]

def kv_store(i, reg):
    srd_ = SRD_K if i < 16 else SRD_V
    o = ((i & 3)*4 + (i >> 2))*1024 if i < 16 else ((i & 1)*8 + ((i - 16) >> 1))*1024
    return [f"buffer_store_dwordx4 v[{reg}:{reg+3}], v{V_L16}, s[{srd_}:{srd_+3}], s{32 + (o >> 12)} offen offset:{o & 0xfff} ; tag=KVST"]
def kv_cvt(i, dst):
    L = []
    for hfi in range(2):
        a = 2*i + hfi
        if a < 56: r = 32 + 4*a
        else:
            r = 13 + 4*hfi
            L += [f"v_accvgpr_read_b32 v{r+e}, a{4*(a-56)+e}" for e in range(4)]
        L += [f"v_cvt_pk_bf16_f32 v{dst+2*hfi}, v{r}, v{r+1}", f"v_cvt_pk_bf16_f32 v{dst+2*hfi+1}, v{r+2}, v{r+3}"]
    return L
def kv_dst(i): return 32 + 4*i if i < 24 else 32 + 4*(i - 24)

def k1_chunk(c):
    mf = []
    for n in range(16):
        for kv in range(4):
            for k in range(2):
                a, b = (wf(n, k), cf(c, kv, k)) if n < 8 else (cf(c, kv, k), wf(n, k))
                mf.append(mfma16(accr(acc_idx(n, kv)), a, b, "0" if (c == 0 and k == 0) else None))
    P = Packer(mf)
    for n in range(14):
        P.stream(rd_w(c, (n+2) >> 2, n+2, f"R{c}_{n+2}"), start=n*8, limit=n*8+3)
        P.stream([f"WAITLG {'P1' if n == 0 else f'R{c}_{n+1}'}"], start=n*8+7, limit=n*8+7)
    need = f"W{c+1}" + (f",C{c+1}" if c < 7 else ",H0") + {0: ",MW", 1: ",X", 3: ",CS"}.get(c, "")
    P.stream([f"WAITVM {need} LG R{c}_15", "s_barrier"], start=112, limit=113)
    nx = rd_w(c+1, 0, 0, "P0") + (rd_c(c+1) + ["WAITLG P0"] if c < 7 else []) + rd_w(c+1, 0, 1, "P1")
    P.stream(nx, start=114, limit=123)
    P.stream([f"WAITLG {'RC%d' % (c+1) if c < 7 else 'P0'}"], start=127, limit=127)
    wi, ci = w_issue(c+2), (c_issue(c+2) if c + 2 < 8 else [])
    def dma(dm, g, end=104):
        nd = sum(1 for x in dm if not isinstance(x, tuple) and x.startswith(('buffer', 'global')))
        return P.stream(dm, start=g+1, limit=111, dstep=min(DST, (end - g) / nd))
    def mw_loads(base, tag):
        o = []
        for i in range(5): o += [f"s_mov_b32 s28, {i*128*7680}", f"buffer_load_dwordx4 a[{base+4*i}:{base+4*i+3}], v28, s[64:67], s28 offen ; tag={tag}"]
        return o
    def mod_fma(base):
        m = []
        for i in range(5):
            m += [f"v_accvgpr_read_b32 v28, a{A_S+i}"]
            for d in range(4):
                op = "v_mul_f32" if i == 0 else "v_fmac_f32"
                m += [f"v_accvgpr_read_b32 v22, a{base+4*i+d}", "v_lshlrev_b32 v23, 16, v22", "v_and_b32 v22, 0xffff0000, v22",
                      f"{op} v{MACC+2*d}, v23, v28", f"{op} v{MACC+2*d+1}, v22, v28"]
        for k_, sh in enumerate((2, 4)):
            for e in range(8): m.append((f"v_add_f32 v{MACC+e}, v{MACC+e}, v{MACC+e} row_ror:{sh}", 1 if (k_ == 0 and e == 0) else 0))
        return m
    def mod_fin(scr, snl, vec):
        m = [f"v_add_f32 v{MACC+e}, v{MACC+e}, v{MACC+e} row_ror:8" for e in range(8)]
        m += [f"v_lshrrev_b32 v13, 4, v{V_LANE}", "v_lshlrev_b32 v13, 6, v13", f"v_and_b32 v22, 1, v{V_LANE}", "v_lshl_add_u32 v13, v22, 5, v13", f"v_add_u32 v13, s{S_M0W}, v13",
              f"v_add_u32 v13, {scr}, v13",
              f"ds_write_b128 v13, v[{MACC}:{MACC+3}] ; tag=SW", f"ds_write_b128 v13, v[{MACC+4}:{MACC+7}] offset:16 ; tag=SW",
              f"v_and_b32 v22, 15, v{V_LANE}", f"v_lshrrev_b32 v23, 4, v{V_LANE}", "v_lshlrev_b32 v28, 2, v22", "v_lshl_add_u32 v13, v23, 13, v28", f"v_add_u32 v13, {scr}, v13",
              ("WAITLG SW", 2), "s_barrier"]
        m += [f"ds_read_b32 v{MACC+r}, v13 offset:{r*64} ; tag=SR" for r in range(4)]
        m += [f"v_cmp_gt_u32 s[84:85], s{snl}, v{V_LANE}", f"v_mov_b32 v23, {hex(HUGE)}", ("v_cndmask_b32 v28, v23, v28, s[84:85]", 1),
              ("WAITLG SR", 2), f"v_add_f32 v14, v14, v15", "v_add_f32 v16, v16, v17", "v_add_f32 v14, v14, v16",
              "v_mov_b32 v15, v14", ("v_permlane32_swap_b32 v14, v15", 2), "v_add_f32 v14, v14, v15",
              "v_mov_b32 v15, v14", ("v_permlane16_swap_b32 v14, v15", 2), "v_add_f32 v14, v14, v15",
              "v_cvt_pk_bf16_f32 v14, v14, v14", "v_lshlrev_b32 v14, 16, v14", "v_add_f32 v14, s80, v14",
              "v_cvt_pk_bf16_f32 v14, v14, v14", "v_lshlrev_b32 v14, 16, v14", "v_mul_f32 v15, s81, v14",
              f"buffer_store_dword v15, v28, s[{SRD_WS}:{SRD_WS+3}], s60 offen" + (" ; tag=MOD2" if vec else " sc1 ; tag=MOD")]
        if vec:
            m += [f"v_cmp_gt_u32 s[84:85], s83, v{V_LANE}", "v_lshrrev_b32 v16, 2, v22", "v_lshlrev_b32 v16, 8, v16", "v_and_b32 v22, 3, v22", "v_lshl_add_u32 v16, v22, 1, v16",
                  "v_cndmask_b32 v16, v23, v16, s[84:85]", f"buffer_store_short_d16_hi v14, v16, s[{SRD_WS}:{SRD_WS+3}], s36 offen"]
        return m
    if c == 0:
        pc = []
        zi = ["WAITVM ZI"] + sig(SRD_DBG, "s31")
        dma(zi + mw_loads(A_MW, "MW") + pf(2, 13) + pc + wi + ci, 1)
    if c == 1:
        xl = [f"buffer_load_dwordx4 a[{A_X+4*n}:{A_X+4*n+3}], v31, s[{SRD_V}:{SRD_V+3}], 0 offen offset:{n*512} ; tag=X" for n in range(2)]
        xl += [f"buffer_load_dwordx2 a[{A_X+8}:{A_X+9}], v30, s[{SRD_V}:{SRD_V+3}], 0 offen offset:1024 ; tag=X"]
        dma(xl + poll_issue(SRD_DBG, "0", "X") + wi + ci, 1)
        P.stream(mod_fma(A_MW), start=0)
    if c == 2:
        g = P.stream(mod_fin(0x8000 + 7168, 82, False), start=0)
        P.stream(poll_check("ini", SRD_DBG, "0", 1, bar=False) + ["WAITVM MOD"] + sig(SRD_WS, "s61"), start=min(g + 44, 98), limit=111)
        dma(pf(3, 14) + wi[:-2] + ci, g)
        ln = []
        for j in range(10): ln += xunpack(j) + ([f"v_add_f32 v{V_MU}, v23, v22"] if j == 0 else [f"v_add_f32 v{V_MU}, v{V_MU}, v23", f"v_add_f32 v{V_MU}, v{V_MU}, v22"])
        P.stream(ln, start=g+1)
    if c == 3:
        late = [f"s_add_u32 m0, s{S_M0W}, {32768 + 4096}"] + w_issue(4)[-2:]
        g = P.stream(late, start=1)
        g = P.stream([f"s_movk_i32 s41, {WS_CNT}"] + poll_issue(SRD_WS, "s41", "PM", True), start=PM_GAP)
        g = dma(wi, g, end=g + 32)
        ck = ["WAITVM PM"] + poll_check("mod", SRD_WS, "s41", 10, True) + [f"v_and_b32 v28, 31, v{V_LANE}", "v_lshlrev_b32 v28, 4, v28", "s_movk_i32 s29, 2560"]
        g = P.stream(ck, start=g+1)
        ld_ = []
        for arr, so in ((0, "0"), (20, "s29")):
            ld_ += [f"buffer_load_dwordx4 a[{A_CS+arr+16}:{A_CS+arr+19}], v28, s[{SRD_WS}:{SRD_WS+3}], {so} offen offset:2048 sc1 ; tag=CS"]
        ld_ += ["v_lshlrev_b32 v28, 1, v28"]
        for arr, so in ((0, "0"), (20, "s29")):
            for n in range(4):
                ld_ += [f"buffer_load_dwordx4 a[{A_CS+arr+4*n}:{A_CS+arr+4*n+3}], v28, s[{SRD_WS}:{SRD_WS+3}], {so} offen offset:{(n>>1)*1024 + (n&1)*16} sc1 ; tag=CS"]
        pm = [f"s_mov_b32 s66, {640*7680}", f"v_accvgpr_read_b32 v14, a{A_PF-1}", f"buffer_load_dword {dum()}, v14, s[64:67], 0 offen"] if 'm' in PFS else []
        dma(ld_ + ci + pm, g, end=108)
        ln = rsum32(V_MU, 13) + [f"v_mul_f32 v{V_MU}, {fhex(-1/640)}, v{V_MU}"]
        for j in range(10):
            ln += xunpack(j) + [f"v_add_f32 v23, v23, v{V_MU}", f"v_add_f32 v22, v22, v{V_MU}",
                                f"{'v_mul_f32' if j == 0 else 'v_fmac_f32'} v{V_RS}, v23, v23", f"v_fmac_f32 v{V_RS}, v22, v22"]
        ln += rsum32(V_RS, 13) + [f"v_mov_b32 v13, {fhex(1e-5)}", f"v_fmac_f32 v13, {fhex(1/640)}, v{V_RS}", f"v_rsq_f32 v{V_RS}, v13", (f"v_mul_f32 v{V_RS}, {fhex(QSCALE)}, v{V_RS}", 1),
                                  f"v_mul_f32 v{V_MU}, v{V_MU}, v{V_RS}"]
        P.stream(ln, start=0)
    if c == 4:
        hs = ["s_movk_i32 s29, 8192"]
        for j in range(10):
            hs += xunpack(j) + [f"v_fma_f32 v23, v23, v{V_RS}, v{V_MU}", f"v_fma_f32 v22, v22, v{V_RS}, v{V_MU}"]
            for e in range(2):
                hs += [f"v_accvgpr_read_b32 v{14+e}, a{A_CS+20+2*j+e}", f"v_accvgpr_read_b32 v{16+e}, a{A_CS+2*j+e}"]
            hs += ["v_fma_f32 v23, v23, v14, v16", "v_fma_f32 v22, v22, v15, v17", f"v_cvt_pk_bf16_f32 v{18+(j&3)}, v23, v22"]
            if j in (3, 7): hs += [f"buffer_store_dwordx4 v[18:21], v{V_HST}, s[{SRD_WS}:{SRD_WS+3}], {'0' if j == 3 else 's29'} offen sc1 ; tag=HST"]
        hs += [f"v_accvgpr_read_b32 v28, a{A_PF+3}", f"buffer_store_dwordx2 v[18:19], v28, s[{SRD_WS}:{SRD_WS+3}], 0 offen sc1 ; tag=HST"]
        dma(pf(4, 13) + wi + ci, 1)
        P.stream(hs, start=0)
    if c == 5:
        P.stream(["WAITVM HST", "s_barrier"] + sig(SRD_WS, "s24") + [f"s_lshl_b32 s28, 1, s{S_XF}", "v_mov_b32 v4, s28", signal(SRD_WS, "s62", val=4) + " offset:4"], start=HS_GAP)
        g = dma(["s_mov_b32 s66, s7", f"v_accvgpr_read_b32 v28, a{A_PF+2}"] + [x.replace("s28", "s29") for x in mw_loads(A_MW2, "MW2")] + wi + ci, 1)
        P.stream(poll_issue(SRD_WS, "s25", "PH", True) + pf(5, 30), start=max(g + 1, HS_GAP + 56))
    if c == 6:
        st = [f"s_lshl_b32 s28, s{S_I}, 3", f"s_lshl_b32 s29, s{S_W}, 1", "s_add_u32 s56, s28, s29", "s_add_u32 s57, s56, 1",
              "s_sub_u32 s58, 120, s28", "s_add_u32 s58, s58, s29", "s_add_u32 s59, s58, 1"]
        for q in range(4): st += [f"s_mul_i32 s{52+q}, s{56+q}, 20480", f"s_add_u32 s{52+q}, s{52+q}, {WS_H}"]
        g = P.stream(st, start=0)
        g = dma(wi[:5], g, end=g+16)
        g = P.stream(["WAITVM PH"] + poll_check("h", SRD_WS, "s25", 4, True), start=g+1)
        g = dma(h_issue(0) + wi[5:] + h_issue(1), g)
        ds = [f"s_lshl_b32 s31, s{S_HEAD}, 19", f"s_add_u32 s41, s31, {hex(WS_K)}", f"s_add_u32 s{SRD_K}, s4, s41\ns_addc_u32 s{SRD_K+1}, s5, 0",
              f"s_add_u32 s41, s31, {hex(WS_V)}", f"s_add_u32 s{SRD_V}, s4, s41\ns_addc_u32 s{SRD_V+1}, s5, 0",
              f"s_mov_b32 s{SRD_K+2}, {32*16384}", f"s_mov_b32 s{SRD_V+2}, {32*16384}", f"s_mov_b32 s{SRD_K+3}, 0x20000", f"s_mov_b32 s{SRD_V+3}, 0x20000",
              f"s_lshl_b32 s31, s{S_HEAD}, 12", f"s_add_u32 s31, s31, {hex(WS_CTX)}",
              f"s_add_u32 s{SRD_O}, s4, s31\ns_addc_u32 s{SRD_O+1}, s5, 0", f"s_mov_b32 s{SRD_O+2}, {1<<24}", f"s_mov_b32 s{SRD_O+3}, 0x20000"]
        P.stream(["WAITVM MW2"] + mod_fma(A_MW2)[:-8], start=2)
        P.stream(ds, start=30, step=1)
    if c == 7:
        dma(pf(6, 30) + wi + h_issue(2), 1, end=70)
        P.stream(mod_fma(A_MW2)[-8:] + mod_fin(CBASE[0], 6, True), start=0)
        g = 0
        for i in range(16):
            cv = kv_cvt(i, kv_dst(i)) + (kv_store(i, kv_dst(i)) if i < 8 else [])
            g = P.stream(cv, start=max(g + 1, (i >> 2)*16 + 16 + 4, 20 + 9*i if i < 8 else 0))
    return P.emit()

def q_chunk(c):
    sc = 8 + (c >> 1)
    mf = [mfma16(qacc(d, q), wf(d, k), hf(c, q, k), "0" if (c == 0 and k == 0) else None) for d in range(8) for q in range(4) for k in range(2)]
    P = Packer(mf)
    for d in range(6):
        P.stream(rd_w(sc, (c & 1)*2 + ((d+2) >> 2), d+2, f"Q{c}_{d+2}"), start=d*8, limit=d*8+3)
        P.stream([f"WAITLG {'P1' if d == 0 else f'Q{c}_{d+1}'}"], start=d*8+7, limit=d*8+7)
    if c < 9:
        nsc = 8 + ((c+1) >> 1)
        if c & 1:
            need = f"W{nsc},H{c+1}" + (",KVST,PX" if c == 5 else "") + (",PK" if c == 7 else "")
            P.stream([f"WAITVM {need} LG Q{c}_7", "s_barrier"], start=48, limit=49); s0 = 50
        else:
            P.stream([f"WAITVM H{c+1} LG Q{c}_7"], start=55, limit=55); s0 = 48
        P.stream(rd_w(nsc, ((c+1) & 1)*2, 0, "P0"), start=s0, limit=55)
        P.stream(rd_w(nsc, ((c+1) & 1)*2, 1, "P1"), start=56, limit=59)
        P.stream(["WAITLG P0"], start=63, limit=63)
    else:
        P.stream(["WAITVM K0 LG Q9_7", "s_barrier"], start=54, limit=55)
    g = 1
    dm = []
    if c == 6:
        xf = [f"v_readfirstlane_b32 s28, v{V_POLL}", (f"s_lshr_b32 s28, s28, s{S_XF}", 1), "s_and_b32 s28, s28, 15", "s_cmp_lg_u32 s28, 8\ns_cbranch_scc1 KA_wb", "KA_wbr:"] + sig(SRD_WS, "s62")
        spins.append(["KA_wb:", f"s_cmp_lg_u32 s{S_W}, 0", "s_cbranch_scc1 KA_wbr", "buffer_wbl2 sc1", "s_waitcnt vmcnt(0)", "s_branch KA_wbr"])
        g = P.stream(xf, start=0)
    if c == 7: dm += poll_issue(SRD_WS, "s62", "PK")
    if c == 3: dm += ["s_add_u32 s29, s62, 4"] + poll_issue(SRD_WS, "s29", "PX")
    if c == 8:
        g = P.stream(poll_check("kv", SRD_WS, "s62", 8), start=0)
        dm += [f"s_lshl_b32 s28, s{S_I}, 15", f"s_sub_u32 s{SRD_K+2}, {32*16384}, s28", f"s_mov_b32 s{SRD_V+2}, s{SRD_K+2}"] + kv_init_state()
        for wch, idx in (('K', 0), ('K', 1), ('V', 0)):
            x = sum(kv_simple(wch, idx), [])
            if (wch, idx) == ('K', 0): x = [y.replace("tag=K", "tag=K0") for y in x]
            dm += x
    if c == 9:
        for wch, idx in (('K', 2), ('V', 1)): dm += sum(kv_simple(wch, idx), [])
    if 1 <= c <= 7: dm += h_issue(c+2)
    if c in (1, 3, 5): dm += w_issue(sc+2)
    sts = {0: list(range(8, 18)), 2: list(range(18, 25)), 4: list(range(25, 32))}.get(c, [])
    for i in sts: dm += kv_store(i, kv_dst(i))
    if c == 1: dm = dm[12:] + dm[:12]; g = 1
    nd = sum(1 for x in dm if x.startswith('buffer'))
    if dm: P.stream(dm, start=g+1, limit=63, dstep=min(DST, (58 - g) / nd))
    if c == 0:
        gg = 0
        for i in range(16, 28): gg = P.stream(kv_cvt(i, kv_dst(i)), start=gg, limit=8*((i-12)//2) - 1)
        P.stream(sum([kv_cvt(i, kv_dst(i)) for i in range(28, 29)], []), start=gg)
    if c == 1:
        lim = min(k for k, gp in enumerate(P.g) if any("tag=H3" in x[2] for x in gp))
        P.stream(sum([kv_cvt(i, kv_dst(i)) for i in range(29, 32)], []), start=0, limit=lim + 12)
        pos = {}
        for k, gp in enumerate(P.g):
            for x in gp:
                if x[2].startswith("v_accvgpr_read"): pos[int(x[2].split(", a")[1])] = k
                if "tag=H3" in x[2]:
                    lo = int(x[2].split("a[")[1].split(":")[0])
                    for r in range(lo, lo+4): assert r < 8 or (r in pos and pos[r] < k), (r, k)
    if c >= 7:
        fr = {7: [], 8: [0], 9: [1]}[c]
        if c == 7: fr = [3]
        z = [f"v_accvgpr_write_b32 a{sl*32+r}, 0" for sl in fr for r in range(32)]
        P.stream(z, start=1)
    if c == 9:
        ini = [f"v_mov_b32 v{CI+r}, 0" for r in range(16)] + [f"v_mov_b32 v{LS+r}, 0" for r in range(16)]
        P.stream(ini, start=1)
    if c == 5:
        ini = [f"v_and_b32 v{V_T}, 15, v{V_LANE}", f"v_lshrrev_b32 v{V_T+1}, 4, v{V_LANE}", f"v_lshlrev_b32 v{V_T+1}, 2, v{V_T+1}", f"v_sub_u32 v{V_Y}, v{V_T}, v{V_T+1}",
               f"v_mov_b32 v{V_NEG}, 0xff800000", f"v_add_u32 v{V_KVD}, s{S_W2K}, v{V_L16}", f"v_add_u32 v{V_KVD2}, 0x2000, v{V_KVD}",
               f"s_lshl_b32 s{S_YA}, s56, 4", f"s_lshl_b32 s{S_YB}, s58, 4", f"s_lshl_b32 s29, s{S_2D}, 5", f"s_add_u32 s{S_YB}, s{S_YB}, s29"]
        P.stream(ini, start=1)
    return P.emit()

def ka():
    del spins[:]
    L = prologue(); A = L.append
    for c in range(8): L += k1_chunk(c) + pst(f"c{c}")
    for c in range(10): L += q_chunk(c) + pst(f"q{c}")
    for r in range(32): A(f"v_accvgpr_write_b32 a{64+r}, 0")
    for j in range(8): A(rdK(0, j))
    for r in range(4): A(f"v_mov_b32 v{ONES+r}, 0x3f803f80")
    for q in range(4):
        for ds in range(4):
            r0 = QACC + ((2*ds)*4+q)*4; r1 = QACC + ((2*ds+1)*4+q)*4; t = V_T + 4*(ds & 1)
            A(f"v_cvt_pk_bf16_f32 v{t}, v{r0}, v{r0+1}"); A(f"v_cvt_pk_bf16_f32 v{t+1}, v{r0+2}, v{r0+3}")
            A(f"v_cvt_pk_bf16_f32 v{t+2}, v{r1}, v{r1+1}"); A(f"v_cvt_pk_bf16_f32 v{t+3}, v{r1+2}, v{r1+3}")
            for r in range(4): A(f"v_accvgpr_write_b32 a{A_Q+(q*4+ds)*4+r}, v{t+r}")
    L += pst("q")
    A("s_waitcnt lgkmcnt(0)")
    A("s_branch K2_QKd0")
    ex = os.environ.get("EXP", "")
    if 's' in ex: L = [("s_nop 0" if ("tag=KVST" in x and "s35 offen offset:3072" not in x) else x) for x in L]
    if 'n' in ex: L = [(x.replace(" ; tag=KVST", " nt ; tag=KVST")) for x in L]
    if 'h' in ex: L = [(x.replace(" sc1 ; tag=H", " ; tag=H") if "tag=HST" not in x else x) for x in L]
    L = resolve_waits(L)
    pre = list(L)
    for sp in spins: L += sp
    ti = [ldptr(44, 'wo'), ldptr(46, 'wd'), "s_lshl_b32 s48, s2, 2", f"s_add_u32 s48, s48, s{S_W}", "s_lshl_b32 s48, s48, 1"]
    ti += k0.relayout_setup(v_lane=V_LANE, v_voff=V_WV, v_tr=V_TR, t0=13, t1=14, s_lds=S_M0W, s_tmp=49)
    ti += ["s_waitcnt lgkmcnt(0)"]
    for u in range(2): ti += k0.relayout_issue(u, s_unit=48, s_wo=44, s_wd=46, srd_=SRD_W, s_lds=S_M0W, v_voff=V_WV, s_tmp=49, s_dst=32+u, lab="")
    tf = ["s_waitcnt vmcnt(16)"] + srd(SRD_C, 4, WS_K - WS_WO, off_s=hex(WS_WO))
    for u in range(2): tf += k0.relayout_finish(u, v_tr=V_TR, v_data=64, v_lane16=V_L16, srd_=SRD_C, s_dst=32+u, s_tmp=49)
    L += resolve_waits(attn_part(pre, ti, tf, 0, len(STPOS) + 3))
    L += ["KA_end:", "s_endpgm"]
    return L
```

```python
import sys
from common import *
def build(kernels, path):
    hdr = open("cdna_kernels/" + NAME + ".s.ref").read().split("; Override launch")[0]
    out = [hdr.rstrip()]
    for (name, fn, grid, block, lds, nv, acc) in kernels:
        out.append(f"; @launch kernel={name} grid=({grid},1,1) block=({block},1,1) lds={lds}")
    out.append('.amdgcn_target "amdgcn-amd-amdhsa--gfx950"')
    done = set()
    for (name, fn, grid, block, lds, nv, acc) in kernels:
        if name in done: continue
        done.add(name)
        out.append(kernel_text(name, fn(), nv, acc))
    open(path, "w").write("\n".join(out))

def kernels():
    import ka, k3, k4
    return [("ka_kernel", ka.ka, 256, 256, 163840, 512, 256),
            ("k3_kernel", k3.k3, 256, 256, 81920, 512, 256),
            ("k4_kernel", k4.k4, 216, 256, 163840, 512, 256),
            ("k5_kernel", k3.k5, 256, 256, 81920, 512, 256)]
if __name__ == "__main__":
    p = sys.argv[1] if len(sys.argv) > 1 else "all.s"
    build(kernels(), p)
```

```python
from common import *

V_LANE, V_L16, V_WV, V_KVD, V_KA, V_VA, V_Y, V_NEG = 1, 2, 3, 4, 5, 6, 7, 12
V_TR = 8
V_T = 13
ONES = 24
S0, S1, CI, LS = 32, 64, 96, 112
VF = 128
QACC = 128
A_O, A_Q, A_K = 0, 128, 192
S_W = 3; S_HEAD = 26; S_I = 27; S_2D = 30; S_Q = 31; S_KOFF = 32; S_VOFF = 33; S_KM0 = 34; S_VM0 = 35
S_KCNT = 36; S_2DM1 = 37; S_2DM4 = 42; S_RETRY = 38; S_W2K = 39; S_LIM = 43; S_EA = 85; S_NE = 86; S_EV = 87; S_YA = 60; S_YB = 61
SRD_W, SRD_H, SRD_K, SRD_V, SRD_O = 8, 12, 16, 20, 64
LTHRESH = 2.0**64
KBASE, KXOR, VBASE, VXOR = 0x18000, 0x38000, 0x8000, 0x18000
SC = ' sc1' if os.environ.get('KVSC', '1') == '1' else ''

def Sb(p, pair, half): return (S0 if p == 0 else S1) + pair*8 + half*4
def Of(d, q): return ar(A_O + (d*4+q)*4, 4)
def Qf(q, ds): return ar(A_Q + (q*4+ds)*4, 4)
def Kf(j): return ar(A_K + j*4, 4)
def Vf(j): return vr(VF + j*4, 4)
def rdK(p, j): return f"ds_read_b128 {Kf(j)}, v{V_KA} offset:{p*16384 + j*1024}"
def rdV(p, j): return f"ds_read_b128 {Vf(j)}, v{V_VA} offset:{p*16384 + j*1024}"

_lab = [0]
V_KVD2 = 28
def ld(which, half, o):
    srd_, off = (SRD_K, S_KOFF) if which == 'K' else (SRD_V, S_VOFF)
    return f"buffer_load_dwordx4 v{V_KVD2 if half else V_KVD}, s[{srd_}:{srd_+3}], s{off} offen offset:{o}{SC} lds ; tag={which}"
def setm0(which, par, half):
    return f"s_add_u32 m0, s{S_KM0 if which == 'K' else S_VM0}, {par*16384 + half*8192}"
def adv(which, n):
    off = S_KOFF if which == 'K' else S_VOFF
    return f"s_add_u32 s{off}, s{off}, {n}"
def togm0(which):
    r = S_KM0 if which == 'K' else S_VM0
    return f"s_xor_b32 s{r}, s{r}, {hex(KXOR if which == 'K' else VXOR)}"
def kv_simple(which, idx):
    G = [[setm0(which, idx & 1, 0), ld(which, 0, 0)], [ld(which, 0, 1024), adv(which, 8192)]]
    if idx & 1: G[-1].append(togm0(which))
    return G

def flat(G):
    L = []
    for g in G:
        if g[0].startswith("s_") and "m0," in g[0]: L += [g[0], "s_nop 0"] + g[1:]
        else: L += g
    return L

def sm_half(p, half):
    E, C = [], []
    for pair in range(4):
        n = Sb(p, pair, 0); b = n + 4*half
        for r in range(4): E.append(f"v_exp_f32 v{b+r}, v{b+r}")
        C.append(f"v_cvt_pk_bf16_f32 v{n+2*half}, v{b}, v{b+1}")
        C.append(f"v_cvt_pk_bf16_f32 v{n+2*half+1}, v{b+2}, v{b+3}")
    return E, C

def pack(mf, toks, E, C, Rd, D, scal, misc, need):
    assert len(toks) == len(mf), (len(toks), len(mf))
    E, C, Rd, D, J = list(E), list(C), list(Rd), list(D), list(misc.get('J', []))
    issued = [f"P{j}" for j in range(8)]
    ne = nc = 0
    out = []
    for g, (m, tk) in enumerate(zip(mf, toks)):
        out.append(m)
        sc = scal.get(g)
        if sc is not None:
            assert tk not in ('D', 'B', 'J'), (g, tk)
            if sc.startswith("WAITLG"):
                _, name, *ex = sc.split()
                n = len(issued) - 1 - issued.index(name)
                sc = ("s_waitcnt " + " ".join(ex) + f" lgkmcnt({n})").replace("  ", " ")
            out.append(sc)
        for ch in tk:
            if ch == 'E': out.append(E.pop(0)); ne += 1
            elif ch == 'c':
                assert ne >= 2*nc + 2, (g, ne, nc); out.append(C.pop(0)); nc += 1
            elif ch == 'r':
                nm, ins = Rd.pop(0); issued.append(nm); out.append(ins)
            elif ch == 't':
                if misc.get('t'): out.append(misc['t'])
            elif ch == 'D': out.append(D.pop(0))
            elif ch == 'B': out.append("s_barrier")
            elif ch == 'J': out += J.pop(0)
    assert not (E or C or Rd or D or J), (E, C, Rd, D, J)
    drop = os.environ.get("DROP", "")
    pref = {'B': "s_barrier", 'W': "s_waitcnt", 'D': "buffer_load", 'E': "v_exp", 'C': "v_cvt", 'R': "ds_read", 'x': "nothing"}
    for k in drop: out = [x for x in out if not x.startswith(pref[k])]
    return out

def qk_mfmas(T, p):
    mf = []
    if T == 'd':
        for kv in range(2):
            for q in range(4):
                for ds in range(4):
                    d = vr(Sb(p, q, kv), 4)
                    mf.append(mfma16(d, Kf(kv*4+ds), Qf(q, ds), vr(CI+4*q, 4) if ds == 0 else None))
    else:
        for kv in range(4):
            for q in range(2):
                for ds in range(4):
                    d = vr(Sb(p, (kv >> 1)*2 + q, kv & 1), 4)
                    mf.append(mfma16(d, Kf(kv*4+ds), Qf(2+q, ds), vr(CI+4*(2+q), 4) if ds == 0 else None))
    return mf

def qk_block(T, p, endbr):
    E, C = sm_half(1-p, 1)
    pre = [(f"N{j}", rdV(1-p, j)) for j in range(8)]
    D = [ld('K', 0, 0), ld('K', 0, 1024)]
    inc = f"s_add_u32 s{S_Q}, s{S_Q}, 1"
    if T == 'd':
        toks = "E D E c E D E c E . E c E B E rc E rr E rc E rr E rc E E rc E E c . J".split()
        scal = {0: setm0('K', 1-p, 0), 2: inc, 4: "WAITLG P7", 12: "s_waitcnt vmcnt(8)", 28: endbr[0], 30: "WAITLG N4"}
        Rd = pre
    else:
        toks = "E rr E rr E rr E rr E D E cc E D E B E rr E rc E rc E rr E rc E rc E E cc J".split()
        scal = {2: inc, 6: "WAITLG P7", 8: setm0('K', 1-p, 0), 14: "WAITLG O7 vmcnt(14)", 29: endbr[0], 30: "WAITLG N3"}
        Rd = [(f"O{j}", rdK(p, 8+j)) for j in range(8)] + pre
    return pack(qk_mfmas(T, p), toks, E, C, Rd, D, scal, {'J': [[endbr[1]]]}, {})

def pv_block(T, p, endbr):
    mf = []
    P = lambda pair: vr(Sb(p, pair, 0), 4)
    if T == 'd':
        for d in range(8):
            for q in range(4): mf.append(mfma16(Of(d, q), Vf(d), P(q)))
            if d & 1: mf.append(mfma16(vr(LS + 4*(d >> 1), 4), vr(ONES, 4), P(d >> 1)))
    else:
        for j in range(16):
            ks, d = j >> 3, j & 7
            for q in range(2): mf.append(mfma16(Of(d, 2+q), Vf(j), P(ks*2+q)))
            if (j & 3) == 3:
                pr = j >> 2
                mf.append(mfma16(vr(LS + 4*(2 + (pr & 1)), 4), vr(ONES, 4), P(pr)))
    E, C = sm_half(1-p, 0)
    pre = [(f"N{j}", rdK(p, j)) for j in range(8)]
    tg = f"v_xor_b32 v{V_KA}, {hex(KXOR)}, v{V_KA}" if p == 0 else f"v_xor_b32 v{V_VA}, {hex(VXOR)}, v{V_VA}"
    tm = togm0('K') if p == 1 else togm0('V')
    extra = None
    if T == 'd':
        lab = f"K2_X{p}"
        toks = "E . E ct E J E rc E D E rc E D E rc E r E rc E r E rc E . E rc E . E c . . . J".split()
        scal = {1: f"s_add_u32 s28, s{S_Q}, 3", 2: "WAITLG P7", 4: f"s_cmp_ge_u32 s28, s{S_2D}", 8: setm0('V', 1-p, 0),
                14: adv('V', 8192), 16: adv('K', 8192), 18: tm, 33: endbr[0], 34: "WAITLG N4"}
        D = [ld('V', 0, 0), ld('V', 0, 1024)]
        J = [[f"s_cbranch_scc1 {lab}", f"{lab}r:"], [endbr[1]]]
        Rd = pre
        extra = [f"{lab}:", setm0('K', p, 1), "s_nop 0", ld('K', 1, 0), ld('K', 1, 1024), adv('K', 8192),
                 f"s_cmp_eq_u32 s28, s{S_2D}", f"s_cbranch_scc1 {lab}r",
                 setm0('V', 1-p, 1), "s_nop 0", ld('V', 1, 0), ld('V', 1, 1024), f"s_mov_b32 s29, 8192", f"s_branch {lab}r"]
        scal[14] = f"s_add_u32 s{S_VOFF}, s{S_VOFF}, s29"
        scal[20] = adv('V', 8192)
        scal[0] = "s_mov_b32 s29, 0"
    else:
        toks = "E rr E rr E D rr E rr E D ct E D E rc E D rc E rc E D rc E rr E D E rc E rc E E c J".split()
        scal = {2: "WAITLG P7", 4: setm0('K', p, 1), 11: adv('K', 16384), 12: setm0('V', 1-p, 0), 16: "WAITLG O7", 21: setm0('V', 1-p, 1),
                28: adv('V', 16384), 30: tm, 33: endbr[0], 34: "WAITLG N3"}
        D = [ld('K', 1, 0), ld('K', 1, 1024), ld('V', 0, 0), ld('V', 0, 1024), ld('V', 1, 0), ld('V', 1, 1024)]
        J = [[endbr[1]]]
        Rd = [(f"O{j}", rdV(p, 8+j)) for j in range(8)] + pre
    return pack(mf, toks, E, C, Rd, D, scal, {'t': tg, 'J': J}, {}), extra

def mask_ops(blocks, vy):
    L = []
    for reg, cst in blocks:
        for r in range(4): L.append(f"v_cmp_gt_i32 s[{44+2*r}:{45+2*r}], {cst+r}, v{vy}")
        for r in range(4): L.append(f"v_cndmask_b32 v{reg+r}, v{reg+r}, v{V_NEG}, s[{44+2*r}:{45+2*r}]")
    return L

def mask_block(T, p):
    L = []
    if T == 'd':
        L += [f"s_lshl_b32 s28, s{S_Q}, 5", f"s_sub_u32 s28, s{S_YA}, s28"]
        blocks = [(Sb(p, q, kv), 16*kv - 16*q) for kv in range(2) for q in range(2)]
    else:
        L += [f"s_lshl_b32 s28, s{S_Q}, 6", f"s_sub_u32 s28, s{S_YB}, s28"]
        blocks = [(Sb(p, (kv >> 1)*2+q, kv & 1), 16*kv - 16*q) for kv in range(4) for q in range(2)]
    L += [f"v_add_u32 v{V_T}, s28, v{V_Y}", "s_nop 4"]
    L += mask_ops(blocks, V_T)
    return L

def xmax(reg, tmp):
    return [f"v_mov_b32 v{tmp}, v{reg}", "s_nop 1", f"v_permlane32_swap_b32 v{reg}, v{tmp}", f"v_max_f32 v{reg}, v{reg}, v{tmp}",
            f"v_mov_b32 v{tmp}, v{reg}", "s_nop 1", f"v_permlane16_swap_b32 v{reg}, v{tmp}", f"v_max_f32 v{reg}, v{reg}, v{tmp}"]

def kv_init_state():
    return [f"s_mov_b32 s{S_KOFF}, 0", f"s_mov_b32 s{S_VOFF}, 0", f"s_add_u32 s{S_KM0}, s{S_W2K}, {hex(KBASE)}", f"s_add_u32 s{S_VM0}, s{S_W2K}, {hex(VBASE)}",
            f"s_mov_b32 s{S_Q}, -1", f"s_mov_b32 s{S_LIM}, 0", f"s_add_u32 s{S_EA}, s{S_2D}, 2",
            f"v_add_u32 v{V_KA}, {hex(KBASE)}, v{V_L16}", f"v_add_u32 v{V_VA}, {hex(VBASE)}, v{V_L16}"]

def o_epilogue(qs, tb):
    o = []; i = 0
    for q in qs:
        o += [f"v_rcp_f32 v{tb+24}, v{LS+4*q}", f"s_lshl_b32 s28, s{56+q}, 17"]
        for t in range(4):
            b = tb + 12*(i & 1); i += 1
            for hf in range(2):
                for r in range(4): o.append(f"v_accvgpr_read_b32 v{b+4*hf+r}, a{A_O+((2*t+hf)*4+q)*4+r}")
            for r in range(4): o.append(f"v_pk_mul_f32 v[{b+2*r}:{b+2*r+1}], v[{b+2*r}:{b+2*r+1}], v[{tb+24}:{tb+25}] op_sel_hi:[1,0]")
            for r in range(4): o.append(f"v_cvt_pk_bf16_f32 v{b+8+r}, v{b+2*r}, v{b+2*r+1}")
            o.append(f"buffer_store_dwordx4 v[{b+8}:{b+11}], v{V_L16}, s[{SRD_O}:{SRD_O+3}], s28 offen offset:{t*1024} sc1")
    return o

def attn_part(pre, events, fin_pre, after, st_done):
    L = []; A = L.append
    B = {}; X = {}
    c_single = f"s_cmp_ge_u32 s{S_Q}, s{S_2DM1}"
    c_md = f"s_cmp_ge_u32 s{S_Q}, s{S_2DM4}"
    c_ms = f"s_cmp_ge_u32 s{S_Q}, 32"
    B['PVd1'], X[1] = pv_block('d', 1, (c_single, "s_cbranch_scc1 K2_QKs1"))
    B['QKd1'] = qk_block('d', 1, (c_md, "s_cbranch_scc1 K2_Md1"))
    B['PVd0'], X[0] = pv_block('d', 0, (c_single, "s_cbranch_scc1 K2_QKs0"))
    B['QKd0'] = qk_block('d', 0, (f"s_cmp_lt_u32 s{S_Q}, s{S_LIM}", "s_cbranch_scc1 K2_PVd1"))
    B['PVs1'], _ = pv_block('s', 1, (f"s_cmp_ge_u32 s{S_Q}, 34", "s_cbranch_scc1 K2_done"))
    B['QKs1'] = qk_block('s', 1, (c_ms, "s_cbranch_scc1 K2_Ms1"))
    B['PVs0'], _ = pv_block('s', 0, (f"s_cmp_ge_u32 s{S_Q}, 33", "s_cbranch_scc1 K2_tail"))
    B['QKs0'] = qk_block('s', 0, (f"s_cmp_lt_u32 s{S_Q}, s{S_LIM}", "s_cbranch_scc1 K2_PVs1"))
    for T in 'ds':
        for p in range(2): B['M'+T+str(p)] = mask_block(T, p)
    A(".p2align 6")
    for n in ('PVd1', 'QKd1', 'PVd0', 'QKd0'):
        A(f"K2_{n}:"); L += B[n]
    A(c_md); A("s_cbranch_scc1 K2_Md0")
    evt = ["K2_EVT:", f"s_cmp_eq_u32 s{S_Q}, 0", "s_cbranch_scc1 K2_first",
           f"s_cmp_eq_u32 s{S_Q}, s{S_EA}", "s_cbranch_scc1 K2_evA", "K2_EVT2:",
           f"s_cmp_eq_u32 s{S_Q}, s{S_NE}", "s_cbranch_scc1 K2_evN", "K2_EVT3:",
           f"s_cmp_lt_u32 s{S_Q}, s{S_2D}", f"s_cselect_b32 s{S_LIM}, s{S_2DM4}, 32", f"s_min_u32 s{S_LIM}, s{S_LIM}, s{S_NE}", f"s_min_u32 s{S_LIM}, s{S_LIM}, s{S_EA}",
           f"s_cmp_le_u32 s{S_Q}, s{S_2D}", "s_cbranch_scc1 K2_PVd1", "s_branch K2_PVs1"]
    L += evt
    evA = o_epilogue((0, 1), 192) + [f"s_movk_i32 s{S_EA}, 99"]
    L += ["K2_evA:"] + evA + ["s_branch K2_EVT2"]
    A("K2_evN:"); A(f"s_add_u32 s{S_NE}, s{S_NE}, 4"); A(f"s_add_u32 s{S_EV}, s{S_EV}, 1")
    for k in range(1, len(events)): A(f"s_cmp_eq_u32 s{S_EV}, {k+1}"); A(f"s_cbranch_scc1 K2_ev{k}")
    for k, ev in enumerate(events):
        L += [f"K2_ev{k}:"] + ev + ([f"s_movk_i32 s{S_NE}, 99"] if k == len(events) - 1 else []) + ["s_branch K2_EVT3"]
    A("K2_first:")
    first = []
    first += [f"s_cmp_lg_u32 s{S_RETRY}, 0", "s_cbranch_scc1 K2_nomax", "s_nop 4"]
    for q in range(4):
        n = Sb(0, q, 0); m = V_T + q
        first += [f"v_max3_f32 v{m}, v{n}, v{n+1}, v{n+2}", f"v_max3_f32 v{m}, v{m}, v{n+3}, v{n+4}", f"v_max3_f32 v{m}, v{m}, v{n+5}, v{n+6}", f"v_max_f32 v{m}, v{m}, v{n+7}"]
    for q in range(4): first += xmax(V_T+q, V_T+4)
    for q in range(4):
        n = Sb(0, q, 0); m = V_T + q
        for r in range(4): first.append(f"v_sub_f32 v{CI+4*q+r}, 0, v{m}")
        for r in range(8): first.append(f"v_sub_f32 v{n+r}, v{n+r}, v{m}")
    first += ["K2_nomax:", "s_nop 4"]
    first += [rdK(1, j) for j in range(8)]
    first += flat(kv_simple('V', 2)) + [adv('K', 8192), togm0('K'), f"s_min_u32 s{S_LIM}, s{S_2DM4}, s{S_NE}"]
    E, C = sm_half(0, 0)
    first += E + C + ["s_waitcnt lgkmcnt(0)", "s_branch K2_QKd1"]
    L += first
    A("K2_Md1:"); L += B['Md1']; A("s_branch K2_PVd0")
    A("K2_Md0:"); L += B['Md0']; A("s_branch K2_EVT")
    A("K2_Ms1:"); L += B['Ms1']; A("s_branch K2_PVs0")
    A("K2_Ms0:"); L += B['Ms0']; A("s_branch K2_EVT")
    L += X[0] + X[1]
    A(".p2align 6")
    for n in ('PVs1', 'QKs1', 'PVs0', 'QKs0'):
        A(f"K2_{n}:"); L += B[n]
    A(c_ms); A("s_cbranch_scc1 K2_Ms0"); A("s_branch K2_EVT")
    E, C = sm_half(1, 1)
    tail = [f"s_add_u32 s{S_Q}, s{S_Q}, 1", "s_waitcnt vmcnt(0)", "s_barrier"] + [rdV(1, j) for j in range(8)] + E + C + ["s_waitcnt lgkmcnt(0)", "s_branch K2_PVs1"]
    A("K2_tail:"); L += tail
    fin = []
    fin += st_done
    fin += ["s_nop 7",
            f"v_add_f32 v{V_T+1}, v{LS}, v{LS+4}", f"v_add_f32 v{V_T+1}, v{V_T+1}, v{LS+8}", f"v_add_f32 v{V_T+1}, v{V_T+1}, v{LS+12}",
            f"v_mov_b32 v{V_T+2}, {fhex(float(os.environ.get('LTH', LTHRESH)))}",
            f"v_cmp_nle_f32 vcc, v{V_T+1}, v{V_T+2}", "s_nop 1",
            "s_cmp_lg_u64 vcc, 0", "s_cselect_b32 s28, 1, 0",
            f"v_mov_b32 v{V_T}, s28", f"s_lshl_b32 s29, s{S_W}, 2", f"s_add_u32 s29, s29, {hex(KBASE)}", f"v_mov_b32 v{V_T+1}, s29",
            f"ds_write_b32 v{V_T+1}, v{V_T}", f"v_mov_b32 v{V_T+1}, {hex(KBASE)}",
            "s_waitcnt vmcnt(0) lgkmcnt(0)", "s_barrier",
            f"ds_read_b128 v[{16}:{19}], v{V_T+1}"]
    fin += ["s_waitcnt lgkmcnt(0)", "v_or3_b32 v16, v16, v17, v18", "v_or_b32 v16, v16, v19", "s_nop 0", "v_readfirstlane_b32 s28, v16",
            f"s_andn2_b32 s28, s28, s{S_RETRY}", "s_cmp_lg_u32 s28, 0" if not os.environ.get("DROP") else "s_cmp_eq_u32 s28, 77", "s_cbranch_scc1 K2_slow"]
    fin += fin_pre
    fin += o_epilogue((2, 3), 192)
    finA = [f"s_cmp_eq_u32 s{S_EA}, 99", "s_cbranch_scc1 K2_finB"] + o_epilogue((0, 1), 32) + ["K2_finB:"]
    fin += finA
    sl = ["K2_slow:", f"s_mov_b32 s{S_RETRY}, 1", "s_barrier"]
    for q in range(4): sl.append(f"v_mov_b32 v{LS+q}, v{V_NEG}")
    sl += [f"v_add_u32 v{V_KA}, {hex(KBASE)}, v{V_L16}", f"s_mov_b32 s{S_KOFF}, 0", f"s_mov_b32 s{S_Q}, 0", f"s_lshr_b32 s{S_KCNT}, s{SRD_K+2}, 13",
           f"s_lshl_b32 s62, s58, 4",
           "K2_slowloop:", f"s_add_u32 m0, s{S_W2K}, {hex(KBASE)}", "s_nop 0",
           f"buffer_load_dwordx4 v{V_KVD}, s[{SRD_K}:{SRD_K+3}], s{S_KOFF} offen{SC} lds",
           f"buffer_load_dwordx4 v{V_KVD}, s[{SRD_K}:{SRD_K+3}], s{S_KOFF} offen offset:1024{SC} lds",
           f"s_add_u32 s{S_KOFF}, s{S_KOFF}, 8192", "s_waitcnt vmcnt(0)", "s_barrier"]
    sl += [rdK(0, j) for j in range(8)] + ["s_waitcnt lgkmcnt(0)", "s_barrier"]
    for kv in range(2):
        for q in range(4):
            for ds in range(4):
                sl.append(mfma16(vr(Sb(0, q, kv), 4), Kf(kv*4+ds), Qf(q, ds), "0" if ds == 0 else None))
    sl += [f"s_lshl_b32 s28, s{S_Q}, 5", f"s_sub_u32 s29, s{S_YA}, s28", f"v_add_u32 v{V_T}, s29, v{V_Y}",
           f"s_sub_u32 s29, s62, s28", f"v_add_u32 v{V_T+1}, s29, v{V_Y}", "s_nop 7"]
    sl += mask_ops([(Sb(0, q, kv), 16*kv - 16*q) for kv in range(2) for q in range(2)], V_T)
    sl += mask_ops([(Sb(0, 2+q, kv), 16*kv - 16*q) for kv in range(2) for q in range(2)], V_T+1)
    for q in range(4):
        n = Sb(0, q, 0)
        for r in range(4): sl.append(f"v_max3_f32 v{LS+q}, v{LS+q}, v{n+2*r}, v{n+2*r+1}")
    sl += [f"s_add_u32 s{S_Q}, s{S_Q}, 1", f"s_cmp_lt_u32 s{S_Q}, s{S_KCNT}", "s_cbranch_scc1 K2_slowloop"]
    for q in range(4): sl += xmax(LS+q, V_T+4)
    for q in range(4):
        for r in range(4): sl.append(f"v_sub_f32 v{CI+4*q+r}, 0, v{LS+q}")
    for r in range(16): sl.append(f"v_mov_b32 v{LS+r}, 0")
    for r in range(128): sl.append(f"v_accvgpr_write_b32 a{r}, 0")
    sl += kv_init_state()
    for wch, idx in (('K', 0), ('K', 1), ('V', 0), ('K', 2), ('V', 1)): sl += flat(kv_simple(wch, idx))
    sl += ["s_waitcnt vmcnt(8)", "s_barrier"] + [rdK(0, j) for j in range(8)] + ["s_waitcnt lgkmcnt(0)", "s_branch K2_QKd0"]
    L += sl
    A("K2_done:"); L += fin + after
    for i in (0, 3, 7):
        D2 = 4*i + 4
        tr = list(pre)
        def qk(h):
            T = 'd' if h < D2 else 's'
            t = list(B['QK'+T+str(h & 1)])
            if (T == 'd' and h + 4 >= D2) or (T == 's' and h >= 32): t = t + B['M'+T+str(h & 1)]
            if h == D2 + 2: t = t + evA
            if h >= 2 and (h - 2) % 4 == 0 and (h - 2)//4 < len(events): t = t + events[(h - 2)//4]
            return t
        def pv(h):
            t = list(B["PV"+("d" if h < D2 else "s")+str(h & 1)])
            if h < D2 and h + 4 >= D2:
                k = t.index(f"K2_X{h&1}r:")
                x = X[h & 1] if h + 3 >= D2 else X[h & 1][:8]
                t = t[:k] + x + t[k:]
            return t
        tr += qk(0) + first + qk(1)
        for h in range(0, 32): tr += pv(h) + qk(h+2)
        tr += pv(32) + tail + pv(33) + fin + (after if i == 0 else sl)
        check_trace(resolve_waits(tr), f"k2 i={i}")
    return L
```

```python
from common import *
from attn import *
import k0

V_CA0, V_CA1, V_CV0, V_CV1 = 5, 6, 7, 12
V_TR2 = 24; V_WV0 = 28; V_SIG = 29; V_ONE = 30; V_POLL = 31; V_HST = 0; V_MODA = 23
SRD_C = 12; SRD_WQ = 68; SRD_WS = 72; SRD_DBG = 76
A_C = 128; A_W = 192; A_N = 224; A_CS = 32; A_DUM = 249
S_M0W = 40; S_M0C = 41; S_XF = 63; S_WOFF = 43
CBASE = [0x20000, 0x18000]
HUGE = 0x7ffffff0

def acc_idx(n, kv):
    if n < 8: return 2*((n >> 1)*4 + kv) + (n & 1)
    return 2*(16 + (n - 8)*2 + (kv >> 1)) + (kv & 1)
def accr(a): return vr(32 + 4*a, 4) if a < 56 else ar(4*(a-56), 4)
def cf(c, kv, k): return ar(A_C + (c & 1)*32 + (kv*2+k)*4, 4)
def wf(n, k): return ar(A_W + ((n & 3)*2+k)*4, 4)
def hf(c, q, k): return ar((((c+1) & 3)*8 + q*2 + k)*4, 4)
def qacc(d, q): return vr(QACC + (d*4+q)*4, 4)

def rd_w(sc, grp, n, tag):
    st = sc % 3
    L = []
    for k in range(2):
        base = A_W + ((n & 3)*2+k)*4
        for t in range(2):
            av = (V_TR2 if st == 2 else V_TR) + (n & 3)
            L.append(f"ds_read_b64_tr_b16 {ar(base+2*t,2)}, v{av} offset:{(st&1)*32768 + grp*8192 + k*4096 + t*2048} ; tag={tag}")
    return L
def w_issue(sc):
    L = []
    srd_ = SRD_W if sc < 8 else SRD_WQ
    if sc == 8: L.append(f"v_subrev_u32 v{V_WV}, {8*64*8192}, v{V_WV}")
    for j in range(8):
        if j % 4 == 0: L.append(f"s_add_u32 m0, s{S_M0W}, {(sc % 3)*32768 + (j >> 2)*4096}")
        L.append(f"buffer_load_dwordx4 v{V_WV}, s[{srd_}:{srd_+3}], s{44+j} offen offset:{(j&3)*1024} lds ; tag=W{sc}")
    L.append(f"v_add_u32 v{V_WV}, {(64 if sc < 8 else 128)*8192}, v{V_WV}")
    return L
def c_issue(c):
    L = []
    for j in range(8):
        if j % 4 == 0: L.append(f"s_add_u32 m0, s{S_M0W}, {CBASE[c & 1] + (j >> 2)*4096}")
        L.append(f"buffer_load_dwordx4 v{V_CV1 if j & 1 else V_CV0}, s[{SRD_C}:{SRD_C+3}], s{52+j} offen offset:{(j&3)*1024} lds ; tag=C{c}")
    L += [f"v_add_u32 v{V_CV0}, 128, v{V_CV0}", f"v_add_u32 v{V_CV1}, 128, v{V_CV1}"]
    return L
def rd_c(c):
    return [f"ds_read_b128 {cf(c, kv, k)}, v{V_CA0 + k} offset:{CBASE[c & 1] - 0x18000 + kv*2048} ; tag=RC{c}" for kv in range(4) for k in range(2)]
def h_issue(c):
    L = [f"buffer_load_dwordx4 {hf(c,q,k)}, v{V_L16}, s[{SRD_WS}:{SRD_WS+3}], s{52+q} offen offset:{((2*c+k)&3)*1024} sc1 ; tag=H{c}" for q in range(4) for k in range(2)]
    if c & 1: L += [f"s_add_u32 s{52+q}, s{52+q}, 4096" for q in range(4)]
    return L
def nop_m0(L):
    out = []
    for x in L:
        out.append(x)
        if x.startswith("s_add_u32 m0"): out.append("s_nop 0")
    return out

spins = []
SLEEP = int(os.environ.get('SLEEP', '8'))
def poll_addr(n8):
    if not n8: return [], V_SIG
    return [f"v_lshrrev_b32 v{V_POLL}, 3, v{V_LANE}", f"v_lshl_or_b32 v{V_POLL}, v{V_POLL}, 26, s{S_WOFF}", f"v_lshl_or_b32 v{V_POLL}, v{V_LANE}, 7, v{V_POLL}"], V_POLL
def poll_issue(srd_, soff, tag, n8=False):
    pre, va = poll_addr(n8)
    return pre + [f"buffer_load_dword v{V_POLL}, v{va}, s[{srd_}:{srd_+3}], {soff} offen sc1" + (f" ; tag={tag}" if tag else "")]
def poll_check(name, srd_, soff, target, n8=False, bar=True):
    msk = 0xff if n8 else 1
    spins.append([f"KA_spin_{name}:", f"s_cmp_lg_u32 s{S_W}, 0", f"s_cbranch_scc1 KA_ret_{name}",
                  "s_mov_b32 s29, 0x20000", f"KA_spinl_{name}:", f"s_sleep {SLEEP}"] + poll_issue(srd_, soff, None, n8) +
                 ["s_waitcnt vmcnt(0)", f"v_cmp_gt_u32 vcc, {target}, v{V_POLL}", "s_sub_u32 s29, s29, 1", "s_cmp_eq_u32 s29, 0", f"s_cbranch_scc1 KA_ret_{name}",
                  f"s_and_b32 s28, vcc_lo, {msk}", "s_cmp_lg_u32 s28, 0", f"s_cbranch_scc1 KA_spinl_{name}", f"s_branch KA_ret_{name}"])
    return [f"v_cmp_gt_u32 vcc, {target}, v{V_POLL}", (f"s_and_b32 s28, vcc_lo, {msk}", 1), f"s_cmp_lg_u32 s28, 0\ns_cbranch_scc1 KA_spin_{name}", f"KA_ret_{name}:"] + (["s_barrier"] if bar else [])
def signal(srd_, soff, vaddr=V_SIG, val=V_ONE): return f"buffer_atomic_add v{val}, v{vaddr}, s[{srd_}:{srd_+3}], {soff} offen"

ORDER = int(os.environ.get("ORDER", "1"))
WARM = int(os.environ.get("WARM", "1"))
DST = float(os.environ.get("DST", "6"))
WARMS = {0: [('wuk', 512*8192), ('wuv', 512*8192), ('ckv', 2048*1024), ('code', 0)], 1: [('wq', 640*8192)], 5: [('wo', 4096*1280), ('wd', 1728*1280)], 6: [('wg', 640*3456), ('wu', 640*3456)]}
WARMN = [0]
PM_GAP = int(os.environ.get("PM_GAP", "24"))
WQC = int(os.environ.get("WQC", "4"))
HS_GAP = int(os.environ.get("HS_GAP", "44"))
STPOS = os.environ.get("STPOS", "p,c7,q").split(",")
def pst(name):
    if not STAMPS or name not in STPOS: return []
    return stamp(1 + STPOS.index(name)) + ["s_waitcnt lgkmcnt(0)"]

A_MW = 72; A_S = 244; A_X = 96
MACC = 14
V_MU, V_RS = 30, 4

A_PF = 124; A_MW2 = 224
_dum = [0]
PFS = os.environ.get('PFS', 'mqi')
def dum():
    _dum[0] += 1
    return f"a{A_DUM + _dum[0] % 7}"
def pfw(step, v):
    if step < 4 and 'w' not in PFS: return []
    if step >= 4 and 'q' not in PFS: return []
    if step < 4: return [f"s_mov_b32 s41, {step*128*8192}", f"buffer_load_dword {dum()}, v{v}, s[{SRD_W}:{SRD_W+3}], s41 offen"]
    return [f"s_lshr_b32 s41, s{S_W}, 1", "s_lshl_b32 s41, s41, 19", f"s_add_u32 s41, s41, {(step-4)*256*8192}", f"buffer_load_dword {dum()}, v{v}, s[{SRD_WQ}:{SRD_WQ+3}], s41 offen"]
def pfc(step, v): return [] if 'c' not in PFS else [f"buffer_load_dword {dum()}, v{v}, s[{SRD_C}:{SRD_C+3}], 0 offen offset:{step*256}"]
def pf(step, v):
    if not WARM: return []
    L = [f"v_accvgpr_read_b32 v{v}, a{A_PF}"] + pfw(step, v)
    if step < 4: L += [f"v_accvgpr_read_b32 v{v}, a{A_PF+1}"] + pfc(step, v)
    return L

def prologue():
    L = []; A = L.append
    A("s_cmp_ge_u32 s2, 256"); A("s_cbranch_scc1 KA_end")
    L += stamp_init()
    A("s_load_dwordx4 s[16:19], s[0:1], 0")
    A("s_load_dwordx4 s[20:23], s[0:1], 24")
    A("s_load_dwordx4 s[32:35], s[0:1], 80")
    A("s_load_dwordx4 s[36:39], s[0:1], 104")
    A(ldptr(6, 'wq'))
    if 'i' in PFS:
        A("s_getpc_b64 s[8:9]"); A(f"s_mov_b32 s10, KA_end-{NAME}_kernel-64"); A("s_mov_b32 s11, 0x20000")
        A("s_lshr_b32 s28, s2, 3"); A("s_lshl_b32 s28, s28, 7"); A("v_lshlrev_b32 v1, 12, v0")
        A(f"buffer_load_dword {dum()}, v1, s[8:11], s28 offen")
    L += wave_id(S_W, 1)
    A(f"v_and_b32 v{V_LANE}, 63, v0")
    A(f"s_and_b32 s{S_HEAD}, s2, 7"); A(f"s_lshl_b32 s{S_HEAD}, s{S_HEAD}, 2"); A("s_bfe_u32 s28, s2, 0x20003"); A(f"s_add_u32 s{S_HEAD}, s{S_HEAD}, s28")
    A(f"s_lshr_b32 s{S_I}, s2, 5")
    A(f"s_lshl_b32 s{S_M0W}, s{S_W}, 13")
    for j in range(8):
        A(f"s_mov_b32 s{44+j}, {(NATROW[j&3] + 32*(j>>2))*8192 - (j&3)*1024}")
        A(f"s_mov_b32 s{52+j}, {j*8192 - (j&3)*1024}")
    A("s_movk_i32 s28, 8192")
    L += wdma_voff(V_WV, V_LANE, 13, 14, "s28", nat=True)
    A(f"v_lshrrev_b32 v13, 3, v{V_LANE}"); A("v_lshrrev_b32 v16, 1, v13"); A(f"v_and_b32 v15, 7, v{V_LANE}")
    A("v_xor_b32 v14, v16, v15"); A("v_lshlrev_b32 v14, 4, v14"); A(f"v_lshl_add_u32 v{V_CV0}, v13, 10, v14")
    A(f"v_xor_b32 v{V_CV1}, 64, v{V_CV0}")
    A(f"s_lshl_b32 s30, s{S_I}, 18"); A(f"s_lshl_b32 s29, s{S_W}, 16"); A("s_add_u32 s30, s30, s29")
    A(f"s_lshl_b32 s28, s{S_HEAD}, 8"); A(f"s_and_b32 s29, s{S_W}, 1"); A("s_lshl_b32 s29, s29, 7"); A("s_add_u32 s28, s28, s29")
    A("v_and_b32 v36, 0xfe, v0")
    A("s_lshr_b32 s31, s2, 3"); A("s_lshl_b32 s31, s31, 1"); A(f"s_and_b32 s41, s{S_W}, 1"); A("s_add_u32 s31, s31, s41"); A("s_lshl_b32 s31, s31, 13")
    A("s_and_b32 s41, s28, 0x3ff"); A("s_sub_u32 s31, s31, s41")
    A("v_lshlrev_b32 v22, 19, v13"); A("v_lshl_add_u32 v22, v15, 7, v22"); A("v_add_u32 v22, s31, v22"); A("v_lshl_or_b32 v22, v16, 26, v22")
    A(f"v_lshrrev_b32 v23, 1, v{V_LANE}"); A(f"s_and_b32 s31, s{S_HEAD}, 3"); A("s_lshl_b32 s31, s31, 14"); A(f"v_lshl_add_u32 v23, v23, 10, s31")
    A(f"v_and_b32 v17, 1, v{V_LANE}"); A("v_lshl_add_u32 v23, v17, 7, v23"); A(f"v_lshrrev_b32 v17, 5, v{V_LANE}"); A("v_lshl_or_b32 v23, v17, 26, v23")
    A("s_waitcnt lgkmcnt(0)")
    L += srd(SRD_C, 18, 65536, "s30")
    A(f"s_cmp_ge_u32 s{S_W}, 2"); A("s_cselect_b32 s20, s22, s20"); A("s_cselect_b32 s21, s23, s21")
    A(f"s_add_u32 s{SRD_W}, s20, s28"); A(f"s_addc_u32 s{SRD_W+1}, s21, 0"); A(f"s_sub_u32 s{SRD_W+2}, {512*8192}, s28"); A(f"s_mov_b32 s{SRD_W+3}, 0x20000")
    if WARM: L += pfw(0, 22) + pfc(0, 23)
    L += srd(68, 32, 1280)
    for i in range(5): A(f"buffer_load_ushort v{40+i}, v36, s[68:71], 0 offen offset:{i*256} ; tag=MC")
    L += nop_m0(w_issue(0) + c_issue(0))
    if WARM: L += pfw(1, 22) + pfc(1, 23)
    A(f"v_accvgpr_write_b32 a{A_PF}, v22"); A(f"v_accvgpr_write_b32 a{A_PF+1}, v23")
    L += pst("p0")
    mark0 = len(L)
    A(f"v_lshlrev_b32 v{V_L16}, 4, v{V_LANE}")
    A("s_mov_b32 s4, s38"); A("s_mov_b32 s5, s39")
    A(f"s_lshr_b32 s29, s{S_W}, 1"); A("s_lshl_b32 s29, s29, 19"); A("s_add_u32 s28, s28, s29")
    A(f"s_add_u32 s{SRD_WQ}, s6, s28"); A(f"s_addc_u32 s{SRD_WQ+1}, s7, 0"); A(f"s_sub_u32 s{SRD_WQ+2}, {640*8192}, s28"); A(f"s_mov_b32 s{SRD_WQ+3}, 0x20000")
    L += srd(SRD_WS, 4, 0x1000000); L += srd(SRD_DBG, 36, 256)
    A(f"s_lshl_b32 s60, s{S_I}, 5"); A(f"s_add_u32 s60, s60, s{S_HEAD}")
    L += srd(64, 34, 640*7680)
    A("s_lshr_b32 s28, s2, 3"); A("s_lshl_b32 s28, s28, 2"); A(f"s_add_u32 s28, s28, s{S_W}"); A(f"s_mul_i32 s28, s28, {5*7680}")
    A("s_and_b32 s29, s2, 7"); A("s_lshl_b32 s29, s29, 7"); A("s_add_u32 s28, s28, s29")
    A(f"v_and_b32 v13, 7, v{V_LANE}"); A("v_mul_u32_u24 v14, 7680, v13"); A(f"v_lshrrev_b32 v15, 3, v{V_LANE}"); A("v_lshl_add_u32 v14, v15, 10, v14"); A("v_add_u32 v14, s28, v14")
    A("v_add_u32 v13, 3, v13"); A("v_lshrrev_b32 v13, 3, v13"); A("v_lshl_or_b32 v14, v13, 26, v14")
    A(f"v_accvgpr_write_b32 a{A_PF-1}, v14")
    A("v_add_u32 v13, 5, v15"); A("v_lshrrev_b32 v13, 3, v13"); A("v_lshl_or_b32 v14, v13, 26, v14")
    if 'm' in PFS: A(f"buffer_load_dword {dum()}, v14, s[64:67], 0 offen")
    A("s_cmp_lt_u32 s60, 80"); A("s_cselect_b32 s66, s66, 0")
    L += srd(SRD_V, 16, 2048*1280)
    A("v_lshrrev_b32 v33, 1, v0"); A("s_movk_i32 s28, 7680"); A("v_mul_lo_u32 v28, v33, s28"); A("v_and_b32 v35, 1, v0")
    A("v_lshl_add_u32 v28, v35, 4, v28"); A("s_lshl_b32 s29, s60, 5"); A("v_add_u32 v28, s29, v28"); A(f"v_accvgpr_write_b32 a{A_PF+2}, v28")
    A(f"v_lshrrev_b32 v37, 5, v{V_LANE}"); A("s_lshl_b32 s28, s2, 3"); A(f"s_lshl_b32 s29, s{S_W}, 1"); A("s_add_u32 s28, s28, s29"); A("v_add_u32 v37, s28, v37")
    A(f"v_and_b32 v38, 31, v{V_LANE}"); A("s_movk_i32 s28, 1280"); A("v_mul_lo_u32 v31, v37, s28"); A("v_lshl_add_u32 v30, v38, 3, v31"); A("v_lshl_add_u32 v31, v38, 4, v31")
    A(f"v_mov_b32 v13, {hex(HUGE)}"); A("v_cmp_eq_u32 vcc, 0, v0"); A("s_nop 1"); A(f"v_cndmask_b32 v{V_SIG}, v13, 0, vcc")
    A(f"s_getreg_b32 s{S_XF}, hwreg(HW_REG_XCC_ID, 0, 3)"); A(f"s_lshl_b32 s{S_XF}, s{S_XF}, 2")
    A("v_lshlrev_b32 v15, 7, v0"); A("s_cmp_eq_u32 s2, 0"); A("s_cselect_b32 s28, 64, 0"); A("v_cmp_gt_u32 vcc, s28, v0"); A("v_mov_b32 v16, 0"); A("v_mov_b32 v17, 0"); A("v_mov_b32 v18, 0"); A("v_mov_b32 v19, 0")
    A(f"s_movk_i32 s28, {WS_CNT}"); A("v_cndmask_b32 v15, v13, v15, vcc"); A(f"s_movk_i32 s29, {WS_CNT + 8192}")
    A(f"buffer_store_dwordx4 v[16:19], v15, s[{SRD_WS}:{SRD_WS+3}], s28 offen sc1 ; tag=ZI")
    A(f"buffer_store_dwordx4 v[16:19], v15, s[{SRD_WS}:{SRD_WS+3}], s29 offen sc1 ; tag=ZI")
    A(f"s_cmp_eq_u32 s{S_W}, 0"); A(f"s_cselect_b32 s{S_WOFF}, 0, {1 << 26}")
    A("s_cmp_eq_u32 s2, 0"); A("s_cselect_b32 s31, 0, 0x1000")
    L += tr_addr(V_TR, V_LANE, 13, 14)
    for b in range(4): A(f"v_add_u32 v{V_TR2+b}, 0x10000, v{V_TR+b}")
    A(f"v_and_b32 v13, 15, v{V_LANE}"); A(f"v_lshrrev_b32 v14, 4, v{V_LANE}"); A("v_lshrrev_b32 v15, 1, v13")
    A("v_xor_b32 v14, v14, v15"); A("v_lshlrev_b32 v14, 4, v14"); A("v_lshl_add_u32 v13, v13, 7, v14")
    A(f"s_add_u32 s28, s{S_M0W}, 0x18000"); A(f"v_add_u32 v{V_CA0}, s28, v13"); A(f"v_xor_b32 v{V_CA1}, 64, v{V_CA0}")
    A("v_lshrrev_b32 v13, 4, v37"); A("v_mul_u32_u24 v13, 20, v13"); A("v_lshrrev_b32 v14, 3, v38"); A("v_add_u32 v13, v13, v14"); A("v_lshlrev_b32 v13, 6, v13")
    A("v_bfe_u32 v14, v38, 1, 2"); A("v_lshl_add_u32 v13, v14, 4, v13"); A("v_and_b32 v14, 15, v37"); A("v_add_u32 v13, v13, v14"); A("v_lshlrev_b32 v13, 4, v13")
    A("v_and_b32 v14, 1, v38"); A("v_lshl_add_u32 v13, v14, 3, v13"); A(f"v_add_u32 v13, {WS_H + 16384}, v13"); A(f"v_accvgpr_write_b32 a{A_PF+3}, v13")
    A("v_lshrrev_b32 v13, 4, v37"); A("v_mul_u32_u24 v13, 20480, v13"); A("v_lshl_add_u32 v13, v38, 8, v13"); A("v_and_b32 v14, 15, v37"); A("v_lshl_add_u32 v13, v14, 4, v13")
    A(f"v_add_u32 v{V_HST}, {WS_H}, v13")
    A(f"s_lshl_b32 s{S_W2K}, s{S_W}, 11")
    A(f"s_lshl_b32 s{S_2D}, s{S_I}, 2"); A(f"s_add_u32 s{S_2D}, s{S_2D}, 4")
    A(f"s_sub_u32 s{S_2DM1}, s{S_2D}, 1"); A(f"s_sub_u32 s{S_2DM4}, s{S_2D}, 4"); A(f"s_mov_b32 s{S_RETRY}, 0")
    A("s_lshr_b32 s28, s2, 4"); A("s_sub_u32 s29, 15, s28"); A("s_min_u32 s28, s28, s29"); A("s_lshl_b32 s28, s28, 3"); A("s_and_b32 s29, s2, 7"); A("s_add_u32 s28, s28, s29")
    A("s_lshl_b32 s28, s28, 7"); A(f"s_add_u32 s24, s28, {WS_CNT + 8*128}")
    A(f"s_lshl_b32 s28, s{S_I}, 10"); A(f"s_add_u32 s25, s28, {WS_CNT + 8*128}")
    A(f"s_lshl_b32 s28, s{S_HEAD}, 7"); A(f"s_add_u32 s62, s28, {WS_CNT + 72*128}")
    A(f"s_lshl_b32 s28, s{S_I}, 16"); A(f"s_lshl_b32 s29, s{S_W}, 14"); A("s_add_u32 s32, s28, s29")
    for j in range(1, 4): A(f"s_add_u32 s{32+j}, s32, {j*4096}")
    A("s_and_b32 s28, s60, 7"); A("s_lshl_b32 s28, s28, 7"); A(f"s_add_u32 s28, s28, {WS_CNT}")
    A("s_cmp_lt_u32 s60, 80"); A(f"s_cselect_b32 s61, s28, 0x2000000")
    A("s_mul_i32 s28, s60, 1639"); A("s_lshr_b32 s28, s28, 16")
    A("s_mov_b32 s80, 0"); A("s_cmp_eq_u32 s28, 1"); A("s_cmov_b32 s80, 1.0"); A("s_cmp_eq_u32 s28, 4"); A("s_cmov_b32 s80, 1.0")
    A("s_mov_b32 s81, 1.0"); A("s_cmp_eq_u32 s28, 0"); A(f"s_cmov_b32 s81, {fhex(QSCALE)}")
    A("s_cmp_lt_u32 s60, 80"); A("s_cselect_b32 s82, 16, 0")
    A("s_sub_u32 s29, s60, 80"); A("s_cmp_lt_u32 s29, 160"); A("s_cselect_b32 s6, 16, 0"); A(f"s_cselect_b32 s7, {640*7680}, 0")
    A("s_mul_i32 s29, s28, 40"); A("s_sub_u32 s29, s60, s29"); A("s_lshr_b32 s36, s29, 1"); A("s_lshl_b32 s36, s36, 10")
    A("s_and_b32 s29, s29, 1"); A("s_lshl_b32 s29, s29, 3"); A("s_add_u32 s36, s36, s29"); A(f"s_add_u32 s36, s36, {WS_VEC}")
    A("s_cmp_eq_u32 s28, 3"); A("s_cselect_b32 s29, 16, 0"); A("s_add_u32 s36, s36, s29")
    A("s_sub_u32 s28, s28, 3"); A("s_cmp_lt_u32 s28, 2"); A("s_cselect_b32 s83, 16, 0")
    A(f"s_cmp_lg_u32 s{S_W}, 0"); A("s_cmov_b32 s82, 0"); A("s_cmov_b32 s83, 0"); A("s_cmov_b32 s6, 0"); A("s_lshl_b32 s60, s60, 6")
    A("WAITVM MC")
    for i in range(5):
        A(f"v_lshlrev_b32 v{40+i}, 16, v{40+i}"); A(f"v_mul_f32 v{70+i}, {fhex(-math.log2(math.e))}, v{40+i}")
    for i in range(5): A(f"v_exp_f32 v{70+i}, v{70+i}")
    for i in range(5): A(f"v_add_f32 v{70+i}, 1.0, v{70+i}")
    for i in range(5): A(f"v_rcp_f32 v{70+i}, v{70+i}")
    for i in range(5): A(f"v_mul_f32 v{70+i}, v{70+i}, v{40+i}")
    for i in range(5): A(f"v_cvt_pk_bf16_f32 v{70+i}, v{70+i}, v{70+i}");
    for i in range(5): A(f"v_lshlrev_b32 v{40+i}, 16, v{70+i}")
    for i in range(5): A(f"v_accvgpr_write_b32 a{A_S+i}, v{40+i}")
    L += nop_m0(w_issue(1) + c_issue(1))
    L += pst("p3")
    A("WAITVM W0,C0"); A("s_barrier")
    L += pst("p")
    L += rd_c(0) + rd_w(0, 0, 0, "P0") + ["s_waitcnt lgkmcnt(2)"] + rd_w(0, 0, 1, "P1") + ["WAITLG P0"]
    return L

def rsum32(r, t):
    o = []
    for sh in (8, 4, 2, 1): o += [(f"v_add_f32 v{r}, v{r}, v{r} row_ror:{sh}", 2)]
    o += [f"v_mov_b32 v{t}, v{r}", (f"v_permlane16_swap_b32 v{r}, v{t}", 2), f"v_add_f32 v{r}, v{r}, v{t}"]
    return o
def xunpack(j): return [f"v_accvgpr_read_b32 v22, a{A_X+j}", "v_lshlrev_b32 v23, 16, v22", "v_and_b32 v22, 0xffff0000, v22"]
def sig(srd_, soff): return ["v_mov_b32 v13, 1", signal(srd_, soff, val=13)]

def kv_store(i, reg):
    srd_ = SRD_K if i < 16 else SRD_V
    o = ((i & 3)*4 + (i >> 2))*1024 if i < 16 else ((i & 1)*8 + ((i - 16) >> 1))*1024
    return [f"buffer_store_dwordx4 v[{reg}:{reg+3}], v{V_L16}, s[{srd_}:{srd_+3}], s{32 + (o >> 12)} offen offset:{o & 0xfff} ; tag=KVST"]
def kv_cvt(i, dst):
    L = []
    for hfi in range(2):
        a = 2*i + hfi
        if a < 56: r = 32 + 4*a
        else:
            r = 13 + 4*hfi
            L += [f"v_accvgpr_read_b32 v{r+e}, a{4*(a-56)+e}" for e in range(4)]
        L += [f"v_cvt_pk_bf16_f32 v{dst+2*hfi}, v{r}, v{r+1}", f"v_cvt_pk_bf16_f32 v{dst+2*hfi+1}, v{r+2}, v{r+3}"]
    return L
def kv_dst(i): return 32 + 4*i if i < 24 else 32 + 4*(i - 24)

def k1_chunk(c):
    mf = []
    for n in range(16):
        for kv in range(4):
            for k in range(2):
                a, b = (wf(n, k), cf(c, kv, k)) if n < 8 else (cf(c, kv, k), wf(n, k))
                mf.append(mfma16(accr(acc_idx(n, kv)), a, b, "0" if (c == 0 and k == 0) else None))
    P = Packer(mf)
    for n in range(14):
        P.stream(rd_w(c, (n+2) >> 2, n+2, f"R{c}_{n+2}"), start=n*8, limit=n*8+3)
        P.stream([f"WAITLG {'P1' if n == 0 else f'R{c}_{n+1}'}"], start=n*8+7, limit=n*8+7)
    need = f"W{c+1}" + (f",C{c+1}" if c < 7 else ",H0") + {0: ",MW", 1: ",X", 3: ",CS"}.get(c, "")
    P.stream([f"WAITVM {need} LG R{c}_15", "s_barrier"], start=112, limit=113)
    nx = rd_w(c+1, 0, 0, "P0") + (rd_c(c+1) + ["WAITLG P0"] if c < 7 else []) + rd_w(c+1, 0, 1, "P1")
    P.stream(nx, start=114, limit=123)
    P.stream([f"WAITLG {'RC%d' % (c+1) if c < 7 else 'P0'}"], start=127, limit=127)
    wi, ci = w_issue(c+2), (c_issue(c+2) if c + 2 < 8 else [])
    def dma(dm, g, end=104):
        nd = sum(1 for x in dm if not isinstance(x, tuple) and x.startswith(('buffer', 'global')))
        return P.stream(dm, start=g+1, limit=111, dstep=min(DST, (end - g) / nd))
    def mw_loads(base, tag):
        o = []
        for i in range(5): o += [f"s_mov_b32 s28, {i*128*7680}", f"buffer_load_dwordx4 a[{base+4*i}:{base+4*i+3}], v28, s[64:67], s28 offen ; tag={tag}"]
        return o
    def mod_fma(base):
        m = []
        for i in range(5):
            m += [f"v_accvgpr_read_b32 v28, a{A_S+i}"]
            for d in range(4):
                op = "v_mul_f32" if i == 0 else "v_fmac_f32"
                m += [f"v_accvgpr_read_b32 v22, a{base+4*i+d}", "v_lshlrev_b32 v23, 16, v22", "v_and_b32 v22, 0xffff0000, v22",
                      f"{op} v{MACC+2*d}, v23, v28", f"{op} v{MACC+2*d+1}, v22, v28"]
        for k_, sh in enumerate((2, 4)):
            for e in range(8): m.append((f"v_add_f32 v{MACC+e}, v{MACC+e}, v{MACC+e} row_ror:{sh}", 1 if (k_ == 0 and e == 0) else 0))
        return m
    def mod_fin(scr, snl, vec):
        m = [f"v_add_f32 v{MACC+e}, v{MACC+e}, v{MACC+e} row_ror:8" for e in range(8)]
        m += [f"v_lshrrev_b32 v13, 4, v{V_LANE}", "v_lshlrev_b32 v13, 6, v13", f"v_and_b32 v22, 1, v{V_LANE}", "v_lshl_add_u32 v13, v22, 5, v13", f"v_add_u32 v13, s{S_M0W}, v13",
              f"v_add_u32 v13, {scr}, v13",
              f"ds_write_b128 v13, v[{MACC}:{MACC+3}] ; tag=SW", f"ds_write_b128 v13, v[{MACC+4}:{MACC+7}] offset:16 ; tag=SW",
              f"v_and_b32 v22, 15, v{V_LANE}", f"v_lshrrev_b32 v23, 4, v{V_LANE}", "v_lshlrev_b32 v28, 2, v22", "v_lshl_add_u32 v13, v23, 13, v28", f"v_add_u32 v13, {scr}, v13",
              ("WAITLG SW", 2), "s_barrier"]
        m += [f"ds_read_b32 v{MACC+r}, v13 offset:{r*64} ; tag=SR" for r in range(4)]
        m += [f"v_cmp_gt_u32 s[84:85], s{snl}, v{V_LANE}", f"v_mov_b32 v23, {hex(HUGE)}", ("v_cndmask_b32 v28, v23, v28, s[84:85]", 1),
              ("WAITLG SR", 2), f"v_add_f32 v14, v14, v15", "v_add_f32 v16, v16, v17", "v_add_f32 v14, v14, v16",
              "v_mov_b32 v15, v14", ("v_permlane32_swap_b32 v14, v15", 2), "v_add_f32 v14, v14, v15",
              "v_mov_b32 v15, v14", ("v_permlane16_swap_b32 v14, v15", 2), "v_add_f32 v14, v14, v15",
              "v_cvt_pk_bf16_f32 v14, v14, v14", "v_lshlrev_b32 v14, 16, v14", "v_add_f32 v14, s80, v14",
              "v_cvt_pk_bf16_f32 v14, v14, v14", "v_lshlrev_b32 v14, 16, v14", "v_mul_f32 v15, s81, v14",
              f"buffer_store_dword v15, v28, s[{SRD_WS}:{SRD_WS+3}], s60 offen" + (" sc1 ; tag=MOD2" if vec else " sc1 ; tag=MOD")]
        if vec:
            m += [f"v_cmp_gt_u32 s[84:85], s83, v{V_LANE}", "v_lshrrev_b32 v16, 2, v22", "v_lshlrev_b32 v16, 8, v16", "v_and_b32 v22, 3, v22", "v_lshl_add_u32 v16, v22, 1, v16",
                  "v_cndmask_b32 v16, v23, v16, s[84:85]", "v_and_b32 v22, 1, v22", "v_lshl_or_b32 v16, v22, 28, v16", "v_mov_b32 v17, v14 quad_perm:[1,1,3,3] row_mask:0xf bank_mask:0xf",
                  "v_cvt_pk_bf16_f32 v17, v14, v17", f"buffer_store_dword v17, v16, s[{SRD_WS}:{SRD_WS+3}], s36 offen sc1"]
        return m
    if c == 0:
        pc = []
        zi = ["WAITVM ZI"] + sig(SRD_DBG, "s31")
        dma(zi + mw_loads(A_MW, "MW") + pf(2, 13) + pc + wi + ci, 1)
    if c == 1:
        xl = [f"buffer_load_dwordx4 a[{A_X+4*n}:{A_X+4*n+3}], v31, s[{SRD_V}:{SRD_V+3}], 0 offen offset:{n*512} ; tag=X" for n in range(2)]
        xl += [f"buffer_load_dwordx2 a[{A_X+8}:{A_X+9}], v30, s[{SRD_V}:{SRD_V+3}], 0 offen offset:1024 ; tag=X"]
        dma(xl + poll_issue(SRD_DBG, "0", "X") + wi + ci, 1)
        P.stream(mod_fma(A_MW), start=0)
    if c == 2:
        g = P.stream(mod_fin(0x8000 + 7168, 82, False), start=0)
        P.stream(poll_check("ini", SRD_DBG, "0", 1, bar=False) + ["WAITVM MOD"] + sig(SRD_WS, "s61"), start=min(g + 44, 98), limit=111)
        dma(pf(3, 14) + wi[:-2] + ci, g)
        ln = []
        for j in range(10): ln += xunpack(j) + ([f"v_add_f32 v{V_MU}, v23, v22"] if j == 0 else [f"v_add_f32 v{V_MU}, v{V_MU}, v23", f"v_add_f32 v{V_MU}, v{V_MU}, v22"])
        P.stream(ln, start=g+1)
    if c == 3:
        late = [f"s_add_u32 m0, s{S_M0W}, {32768 + 4096}"] + w_issue(4)[-2:]
        g = P.stream(late, start=1)
        g = P.stream([f"s_movk_i32 s41, {WS_CNT}"] + poll_issue(SRD_WS, "s41", "PM", True), start=PM_GAP)
        g = dma(wi, g, end=g + 32)
        ck = ["WAITVM PM"] + poll_check("mod", SRD_WS, "s41", 10, True) + [f"v_and_b32 v28, 31, v{V_LANE}", "v_lshlrev_b32 v28, 4, v28", "s_movk_i32 s29, 2560"]
        g = P.stream(ck, start=g+1)
        ld_ = []
        for arr, so in ((0, "0"), (20, "s29")):
            ld_ += [f"buffer_load_dwordx4 a[{A_CS+arr+16}:{A_CS+arr+19}], v28, s[{SRD_WS}:{SRD_WS+3}], {so} offen offset:2048 sc1 ; tag=CS"]
        ld_ += ["v_lshlrev_b32 v28, 1, v28"]
        for arr, so in ((0, "0"), (20, "s29")):
            for n in range(4):
                ld_ += [f"buffer_load_dwordx4 a[{A_CS+arr+4*n}:{A_CS+arr+4*n+3}], v28, s[{SRD_WS}:{SRD_WS+3}], {so} offen offset:{(n>>1)*1024 + (n&1)*16} sc1 ; tag=CS"]
        pm = [f"s_mov_b32 s66, {640*7680}", f"v_accvgpr_read_b32 v14, a{A_PF-1}", f"buffer_load_dword {dum()}, v14, s[64:67], 0 offen"] if 'm' in PFS else []
        dma(ld_ + ci + pm, g, end=108)
        ln = rsum32(V_MU, 13) + [f"v_mul_f32 v{V_MU}, {fhex(-1/640)}, v{V_MU}"]
        for j in range(10):
            ln += xunpack(j) + [f"v_add_f32 v23, v23, v{V_MU}", f"v_add_f32 v22, v22, v{V_MU}",
                                f"{'v_mul_f32' if j == 0 else 'v_fmac_f32'} v{V_RS}, v23, v23", f"v_fmac_f32 v{V_RS}, v22, v22"]
        ln += rsum32(V_RS, 13) + [f"v_mov_b32 v13, {fhex(1e-5)}", f"v_fmac_f32 v13, {fhex(1/640)}, v{V_RS}", f"v_rsq_f32 v{V_RS}, v13", (f"v_mul_f32 v{V_RS}, {fhex(QSCALE)}, v{V_RS}", 1),
                                  f"v_mul_f32 v{V_MU}, v{V_MU}, v{V_RS}"]
        P.stream(ln, start=0)
    if c == 4:
        hs = ["s_movk_i32 s29, 8192"]
        for j in range(10):
            hs += xunpack(j) + [f"v_fma_f32 v23, v23, v{V_RS}, v{V_MU}", f"v_fma_f32 v22, v22, v{V_RS}, v{V_MU}"]
            for e in range(2):
                hs += [f"v_accvgpr_read_b32 v{14+e}, a{A_CS+20+2*j+e}", f"v_accvgpr_read_b32 v{16+e}, a{A_CS+2*j+e}"]
            hs += ["v_fma_f32 v23, v23, v14, v16", "v_fma_f32 v22, v22, v15, v17", f"v_cvt_pk_bf16_f32 v{18+(j&3)}, v23, v22"]
            if j in (3, 7): hs += [f"buffer_store_dwordx4 v[18:21], v{V_HST}, s[{SRD_WS}:{SRD_WS+3}], {'0' if j == 3 else 's29'} offen sc1 ; tag=HST"]
        hs += [f"v_accvgpr_read_b32 v28, a{A_PF+3}", f"buffer_store_dwordx2 v[18:19], v28, s[{SRD_WS}:{SRD_WS+3}], 0 offen sc1 ; tag=HST"]
        dma(pf(4, 13) + wi + ci, 1)
        P.stream(hs, start=0)
    if c == 5:
        P.stream(["WAITVM HST", "s_barrier"] + sig(SRD_WS, "s24") + [f"s_lshl_b32 s28, 1, s{S_XF}", "v_mov_b32 v4, s28", signal(SRD_WS, "s62", val=4) + " offset:4"], start=HS_GAP)
        g = dma(["s_mov_b32 s66, s7", f"v_accvgpr_read_b32 v28, a{A_PF+2}"] + [x.replace("s28", "s29") for x in mw_loads(A_MW2, "MW2")] + wi + ci, 1)
        P.stream(poll_issue(SRD_WS, "s25", "PH", True) + pf(5, 30), start=max(g + 1, HS_GAP + 56))
    if c == 6:
        st = [f"s_lshl_b32 s28, s{S_I}, 3", f"s_lshl_b32 s29, s{S_W}, 1", "s_add_u32 s56, s28, s29", "s_add_u32 s57, s56, 1",
              "s_sub_u32 s58, 120, s28", "s_add_u32 s58, s58, s29", "s_add_u32 s59, s58, 1"]
        for q in range(4): st += [f"s_mul_i32 s{52+q}, s{56+q}, 20480", f"s_add_u32 s{52+q}, s{52+q}, {WS_H}"]
        g = P.stream(st, start=0)
        g = dma(wi[:5], g, end=g+16)
        g = P.stream(["WAITVM PH"] + poll_check("h", SRD_WS, "s25", 4, True), start=g+1)
        g = dma(h_issue(0) + wi[5:] + h_issue(1), g)
        ds = [f"s_lshl_b32 s31, s{S_HEAD}, 19", f"s_add_u32 s41, s31, {hex(WS_K)}", f"s_add_u32 s{SRD_K}, s4, s41\ns_addc_u32 s{SRD_K+1}, s5, 0",
              f"s_add_u32 s41, s31, {hex(WS_V)}", f"s_add_u32 s{SRD_V}, s4, s41\ns_addc_u32 s{SRD_V+1}, s5, 0",
              f"s_mov_b32 s{SRD_K+2}, {32*16384}", f"s_mov_b32 s{SRD_V+2}, {32*16384}", f"s_mov_b32 s{SRD_K+3}, 0x20000", f"s_mov_b32 s{SRD_V+3}, 0x20000",
              f"s_lshl_b32 s31, s{S_HEAD}, 12", f"s_add_u32 s31, s31, {hex(WS_CTX)}",
              f"s_add_u32 s{SRD_O}, s4, s31\ns_addc_u32 s{SRD_O+1}, s5, 0", f"s_mov_b32 s{SRD_O+2}, {1<<24}", f"s_mov_b32 s{SRD_O+3}, 0x20000"]
        P.stream(["WAITVM MW2"] + mod_fma(A_MW2)[:-8], start=2)
        P.stream(ds, start=30, step=1)
    if c == 7:
        dma(pf(6, 30) + wi + h_issue(2), 1, end=70)
        P.stream(mod_fma(A_MW2)[-8:] + mod_fin(CBASE[0], 6, True), start=0)
        g = 0
        for i in range(16):
            cv = kv_cvt(i, kv_dst(i)) + (kv_store(i, kv_dst(i)) if i < 8 else [])
            g = P.stream(cv, start=max(g + 1, (i >> 2)*16 + 16 + 4, 20 + 9*i if i < 8 else 0))
    return P.emit()

def q_chunk(c):
    sc = 8 + (c >> 1)
    mf = [mfma16(qacc(d, q), wf(d, k), hf(c, q, k), "0" if (c == 0 and k == 0) else None) for d in range(8) for q in range(4) for k in range(2)]
    P = Packer(mf)
    for d in range(6):
        P.stream(rd_w(sc, (c & 1)*2 + ((d+2) >> 2), d+2, f"Q{c}_{d+2}"), start=d*8, limit=d*8+3)
        P.stream([f"WAITLG {'P1' if d == 0 else f'Q{c}_{d+1}'}"], start=d*8+7, limit=d*8+7)
    if c < 9:
        nsc = 8 + ((c+1) >> 1)
        if c & 1:
            need = f"W{nsc},H{c+1}" + (",KVST,PX" if c == 5 else "") + (",PK" if c == 7 else "")
            P.stream([f"WAITVM {need} LG Q{c}_7", "s_barrier"], start=48, limit=49); s0 = 50
        else:
            P.stream([f"WAITVM H{c+1} LG Q{c}_7"], start=55, limit=55); s0 = 48
        P.stream(rd_w(nsc, ((c+1) & 1)*2, 0, "P0"), start=s0, limit=55)
        P.stream(rd_w(nsc, ((c+1) & 1)*2, 1, "P1"), start=56, limit=59)
        P.stream(["WAITLG P0"], start=63, limit=63)
    else:
        P.stream(["WAITVM K0 LG Q9_7", "s_barrier"], start=54, limit=55)
    g = 1
    dm = []
    if c == 6:
        xf = [f"v_readfirstlane_b32 s28, v{V_POLL}", (f"s_lshr_b32 s28, s28, s{S_XF}", 1), "s_and_b32 s28, s28, 15", "s_cmp_lg_u32 s28, 8\ns_cbranch_scc1 KA_wb", "KA_wbr:"] + sig(SRD_WS, "s62")
        spins.append(["KA_wb:", f"s_cmp_lg_u32 s{S_W}, 0", "s_cbranch_scc1 KA_wbr", "buffer_wbl2 sc1", "s_waitcnt vmcnt(0)", "s_branch KA_wbr"])
        g = P.stream(xf, start=0)
    if c == 7: dm += poll_issue(SRD_WS, "s62", "PK")
    if c == 3: dm += ["s_add_u32 s29, s62, 4"] + poll_issue(SRD_WS, "s29", "PX")
    if c == 8:
        g = P.stream(poll_check("kv", SRD_WS, "s62", 8), start=0)
        dm += [f"s_lshl_b32 s28, s{S_I}, 15", f"s_sub_u32 s{SRD_K+2}, {32*16384}, s28", f"s_mov_b32 s{SRD_V+2}, s{SRD_K+2}"] + kv_init_state()
        for wch, idx in (('K', 0), ('K', 1), ('V', 0)):
            x = sum(kv_simple(wch, idx), [])
            if (wch, idx) == ('K', 0): x = [y.replace("tag=K", "tag=K0") for y in x]
            dm += x
    if c == 9:
        for wch, idx in (('K', 2), ('V', 1)): dm += sum(kv_simple(wch, idx), [])
    if 1 <= c <= 7: dm += h_issue(c+2)
    if c in (1, 3, 5): dm += w_issue(sc+2)
    sts = {0: list(range(8, 18)), 2: list(range(18, 25)), 4: list(range(25, 32))}.get(c, [])
    for i in sts: dm += kv_store(i, kv_dst(i))
    if c == 1: dm = dm[12:] + dm[:12]; g = 1
    nd = sum(1 for x in dm if x.startswith('buffer'))
    if dm: P.stream(dm, start=g+1, limit=63, dstep=min(DST, (58 - g) / nd))
    if c == 0:
        gg = 0
        for i in range(16, 28): gg = P.stream(kv_cvt(i, kv_dst(i)), start=gg, limit=8*((i-12)//2) - 1)
        P.stream(sum([kv_cvt(i, kv_dst(i)) for i in range(28, 29)], []), start=gg)
    if c == 1:
        lim = min(k for k, gp in enumerate(P.g) if any("tag=H3" in x[2] for x in gp))
        P.stream(sum([kv_cvt(i, kv_dst(i)) for i in range(29, 32)], []), start=0, limit=lim + 12)
        pos = {}
        for k, gp in enumerate(P.g):
            for x in gp:
                if x[2].startswith("v_accvgpr_read"): pos[int(x[2].split(", a")[1])] = k
                if "tag=H3" in x[2]:
                    lo = int(x[2].split("a[")[1].split(":")[0])
                    for r in range(lo, lo+4): assert r < 8 or (r in pos and pos[r] < k), (r, k)
    if c >= 7:
        fr = {7: [], 8: [0], 9: [1]}[c]
        if c == 7: fr = [3]
        z = [f"v_accvgpr_write_b32 a{sl*32+r}, 0" for sl in fr for r in range(32)]
        P.stream(z, start=1)
    if c == 9:
        ini = [f"v_mov_b32 v{CI+r}, 0" for r in range(16)] + [f"v_mov_b32 v{LS+r}, 0" for r in range(16)]
        P.stream(ini, start=1)
    if c == 5:
        ini = [f"v_and_b32 v{V_T}, 15, v{V_LANE}", f"v_lshrrev_b32 v{V_T+1}, 4, v{V_LANE}", f"v_lshlrev_b32 v{V_T+1}, 2, v{V_T+1}", f"v_sub_u32 v{V_Y}, v{V_T}, v{V_T+1}",
               f"v_mov_b32 v{V_NEG}, 0xff800000", f"v_add_u32 v{V_KVD}, s{S_W2K}, v{V_L16}", f"v_add_u32 v{V_KVD2}, 0x2000, v{V_KVD}",
               f"s_bfe_u32 s{S_NE}, s2, 0x20003", f"s_lshl_b32 s{S_NE}, s{S_NE}, 1", f"s_add_u32 s{S_NE}, s{S_NE}, 2", f"s_mov_b32 s{S_EV}, 0",
               f"s_lshl_b32 s{S_YA}, s56, 4", f"s_lshl_b32 s{S_YB}, s58, 4", f"s_lshl_b32 s29, s{S_2D}, 5", f"s_add_u32 s{S_YB}, s{S_YB}, s29"]
        P.stream(ini, start=1)
    return P.emit()

def ka():
    del spins[:]
    L = prologue(); A = L.append
    for c in range(8): L += k1_chunk(c) + pst(f"c{c}")
    for c in range(10): L += q_chunk(c) + pst(f"q{c}")
    for r in range(32): A(f"v_accvgpr_write_b32 a{64+r}, 0")
    for j in range(8): A(rdK(0, j))
    for r in range(4): A(f"v_mov_b32 v{ONES+r}, 0x3f803f80")
    for q in range(4):
        for ds in range(4):
            r0 = QACC + ((2*ds)*4+q)*4; r1 = QACC + ((2*ds+1)*4+q)*4; t = V_T + 4*(ds & 1)
            A(f"v_cvt_pk_bf16_f32 v{t}, v{r0}, v{r0+1}"); A(f"v_cvt_pk_bf16_f32 v{t+1}, v{r0+2}, v{r0+3}")
            A(f"v_cvt_pk_bf16_f32 v{t+2}, v{r1}, v{r1+1}"); A(f"v_cvt_pk_bf16_f32 v{t+3}, v{r1+2}, v{r1+3}")
            for r in range(4): A(f"v_accvgpr_write_b32 a{A_Q+(q*4+ds)*4+r}, v{t+r}")
    L += pst("q")
    A("s_waitcnt lgkmcnt(0)")
    A("s_branch K2_QKd0")
    ex = os.environ.get("EXP", "")
    if 's' in ex: L = [("s_nop 0" if ("tag=KVST" in x and "s35 offen offset:3072" not in x) else x) for x in L]
    if 'n' in ex: L = [(x.replace(" ; tag=KVST", " nt ; tag=KVST")) for x in L]
    if 'h' in ex: L = [(x.replace(" sc1 ; tag=H", " ; tag=H") if "tag=HST" not in x else x) for x in L]
    L = resolve_waits(L)
    pre = list(L)
    for sp in spins: L += sp
    import kb
    e0 = ["s_load_dwordx2 s[68:69], s[0:1], 40", "s_load_dwordx2 s[70:71], s[0:1], 72", "s_lshl_b32 s80, s2, 2", f"s_add_u32 s80, s80, s{S_W}",
          f"v_lshrrev_b32 v13, 1, v{V_LANE}", "v_mul_u32_u24 v13, 1280, v13", f"v_and_b32 v14, 1, v{V_LANE}", "v_lshl_add_u32 v13, v14, 7, v13",
          "s_waitcnt lgkmcnt(0)", "s_cmp_lt_u32 s80, 640",
          "s_cselect_b32 s8, s68, s70", "s_cselect_b32 s9, s69, s71", f"s_mov_b32 s10, {1728*1280}", f"s_cmov_b32 s10, {4096*1280}", "s_mov_b32 s11, 0x20000",
          "s_cselect_b32 s81, 0, 640", f"s_mov_b32 s54, {54*1024}", f"s_cmov_b32 s54, {128*1024}", f"s_mov_b32 s52, {WS_WD - WS_WO}", "s_cmov_b32 s52, 0",
          "s_sub_u32 s81, s80, s81", "s_mul_i32 s82, s81, 13108", "s_lshr_b32 s82, s82, 16", "s_mul_i32 s83, s82, 5", "s_sub_u32 s81, s81, s83",
          "s_mul_i32 s83, s81, s54", "s_lshl_b32 s83, s83, 3", "s_add_u32 s52, s52, s83", "s_lshl_b32 s83, s82, 10", "s_add_u32 s52, s52, s83",
          "s_cmp_lt_u32 s80, 910", "s_cselect_b32 s52, s52, 0x4000000",
          f"s_mul_i32 s53, s82, {32*1280}", "s_lshl_b32 s81, s81, 8", "s_add_u32 s53, s53, s81",
          "buffer_load_dword v224, v13, s[8:11], s53 offen"]
    e1 = ["s_movk_i32 s80, 1280"] + wdma_voff(V_WV, V_LANE, 13, 14, "s80", nat=False)
    for u in range(2):
        e1 += [f"s_add_u32 m0, s{S_M0W}, {u*4096}"]
        for j in range(4): e1 += [f"s_add_u32 s80, s53, {u*128 + j*(8*1280-1024)}", f"buffer_load_dwordx4 v{V_WV}, s[8:11], s80 offen offset:{j*1024} lds"]
    e2 = ["s_load_dwordx4 s[68:71], s[0:1], 56"] + tr_addr(V_TR, V_LANE, 13, 14, f"s{S_M0W}") + srd(8, 4, WS_K - WS_WO, off_s=hex(WS_WO)) + ["s_waitcnt lgkmcnt(0)"]
    for u in range(2):
        for b in range(4):
            r = 192 + 16*u + 4*b
            e2 += [f"ds_read_b64_tr_b16 v[{r+2*t}:{r+2*t+1}], v{V_TR+b} offset:{u*4096+t*2048}" for t in range(2)]
        if u == 0: e2 += ["s_and_b32 s41, s2, 31"] + kb.w4_srd(68) + ["s_waitcnt lgkmcnt(0)"]
    for u in range(2):
        for b in range(4):
            r = 192 + 16*u + 4*b
            if u == 1 and b == 0: e2 += ["s_waitcnt lgkmcnt(0)"]
            e2 += [f"buffer_store_dwordx4 v[{r}:{r+3}], v{V_L16}, s[8:11], s52 offen sc1", "s_add_u32 s52, s52, s54"]
    e2 += [f"v_min_u32 v13, 39, v{V_LANE}", "v_mul_u32_u24 v13, 3456, v13", f"s_mul_i32 s28, s{S_I}, {80*3456}", f"s_and_b32 s29, s{S_W}, 1", f"s_mul_i32 s29, s29, {8*3456}", "s_add_u32 s28, s28, s29",
           "buffer_load_dword v225, v13, s[12:15], s28 offen"]
    e3 = ["s_and_b32 s28, s2, 7", "s_lshl_b32 s28, s28, 7", f"s_add_u32 s28, s28, {WS_CNT}", "v_mov_b32 v13, 1", signal(SRD_WS, "s28", val=13) + " offset:4"]
    after = kb.back(pst) + ["s_waitcnt vmcnt(0)"] + stamp_out(0, len(STPOS) + 2)
    L += resolve_waits(attn_part(pre, [e0, e1, e2, e3], [], after, pst("a")))
    L += ["KA_end:", "s_endpgm"]
    return L
```

```python
from common import *
import ka as KA_
from attn import S_W, S_I, V_LANE, V_L16

SRD_WS = 72
S_GRP = 25
S_SIG = 24
S_MT, S_NT, S_QB = 26, 30, 31
NWPRE = int(os.environ.get("NWPRE", "5"))

def xsum(reg, tmp):
    return [f"v_mov_b32 v{tmp}, v{reg}", "s_nop 1", f"v_permlane32_swap_b32 v{reg}, v{tmp}", f"v_add_f32 v{reg}, v{reg}, v{tmp}",
            f"v_mov_b32 v{tmp}, v{reg}", "s_nop 1", f"v_permlane16_swap_b32 v{reg}, v{tmp}", f"v_add_f32 v{reg}, v{reg}, v{tmp}"]

def publish(dw):
    return ["s_waitcnt vmcnt(0)", "s_barrier", "v_mov_b32 v13, 1",
            f"buffer_atomic_add v13, v{KA_.V_SIG}, s[{SRD_WS}:{SRD_WS+3}], s{S_SIG} offen offset:{4*dw}"]
def wait_group(name, dw, soff, target):
    P = KA_.V_POLL
    return [f"s_cmp_lg_u32 s{S_W}, 0", f"s_cbranch_scc1 KB_w{name}", "s_mov_b32 s29, 0x20000",
            f"v_lshrrev_b32 v14, 3, v{V_LANE}", "v_lshlrev_b32 v14, 26, v14", f"v_lshl_or_b32 v14, v{V_LANE}, 7, v14",
            f"KB_l{name}:", f"buffer_load_dword v{P}, v14, s[{SRD_WS}:{SRD_WS+3}], {soff} offen offset:{4*dw} sc1", "s_waitcnt vmcnt(0)",
            f"v_cmp_gt_u32 vcc, {target}, v{P}", "s_sub_u32 s29, s29, 1", "s_cmp_eq_u32 s29, 0", f"s_cbranch_scc1 KB_w{name}",
            "s_and_b32 s28, vcc_lo, 0xff", "s_cmp_eq_u32 s28, 0", f"s_cbranch_scc1 KB_w{name}", "s_sleep 2", f"s_branch KB_l{name}",
            f"KB_w{name}:", "s_barrier"]
def gqb(dst, loc):
    return [f"s_lshl_b32 s28, s{S_I}, 3", "s_sub_u32 s29, 112, s28", f"s_cmp_lt_u32 {loc}, 8", "s_cselect_b32 s28, s28, s29", f"s_add_u32 s{dst}, s28, {loc}"]

V_AQ, V_AW = 4, 8
V_T = 15
ACC = 32; SLOT3 = 112; EP = 184
SRD_A, SRD_W, SRD_X = 8, 12, 16
A_X1 = 240
def fr(slot, idx): return ar(slot*72 + idx*4, 4) if slot < 3 else vr(SLOT3 + idx*4, 4)
def acc(mb, q): return vr(ACC + (mb*4+q)*4, 4)

def gemmb(mode, pre_sync, sync, st):
    nk, ngroups, ws_act, ws_w = (128, 16, WS_CTX, WS_WO) if mode == 3 else (54, 7, WS_HH, WS_WD)
    T = f"B{mode}"
    L = []; A = L.append
    A(ldptr(6, 'x' if mode == 3 else 'out'))
    if mode == 3:
        A("s_bfe_u32 s41, s2, 0x20001"); A("s_lshl_b32 s41, s41, 2")
        L += gqb(S_QB, "s41")
        A(f"s_and_b32 s{S_NT}, s2, 1"); A(f"s_lshl_b32 s{S_NT}, s{S_NT}, 2"); A("s_bfe_u32 s28, s2, 0x20003"); A(f"s_add_u32 s{S_NT}, s{S_NT}, s28")
    A(f"s_mul_i32 s28, s{S_QB}, {nk*1024}")
    for q in range(4):
        A(f"v_add_u32 v{V_AQ+q}, s28, v{V_L16}"); A(f"s_add_u32 s28, s28, {nk*1024}")
    A(f"s_mul_i32 s28, s{S_NT}, {5*nk*1024}")
    for mb in range(5):
        A(f"v_add_u32 v{V_AW+mb}, s28, v{V_L16}"); A(f"s_add_u32 s28, s28, {nk*1024}")
    A(f"s_mul_i32 s32, s{S_W}, {ngroups*2048}")
    A(f"s_bfe_u32 s33, s2, 0x20003"); A(f"s_xor_b32 s33, s33, s{S_I}"); A("s_and_b32 s33, s33, 3"); A("s_lshl_b32 s33, s33, 11")
    L += srd(SRD_A, 4, 128*nk*1024, hex(ws_act)); L += srd(SRD_W, 4, 40*nk*1024, hex(ws_w))
    def soff(g):
        r = 34 + (g & 3)
        if mode == 5 and g >= 4:
            o = [f"s_add_u32 s{r}, s32, {g*2048}"]
            if g == 6: o += [f"s_cmp_eq_u32 s{S_W}, 3\ns_cselect_b32 s{r}, 0x1000000, s{r}"]
            return o
        return [f"s_xor_b32 s{r}, s33, {g*2048}", f"s_add_u32 s{r}, s{r}, s32"]
    def ldw(g): return [f"buffer_load_dwordx4 {fr(g&3, k*9+mb)}, v{V_AW+mb}, s[{SRD_W}:{SRD_W+3}], s{34+(g&3)} offen offset:{k*1024} sc1 ; tag={T}G{g}" for k in range(2) for mb in range(5)]
    def lda(g): return [f"buffer_load_dwordx4 {fr(g&3, k*9+5+q)}, v{V_AQ+q}, s[{SRD_A}:{SRD_A+3}], s{34+(g&3)} offen offset:{k*1024} sc1 ; tag={T}G{g}" for k in range(2) for q in range(4)]
    L += pre_sync
    for g in range(3): L += soff(g) + ldw(g)
    A(f"v_and_b32 v{V_T}, 15, v{V_LANE}"); A(f"v_lshrrev_b32 v{V_T+1}, 4, v{V_LANE}")
    A(f"s_add_u32 s28, s{S_QB}, s{S_W}"); A("s_lshl_b32 s28, s28, 4")
    A(f"v_add_u32 v{V_T}, s28, v{V_T}")
    A(f"v_mul_u32_u24 v{V_T+2}, 1280, v{V_T}")
    A(f"s_mul_i32 s29, s{S_NT}, 160"); A(f"v_lshl_add_u32 v{V_T+2}, v{V_T+1}, 3, v{V_T+2}"); A(f"v_add_u32 v{V_T+2}, s29, v{V_T+2}")
    A(f"s_mul_i32 s29, s{S_NT}, 320"); A(f"v_lshlrev_b32 v{V_T+3}, 4, v{V_T+1}"); A(f"v_add_u32 v{V_T+3}, s29, v{V_T+3}")
    A(f"s_mul_i32 s28, s{S_W}, 20480"); A(f"v_add_u32 v{V_T+4}, s28, v{V_L16}")
    A(f"s_lshl_b32 s28, s{S_W}, 10"); A(f"v_add_u32 v{V_T+5}, s28, v{V_L16}"); A(f"v_add_u32 v{V_T+6}, 0xa000, v{V_T+5}")
    A("s_waitcnt lgkmcnt(0)")
    L += srd(SRD_X, 6, 2048*1280)
    L += sync
    L += st(f"{T}s")
    for g in range(3): L += lda(g)
    XR, GA_, CB = EP, EP + 12, EP + 32
    ep = [f"s_movk_i32 s38, {(2 if mode == 3 else 5)*2560}", f"s_movk_i32 s39, {4*2560}"]
    for mb in range(5):
        ep.append(f"buffer_load_dwordx4 v[{GA_+4*mb}:{GA_+4*mb+3}], v{V_T+3}, s[{SRD_WS}:{SRD_WS+3}], s38 offen offset:{mb*64} sc1 ; tag={T}EP")
        if mode == 3:
            ep.append(f"buffer_load_dwordx2 v[{XR+2*mb}:{XR+2*mb+1}], v{V_T+2}, s[{SRD_X}:{SRD_X+3}], 0 offen offset:{mb*32} ; tag={T}EP")
            ep.append(f"buffer_load_dwordx4 v[{CB+4*mb}:{CB+4*mb+3}], v{V_T+3}, s[{SRD_WS}:{SRD_WS+3}], s39 offen offset:{mb*64} sc1 ; tag={T}EP")
    for g in range(ngroups):
        sl = g & 3
        mf = [mfma16(acc(mb, q), fr(sl, k*9+mb), fr(sl, k*9+5+q), "0" if (g == 0 and k == 0) else None) for mb in range(5) for q in range(4) for k in range(2)]
        P = Packer(mf)
        if g + 3 < ngroups:
            w_, a_ = ldw(g+3), lda(g+3)
            P.stream(soff(g+3) + w_[:5] + a_[:4] + w_[5:] + a_[4:], start=0, dstep=2)
        elif g + 3 == ngroups: P.stream(ep, start=0, dstep=2)
        A(f"WAITVM {T}G{g}")
        if g == 0: L += st(f"{T}d")
        L += P.emit()
    L += st(f"{T}l")
    A("s_nop 4")
    for b in range(20):
        A(f"ds_write_b128 v{V_T+4}, v[{ACC+4*b}:{ACC+4*b+3}] offset:{b*1024}")
        if b == 11: A("s_waitcnt lgkmcnt(4)")
    A("s_waitcnt lgkmcnt(0)"); A("s_barrier")
    for w in range(4):
        for mb in range(5):
            A(f"ds_read_b128 v[{ACC+(w*5+mb)*4}:{ACC+(w*5+mb)*4+3}], v{V_T+5+(w>>1)} offset:{(w&1)*20480 + mb*4096}")
        if w == 2: A("s_waitcnt lgkmcnt(5)")
    pk = lambda op, d, a, b, c=None: f"v_pk_{op}_f32 v[{d}:{d+1}], v[{a}:{a+1}], v[{b}:{b+1}]" + (f", v[{c}:{c+1}]" if c is not None else "")
    for i in range(0, 20, 2): A(pk("add", ACC+i, ACC+i, ACC+20+i))
    A("s_waitcnt lgkmcnt(0)")
    for i in range(0, 20, 2): A(pk("add", ACC+40+i, ACC+40+i, ACC+60+i))
    for i in range(0, 20, 2): A(pk("add", ACC+i, ACC+i, ACC+40+i))
    Y = ACC; U = ACC + 20; PK = ACC + 40
    if mode == 5:
        for i in range(10): A(f"v_accvgpr_read_b32 v{XR+i}, a{A_X1+i}")
    A(f"WAITVM {T}EP")
    for i in range(10):
        A(f"v_lshlrev_b32 v{U+2*i}, 16, v{XR+i}"); A(f"v_and_b32 v{U+2*i+1}, 0xffff0000, v{XR+i}")
    for i in range(0, 20, 2): A(pk("fma", Y+i, Y+i, GA_+i, U+i))
    for i in range(10): A(f"v_cvt_pk_bf16_f32 v{PK+i}, v{Y+2*i}, v{Y+2*i+1}")
    if mode == 5:
        for mb in range(5):
            A(f"buffer_store_dwordx2 v[{PK+2*mb}:{PK+2*mb+1}], v{V_T+2}, s[{SRD_X}:{SRD_X+3}], 0 offen offset:{mb*32}")
        return L
    for i in range(10):
        A(f"v_lshlrev_b32 v{Y+2*i}, 16, v{PK+i}"); A(f"v_and_b32 v{Y+2*i+1}, 0xffff0000, v{PK+i}")
    for i in range(0, 20, 2): A(pk("mul", U+i, Y+i, CB+i))
    P2 = PK + 12
    for i in range(10): A(f"v_cvt_pk_bf16_f32 v{P2+i}, v{U+2*i}, v{U+2*i+1}")
    A(f"s_add_u32 s28, s{S_QB}, s{S_W}"); A("s_mul_i32 s28, s28, 20480"); A(f"s_mul_i32 s29, s{S_NT}, 5"); A("s_lshr_b32 s29, s29, 1"); A("s_lshl_b32 s29, s29, 10")
    A("s_add_u32 s28, s28, s29"); A(f"s_add_u32 s28, s28, {WS_X1P}")
    stx = lambda n, r, o: f"buffer_store_dwordx{n} v[{r}:{r+n-1}], v{V_L16}, s[{SRD_WS}:{SRD_WS+3}], s28 offen offset:{o} sc1"
    A(f"s_bitcmp1_b32 s{S_NT}, 0"); A("s_cbranch_scc1 KB_odd")
    A(stx(4, P2, 0)); A(stx(4, P2+4, 1024)); A(stx(2, P2+8, 2048)); A("s_branch KB_evn")
    A("KB_odd:"); A(stx(2, P2, 8)); A(stx(4, P2+2, 1024)); A(stx(4, P2+6, 2048)); A("KB_evn:")
    S = 22
    for i in range(2, 20, 2): A(pk("add", S, S if i > 2 else Y, Y+i))
    A(f"v_add_f32 v{S}, v{S}, v{S+1}")
    L += xsum(S, 24)
    A(f"v_mul_f32 v{S}, {fhex(1/80)}, v{S}")
    for i in range(10): A(f"v_accvgpr_write_b32 a{A_X1+i}, v{PK+i}")
    for i in range(0, 20, 2): A(f"v_pk_add_f32 v[{Y+i}:{Y+i+1}], v[{Y+i}:{Y+i+1}], v[{S}:{S+1}] op_sel_hi:[1,0] neg_lo:[0,1] neg_hi:[0,1]")
    A(pk("mul", 26, Y, Y))
    for i in range(2, 20, 2): A(pk("fma", 26, Y+i, Y+i, 26))
    A(f"v_add_f32 v{S+1}, v26, v27")
    L += xsum(S+1, 24)
    A(f"v_lshlrev_b32 v24, 6, v{V_T}"); A(f"v_lshl_or_b32 v24, v{V_T+1}, 26, v24"); A(f"s_lshl_b32 s28, s{S_NT}, 3"); A(f"s_add_u32 s28, s28, {WS_STAT}")
    A(f"buffer_store_dwordx2 v[{S}:{S+1}], v24, s[{SRD_WS}:{SRD_WS+3}], s28 offen sc1")
    return L

V_WV = 3; V_TR = 8; VACC = 64; ACC4 = 128; A_VEC = 128; A_W = 192
S_FT = 32; S_Q0 = 33
def w4_srd(tmp_ptr):
    p = tmp_ptr
    return [f"s_cmp_ge_u32 s{S_W}, 2", f"s_cselect_b32 s{p}, s{p+2}, s{p}", f"s_cselect_b32 s{p+1}, s{p+3}, s{p+1}",
            "s_lshl_b32 s28, s41, 7", f"s_and_b32 s29, s{S_W}, 1", f"s_mul_i32 s29, s29, {32*3456}", "s_add_u32 s28, s28, s29",
            f"s_add_u32 s{SRD_W}, s{p}, s28", f"s_addc_u32 s{SRD_W+1}, s{p+1}, 0", f"s_sub_u32 s{SRD_W+2}, {640*3456}, s28", f"s_mov_b32 s{SRD_W+3}, 0x20000"]

def b4(pre_sync, sync, st):
    L = []; A = L.append
    acc4 = lambda d, q: vr(ACC4 + (d*4+q)*4, 4)
    hf = lambda c, q, k: ar(((c & 3)*8 + q*2 + k)*4, 4)
    wf = lambda d, k: ar(A_W + ((d & 3)*2 + k)*4, 4)
    vf = lambda c, k: ar(A_VEC + ((c & 3)*2 + k)*4, 4)
    def w_issue(c):
        return [f"s_add_u32 m0, s40, {c*16384}"] + [f"buffer_load_dwordx4 v{V_WV}, s[{SRD_W}:{SRD_W+3}], s{44+j} offen offset:{j*1024} lds ; tag=FW{c}" for j in range(4)] + [f"v_add_u32 v{V_WV}, {64*3456}, v{V_WV}"]
    def h_issue(c):
        o = [f"buffer_load_dwordx4 {hf(c,q,k)}, v{V_L16}, s[{SRD_WS}:{SRD_WS+3}], s{52+q} offen offset:{((2*c+k)&3)*1024} sc1 ; tag=FH{c}" for q in range(4) for k in range(2)]
        o += [f"buffer_load_dwordx4 {vf(c,k)}, v{V_L16}, s[{SRD_WS}:{SRD_WS+3}], s57 offen offset:{((2*c+k)&3)*1024} sc1 ; tag=FH{c}" for k in range(2)]
        if c & 1: o += [f"s_add_u32 s{52+q}, s{52+q}, 4096" for q in range(4)] + ["s_add_u32 s57, s57, 4096"]
        return o
    def rd_w(c, d, tag):
        return [f"ds_read_b64_tr_b16 {ar(A_W + ((d&3)*2+k)*4 + 2*t, 2)}, v{V_TR+(d&3)} offset:{(c&3)*16384 + (d>>2)*8192 + k*4096 + t*2048} ; tag={tag}" for k in range(2) for t in range(2)]
    A("s_load_dwordx4 s[16:19], s[0:1], 56")
    A("s_and_b32 s41, s2, 31"); A(f"s_mov_b32 s{S_FT}, s41")
    A(f"s_lshl_b32 s40, s{S_W}, 12")
    for j in range(4): A(f"s_mov_b32 s{44+j}, {8*j*3456 - j*1024}")
    A("s_movk_i32 s28, 3456")
    L += wdma_voff(V_WV, V_LANE, 13, 14, "s28", nat=False)
    A("s_waitcnt lgkmcnt(0)")
    L += w4_srd(16)
    L += pre_sync
    A(f"s_cmp_ge_u32 s{S_FT}, 27"); A("s_cbranch_scc1 KB_skip4")
    for c in range(NWPRE): L += KA_.nop_m0(w_issue(c))
    A(f"s_lshl_b32 s41, s{S_W}, 2"); L += gqb(S_Q0, "s41")
    for q in range(4):
        A(f"s_add_u32 s28, s{S_Q0}, {q}"); A(f"s_mul_i32 s{52+q}, s28, 20480"); A(f"s_add_u32 s{52+q}, s{52+q}, {WS_X1P}")
    A(f"s_mov_b32 s57, {WS_VEC}")
    L += tr_addr(V_TR, V_LANE, 13, 14)
    A(f"s_lshl_b32 s28, s{S_W}, 5")
    for b in range(4): A(f"v_xor_b32 v{V_TR+b}, s28, v{V_TR+b}")
    A(f"v_and_b32 v{V_T}, 15, v{V_LANE}"); A(f"v_lshrrev_b32 v{V_T+1}, 4, v{V_LANE}")
    A(f"v_lshlrev_b32 v4, 6, v{V_T}"); A(f"v_lshl_add_u32 v4, v{V_T+1}, 4, v4"); A(f"s_lshl_b32 s58, s{S_Q0}, 10"); A(f"s_add_u32 s58, s58, {WS_STAT}")
    A(f"v_lshlrev_b32 v5, 4, v{V_T+1}"); A(f"s_lshl_b32 s28, s{S_W}, 7"); A("v_add_u32 v5, s28, v5")
    A(f"v_lshl_add_u32 v6, v{V_T}, 6, v5")
    L += sync
    L += st("B4s")
    for c in range(3): L += h_issue(c)
    L += ["WAITVM FW0,FH0", "s_barrier"] + st("B4d") + rd_w(0, 0, "P0") + rd_w(0, 1, "P1") + ["WAITLG P0"]
    ST = 32
    NM, RS = 48, 56
    for c in range(10):
        mf = []; pos = []
        for d in range(8):
            pos.append(len(mf))
            mf += [mfma16(acc4(d, q), wf(d, k), hf(c, q, k), "0" if (c == 0 and k == 0) else None) for q in range(4) for k in range(2)]
            if d in (0, 4): mf += [mfma16(vr(VACC + d, 4), wf(d, k), vf(c, k), "0" if (c == 0 and k == 0) else None) for k in range(2)]
        pos.append(len(mf))
        P = Packer(mf)
        for d in range(6):
            P.stream(rd_w(c, d+2, f"F{c}_{d+2}"), start=pos[d], limit=pos[d]+3)
            P.stream([f"WAITLG {'P1' if d == 0 else f'F{c}_{d+1}'}"], start=pos[d+1]-1, limit=pos[d+1]-1)
        if c < 9:
            B_ = [f"WAITVM FW{c+1},FH{c+1} LG F{c}_7", "s_barrier"]
            if (c & 3) == 3: B_ += [f"v_add_u32 v{V_TR+b}, 0x10000, v{V_TR+b}" for b in range(4)]
            g = P.stream(B_, start=pos[6])
            P.stream(rd_w(c+1, 0, "P0"), start=g+1, limit=pos[7]+1)
            P.stream(rd_w(c+1, 1, "P1"), start=pos[7]+2, limit=pos[7]+4)
            P.stream(["WAITLG P0"], start=pos[8]-1)
        else:
            P.stream(["WAITLG F9_7"], start=pos[7]-1, limit=pos[7]-1)
        dm = []
        if c + 3 <= 9: dm += h_issue(c+3)
        if c + NWPRE <= 9: dm += w_issue(c + NWPRE)
        if c == 7: dm += [f"buffer_load_dwordx4 v[{ST+4*q}:{ST+4*q+3}], v4, s[{SRD_WS}:{SRD_WS+3}], s58 offen offset:{q*1024} sc1 ; tag=FST" for q in range(4)]
        if dm:
            nd = sum(1 for x in dm if x.startswith("buffer"))
            P.stream(dm, start=2, dstep=min(5, 58 / nd))
        if c == 9:
            o = ["WAITVM FST"]
            def xs(reg): return [f"v_mov_b32 v13, v{reg}", (f"v_permlane32_swap_b32 v{reg}, v13", 2), f"v_add_f32 v{reg}, v{reg}, v13",
                                 f"v_mov_b32 v13, v{reg}", (f"v_permlane16_swap_b32 v{reg}, v13", 2), f"v_add_f32 v{reg}, v{reg}, v13"]
            for q in range(2): o += stats(q, ST, NM, RS, xs)
            P.stream(o, start=0)
        L += P.emit()
    L += st("B4l")
    A(f"v_cmp_gt_u32 vcc, 2, v{V_T}"); A("s_and_saveexec_b64 s[60:61], vcc")
    A(f"ds_write_b128 v6, v[{VACC}:{VACC+3}]"); A(f"ds_write_b128 v6, v[{VACC+4}:{VACC+7}] offset:512")
    A("s_mov_b64 exec, s[60:61]")
    for q in range(2, 4):
        for x in stats(q, ST, NM, RS, lambda r: xsum(r, 13)): A(x if isinstance(x, str) else "s_nop 0\n" + x[0])
    A("s_waitcnt lgkmcnt(0)"); A("s_barrier")
    c1 = -2*0.7978845608028654*math.log2(math.e); c2 = c1*0.044715
    A(f"v_mov_b32 v20, {fhex(c2)}"); A(f"v_mov_b32 v22, {fhex(c1)}"); A("v_mov_b32 v18, 1.0")
    UV = 64
    for b in range(4):
        A(f"v_xor_b32 v13, {b*128}, v5")
        for half in range(2):
            for vec in range(2):
                r = UV + b*16 + half*8 + vec*4
                A(f"ds_read_b128 v[{r}:{r+3}], v13 offset:{half*512 + vec*64}")
        if b == 2: A("s_waitcnt lgkmcnt(4)")
    L += srd(8, 4, 128*54*1024, hex(WS_HH))
    A(f"s_lshr_b32 s28, s{S_W}, 1"); A("s_lshl_b32 s44, s28, 10"); A("s_xor_b32 s45, s44, 1024")
    A(f"s_mul_i32 s28, s{S_Q0}, {54*1024}"); A(f"s_lshl_b32 s29, s{S_FT}, 11"); A("s_add_u32 s28, s28, s29"); A(f"v_add_u32 v4, s28, v{V_L16}")
    A(f"s_bitcmp1_b32 s{S_W}, 0"); A("s_cselect_b64 s[60:61], -1, 0")
    A("s_waitcnt lgkmcnt(0)")
    bc = " op_sel_hi:"
    n = 0
    for q in range(4):
        for pr in range(2):
            o = 40 + 4*(n & 1); n += 1
            for hb in range(2):
                b = 2*pr + hb
                g0 = ACC4 + (b*4+q)*4; u0 = ACC4 + ((4+b)*4+q)*4; uv = UV + b*16; t = 32 + 4*hb
                p2 = lambda x: f"v[{x}:{x+1}]"
                for r in (0, 2): A(f"v_pk_fma_f32 {p2(g0+r)}, {p2(NM+2*q)}, {p2(uv+r)}, {p2(g0+r)} op_sel_hi:[0,1,1]")
                for r in (0, 2): A(f"v_pk_fma_f32 {p2(u0+r)}, {p2(NM+2*q)}, {p2(uv+8+r)}, {p2(u0+r)} op_sel_hi:[0,1,1]")
                for r in (0, 2): A(f"v_pk_fma_f32 {p2(g0+r)}, {p2(g0+r)}, {p2(RS+2*q)}, {p2(uv+4+r)} op_sel_hi:[1,0,1]")
                for r in (0, 2): A(f"v_pk_fma_f32 {p2(u0+r)}, {p2(u0+r)}, {p2(RS+2*q)}, {p2(uv+12+r)} op_sel_hi:[1,0,1]")
                for r in (0, 2): A(f"v_pk_mul_f32 {p2(t+r)}, {p2(g0+r)}, {p2(g0+r)}")
                for r in (0, 2): A(f"v_pk_fma_f32 {p2(t+r)}, {p2(t+r)}, v[20:21], v[22:23] op_sel_hi:[1,0,0]")
                for r in (0, 2): A(f"v_pk_mul_f32 {p2(t+r)}, {p2(t+r)}, {p2(g0+r)}")
                for r in (0, 2): A(f"v_pk_mul_f32 {p2(u0+r)}, {p2(u0+r)}, {p2(g0+r)}")
                for r in range(4): A(f"v_exp_f32 v{t+r}, v{t+r}")
                A("s_nop 0")
                for r in (0, 2): A(f"v_pk_add_f32 {p2(t+r)}, {p2(t+r)}, v[18:19] op_sel_hi:[1,0]")
                for r in range(4): A(f"v_rcp_f32 v{t+r}, v{t+r}")
                A("s_nop 0")
                for r in (0, 2): A(f"v_pk_mul_f32 {p2(u0+r)}, {p2(u0+r)}, {p2(t+r)}")
                A(f"v_cvt_pk_bf16_f32 v{g0}, v{u0}, v{u0+1}"); A(f"v_cvt_pk_bf16_f32 v{g0+1}, v{u0+2}, v{u0+3}")
            ga_, gb_ = ACC4 + ((2*pr)*4+q)*4, ACC4 + ((2*pr+1)*4+q)*4
            for r in range(2):
                A(f"v_cndmask_b32 v{o+r}, v{ga_+r}, v{gb_+r}, s[60:61]"); A(f"v_cndmask_b32 v{o+2+r}, v{gb_+r}, v{ga_+r}, s[60:61]")
            A(f"buffer_store_dwordx4 v[{o}:{o+3}], v4, s[8:11], s{44+pr} offen sc1")
        if q < 3: A(f"v_add_u32 v4, {54*1024}, v4")
    A("KB_skip4:")
    return L

def stats(q, ST, NM, RS, xs):
    s = ST + 4*q; nm = NM + 2*q; rs = RS + 2*q
    o = [f"v_add_f32 v{nm}, v{s}, v{s+2}"] + xs(nm)
    o += [f"v_mul_f32 v{nm}, {fhex(-0.125)}, v{nm}", f"v_add_f32 v{s}, v{s}, v{nm}", f"v_add_f32 v{s+2}, v{s+2}, v{nm}",
          f"v_mul_f32 v{s}, v{s}, v{s}", f"v_fmac_f32 v{s}, v{s+2}, v{s+2}", f"v_add_f32 v{rs}, v{s+1}, v{s+3}", f"v_fmac_f32 v{rs}, {fhex(80.0)}, v{s}"] + xs(rs)
    o += [f"v_mov_b32 v13, {fhex(1e-5)}", f"v_fmac_f32 v13, {fhex(1/640)}, v{rs}", f"v_rsq_f32 v{rs}, v13"]
    return o

def back(st):
    side = [f"s_movk_i32 s41, {WS_CNT}"] + wait_group("side", 1, "s41", 32)[:-1]
    sig = ["s_and_b32 s28, s2, 7", "s_lshl_b32 s28, s28, 7", f"s_add_u32 s{S_SIG}, s{S_GRP}, s28"]
    L = gemmb(3, sig + side + publish(1) + st("B3p"), wait_group("ctx", 1, f"s{S_GRP}", 4), st)
    L += b4(publish(2) + st("B4p"), wait_group("x1", 2, f"s{S_GRP}", 4), st)
    L += gemmb(5, publish(3) + st("B5p"), wait_group("hh", 3, f"s{S_GRP}", 4), st)
    return L
```

```python
import sys
from common import *
def build(kernels, path):
    hdr = open("cdna_kernels/" + NAME + ".s.ref").read().split("; Override launch")[0]
    out = [hdr.rstrip()]
    for (name, fn, grid, block, lds, nv, acc) in kernels:
        out.append(f"; @launch grid=({grid},1,1) block=({block},1,1) lds={lds}")
    out.append('.amdgcn_target "amdgcn-amd-amdhsa--gfx950"')
    done = set()
    for (name, fn, grid, block, lds, nv, acc) in kernels:
        if name in done: continue
        done.add(name)
        out.append(kernel_text(name, fn(), nv, acc))
    open(path, "w").write("\n".join(out))

def kernels():
    import ka
    return [(NAME + "_kernel", ka.ka, 256, 256, 163840, 512, 256)]
if __name__ == "__main__":
    p = sys.argv[1] if len(sys.argv) > 1 else "all.s"
    build(kernels(), p)
```

```python
from common import *

V_LANE, V_L16, V_WV, V_KVD, V_KA, V_VA, V_Y, V_NEG = 1, 2, 3, 4, 5, 6, 7, 12
V_TR = 8
V_T = 13
ONES = 24
S0, S1, CI, LS = 32, 64, 96, 112
VF = 128
QACC = 128
A_O, A_Q, A_K = 0, 128, 192
S_W = 3; S_HEAD = 26; S_I = 27; S_2D = 30; S_Q = 31; S_KOFF = 32; S_VOFF = 33; S_KM0 = 34; S_VM0 = 35
S_KCNT = 36; S_2DM1 = 37; S_2DM4 = 42; S_RETRY = 38; S_W2K = 39; S_LIM = 43; S_EA = 85; S_NE = 86; S_EV = 87; S_YA = 60; S_YB = 61
SRD_W, SRD_H, SRD_K, SRD_V, SRD_O = 8, 12, 16, 20, 64
LTHRESH = 2.0**64
KBASE, KXOR, VBASE, VXOR = 0x18000, 0x38000, 0x8000, 0x18000
SC = ' sc1' if os.environ.get('KVSC', '1') == '1' else ''

def Sb(p, pair, half): return (S0 if p == 0 else S1) + pair*8 + half*4
def Of(d, q): return ar(A_O + (d*4+q)*4, 4)
def Qf(q, ds): return ar(A_Q + (q*4+ds)*4, 4)
def Kf(j): return ar(A_K + j*4, 4)
def Vf(j): return vr(VF + j*4, 4)
def rdK(p, j): return f"ds_read_b128 {Kf(j)}, v{V_KA} offset:{p*16384 + j*1024}"
def rdV(p, j): return f"ds_read_b128 {Vf(j)}, v{V_VA} offset:{p*16384 + j*1024}"

_lab = [0]
V_PFL = 220
EV0 = 18
V_KVD2 = 28
def ld(which, half, o):
    srd_, off = (SRD_K, S_KOFF) if which == 'K' else (SRD_V, S_VOFF)
    return f"buffer_load_dwordx4 v{V_KVD2 if half else V_KVD}, s[{srd_}:{srd_+3}], s{off} offen offset:{o}{SC} lds ; tag={which}"
def setm0(which, par, half):
    return f"s_add_u32 m0, s{S_KM0 if which == 'K' else S_VM0}, {par*16384 + half*8192}"
def adv(which, n):
    off = S_KOFF if which == 'K' else S_VOFF
    return f"s_add_u32 s{off}, s{off}, {n}"
def togm0(which):
    r = S_KM0 if which == 'K' else S_VM0
    return f"s_xor_b32 s{r}, s{r}, {hex(KXOR if which == 'K' else VXOR)}"
def kv_simple(which, idx):
    G = [[setm0(which, idx & 1, 0), ld(which, 0, 0)], [ld(which, 0, 1024), adv(which, 8192)]]
    if idx & 1: G[-1].append(togm0(which))
    return G

def flat(G):
    L = []
    for g in G:
        if g[0].startswith("s_") and "m0," in g[0]: L += [g[0], "s_nop 0"] + g[1:]
        else: L += g
    return L

def sm_half(p, half):
    E, C = [], []
    for pair in range(4):
        n = Sb(p, pair, 0); b = n + 4*half
        for r in range(4): E.append(f"v_exp_f32 v{b+r}, v{b+r}")
        C.append(f"v_cvt_pk_bf16_f32 v{n+2*half}, v{b}, v{b+1}")
        C.append(f"v_cvt_pk_bf16_f32 v{n+2*half+1}, v{b+2}, v{b+3}")
    return E, C

def pack(mf, toks, E, C, Rd, D, scal, misc, need):
    assert len(toks) == len(mf), (len(toks), len(mf))
    E, C, Rd, D, J = list(E), list(C), list(Rd), list(D), list(misc.get('J', []))
    issued = [f"P{j}" for j in range(8)]
    ne = nc = 0
    out = []
    for g, (m, tk) in enumerate(zip(mf, toks)):
        out.append(m)
        sc = scal.get(g)
        if sc is not None:
            assert tk not in ('D', 'B', 'J'), (g, tk)
            if sc.startswith("WAITLG"):
                _, name, *ex = sc.split()
                n = len(issued) - 1 - issued.index(name)
                sc = ("s_waitcnt " + " ".join(ex) + f" lgkmcnt({n})").replace("  ", " ")
            out.append(sc)
        for ch in tk:
            if ch == 'E': out.append(E.pop(0)); ne += 1
            elif ch == 'c':
                assert ne >= 2*nc + 2, (g, ne, nc); out.append(C.pop(0)); nc += 1
            elif ch == 'r':
                nm, ins = Rd.pop(0); issued.append(nm); out.append(ins)
            elif ch == 't':
                if misc.get('t'): out.append(misc['t'])
            elif ch == 'P': out.append(f"global_load_dword v{V_PFL+4}, v[{V_PFL}:{V_PFL+1}], off ; pf")
            elif ch == 'a': out.append(f"v_lshl_add_u64 v[{V_PFL}:{V_PFL+1}], v[{V_PFL+2}:{V_PFL+3}], 0, v[{V_PFL}:{V_PFL+1}]")
            elif ch == 'D': out.append(D.pop(0))
            elif ch == 'B': out.append("s_barrier")
            elif ch == 'J': out += J.pop(0)
    assert not (E or C or Rd or D or J), (E, C, Rd, D, J)
    drop = os.environ.get("DROP", "")
    pref = {'B': "s_barrier", 'W': "s_waitcnt", 'D': "buffer_load", 'E': "v_exp", 'C': "v_cvt", 'R': "ds_read", 'x': "nothing"}
    for k in drop: out = [x for x in out if not x.startswith(pref[k])]
    return out

def qk_mfmas(T, p):
    mf = []
    if T == 'd':
        for kv in range(2):
            for q in range(4):
                for ds in range(4):
                    d = vr(Sb(p, q, kv), 4)
                    mf.append(mfma16(d, Kf(kv*4+ds), Qf(q, ds), vr(CI+4*q, 4) if ds == 0 else None))
    else:
        for kv in range(4):
            for q in range(2):
                for ds in range(4):
                    d = vr(Sb(p, (kv >> 1)*2 + q, kv & 1), 4)
                    mf.append(mfma16(d, Kf(kv*4+ds), Qf(2+q, ds), vr(CI+4*(2+q), 4) if ds == 0 else None))
    return mf

def qk_block(T, p, endbr):
    E, C = sm_half(1-p, 1)
    pre = [(f"N{j}", rdV(1-p, j)) for j in range(8)]
    D = [ld('K', 0, 0), ld('K', 0, 1024)]
    inc = f"s_add_u32 s{S_Q}, s{S_Q}, 1"
    if T == 'd':
        toks = "E D E c E D E c E . E c E B E rc E rr E rc E rr E rc E E rc E E c . J".split()
        scal = {0: setm0('K', 1-p, 0), 2: inc, 4: "WAITLG P7", 12: "s_waitcnt vmcnt(8)", 28: endbr[0], 30: "WAITLG N4"}
        Rd = pre
    else:
        toks = "E rr E rr E rr E rr E D E cc E D E B E rr E rc E rc E rr E rc E rc E E cc J".split()
        scal = {2: inc, 6: "WAITLG P7", 8: setm0('K', 1-p, 0), 14: "WAITLG O7 vmcnt(14)", 29: endbr[0], 30: "WAITLG N3"}
        Rd = [(f"O{j}", rdK(p, 8+j)) for j in range(8)] + pre
    return pack(qk_mfmas(T, p), toks, E, C, Rd, D, scal, {'J': [[endbr[1]]]}, {})

def pv_block(T, p, endbr):
    mf = []
    P = lambda pair: vr(Sb(p, pair, 0), 4)
    if T == 'd':
        for d in range(8):
            for q in range(4): mf.append(mfma16(Of(d, q), Vf(d), P(q)))
            if d & 1: mf.append(mfma16(vr(LS + 4*(d >> 1), 4), vr(ONES, 4), P(d >> 1)))
    else:
        for j in range(16):
            ks, d = j >> 3, j & 7
            for q in range(2): mf.append(mfma16(Of(d, 2+q), Vf(j), P(ks*2+q)))
            if (j & 3) == 3:
                pr = j >> 2
                mf.append(mfma16(vr(LS + 4*(2 + (pr & 1)), 4), vr(ONES, 4), P(pr)))
    E, C = sm_half(1-p, 0)
    pre = [(f"N{j}", rdK(p, j)) for j in range(8)]
    tg = f"v_xor_b32 v{V_KA}, {hex(KXOR)}, v{V_KA}" if p == 0 else f"v_xor_b32 v{V_VA}, {hex(VXOR)}, v{V_VA}"
    tm = togm0('K') if p == 1 else togm0('V')
    extra = None
    if T == 'd':
        lab = f"K2_X{p}"
        toks = "E . E ct E J E rc E D E rc E D E rc E r E rc E r E rc E . E rc E . E c . . . J".split()
        if p == 1: toks[25] = 'P'; toks[29] = 'a'
        scal = {1: f"s_add_u32 s28, s{S_Q}, 3", 2: "WAITLG P7", 4: f"s_cmp_ge_u32 s28, s{S_2D}", 8: setm0('V', 1-p, 0),
                14: adv('V', 8192), 16: adv('K', 8192), 18: tm, 33: endbr[0], 34: "WAITLG N4"}
        D = [ld('V', 0, 0), ld('V', 0, 1024)]
        J = [[f"s_cbranch_scc1 {lab}", f"{lab}r:"], [endbr[1]]]
        Rd = pre
        extra = [f"{lab}:", setm0('K', p, 1), "s_nop 0", ld('K', 1, 0), ld('K', 1, 1024), adv('K', 8192),
                 f"s_cmp_eq_u32 s28, s{S_2D}", f"s_cbranch_scc1 {lab}r",
                 setm0('V', 1-p, 1), "s_nop 0", ld('V', 1, 0), ld('V', 1, 1024), f"s_mov_b32 s29, 8192", f"s_branch {lab}r"]
        scal[14] = f"s_add_u32 s{S_VOFF}, s{S_VOFF}, s29"
        scal[20] = adv('V', 8192)
        scal[0] = "s_mov_b32 s29, 0"
    else:
        toks = "E rr E rr E D rr E rr E D ct E D E rc E D rc E rc E D rc E rr E D E rc E rc E E c J".split()
        if p == 1: toks[27] = 'DP'; toks[34] = 'ca'
        scal = {2: "WAITLG P7", 4: setm0('K', p, 1), 11: adv('K', 16384), 12: setm0('V', 1-p, 0), 16: "WAITLG O7", 21: setm0('V', 1-p, 1),
                28: adv('V', 16384), 30: tm, 33: endbr[0], 34: "WAITLG N3"}
        D = [ld('K', 1, 0), ld('K', 1, 1024), ld('V', 0, 0), ld('V', 0, 1024), ld('V', 1, 0), ld('V', 1, 1024)]
        J = [[endbr[1]]]
        Rd = [(f"O{j}", rdV(p, 8+j)) for j in range(8)] + pre
    return pack(mf, toks, E, C, Rd, D, scal, {'t': tg, 'J': J}, {}), extra

def mask_ops(blocks, vy):
    L = []
    for reg, cst in blocks:
        for r in range(4): L.append(f"v_cmp_gt_i32 s[{44+2*r}:{45+2*r}], {cst+r}, v{vy}")
        for r in range(4): L.append(f"v_cndmask_b32 v{reg+r}, v{reg+r}, v{V_NEG}, s[{44+2*r}:{45+2*r}]")
    return L

def mask_block(T, p):
    L = []
    if T == 'd':
        L += [f"s_lshl_b32 s28, s{S_Q}, 5", f"s_sub_u32 s28, s{S_YA}, s28"]
        blocks = [(Sb(p, q, kv), 16*kv - 16*q) for kv in range(2) for q in range(2)]
    else:
        L += [f"s_lshl_b32 s28, s{S_Q}, 6", f"s_sub_u32 s28, s{S_YB}, s28"]
        blocks = [(Sb(p, (kv >> 1)*2+q, kv & 1), 16*kv - 16*q) for kv in range(4) for q in range(2)]
    L += [f"v_add_u32 v{V_T}, s28, v{V_Y}", "s_nop 4"]
    L += mask_ops(blocks, V_T)
    return L

def xmax(reg, tmp):
    return [f"v_mov_b32 v{tmp}, v{reg}", "s_nop 1", f"v_permlane32_swap_b32 v{reg}, v{tmp}", f"v_max_f32 v{reg}, v{reg}, v{tmp}",
            f"v_mov_b32 v{tmp}, v{reg}", "s_nop 1", f"v_permlane16_swap_b32 v{reg}, v{tmp}", f"v_max_f32 v{reg}, v{reg}, v{tmp}"]

def kv_init_state():
    return [f"s_mov_b32 s{S_KOFF}, 0", f"s_mov_b32 s{S_VOFF}, 0", f"s_add_u32 s{S_KM0}, s{S_W2K}, {hex(KBASE)}", f"s_add_u32 s{S_VM0}, s{S_W2K}, {hex(VBASE)}",
            f"s_mov_b32 s{S_Q}, -1", f"s_mov_b32 s{S_LIM}, 0", f"s_add_u32 s{S_EA}, s{S_2D}, 2",
            f"v_add_u32 v{V_KA}, {hex(KBASE)}, v{V_L16}", f"v_add_u32 v{V_VA}, {hex(VBASE)}, v{V_L16}"]

def o_epilogue(qs, tb):
    o = []; i = 0
    for q in qs:
        o += [f"v_rcp_f32 v{tb+24}, v{LS+4*q}", f"s_lshl_b32 s28, s{56+q}, 17"]
        for t in range(4):
            b = tb + 12*(i & 1); i += 1
            for hf in range(2):
                for r in range(4): o.append(f"v_accvgpr_read_b32 v{b+4*hf+r}, a{A_O+((2*t+hf)*4+q)*4+r}")
            for r in range(4): o.append(f"v_pk_mul_f32 v[{b+2*r}:{b+2*r+1}], v[{b+2*r}:{b+2*r+1}], v[{tb+24}:{tb+25}] op_sel_hi:[1,0]")
            for r in range(4): o.append(f"v_cvt_pk_bf16_f32 v{b+8+r}, v{b+2*r}, v{b+2*r+1}")
            o.append(f"buffer_store_dwordx4 v[{b+8}:{b+11}], v{V_L16}, s[{SRD_O}:{SRD_O+3}], s28 offen offset:{t*1024} sc1")
    return o

def attn_part(pre, events, fin_pre, after, st_done):
    L = []; A = L.append
    B = {}; X = {}
    c_single = f"s_cmp_ge_u32 s{S_Q}, s{S_2DM1}"
    c_md = f"s_cmp_ge_u32 s{S_Q}, s{S_2DM4}"
    c_ms = f"s_cmp_ge_u32 s{S_Q}, 32"
    B['PVd1'], X[1] = pv_block('d', 1, (c_single, "s_cbranch_scc1 K2_QKs1"))
    B['QKd1'] = qk_block('d', 1, (c_md, "s_cbranch_scc1 K2_Md1"))
    B['PVd0'], X[0] = pv_block('d', 0, (c_single, "s_cbranch_scc1 K2_QKs0"))
    B['QKd0'] = qk_block('d', 0, (f"s_cmp_lt_u32 s{S_Q}, s{S_LIM}", "s_cbranch_scc1 K2_PVd1"))
    B['PVs1'], _ = pv_block('s', 1, (f"s_cmp_ge_u32 s{S_Q}, 34", "s_cbranch_scc1 K2_done"))
    B['QKs1'] = qk_block('s', 1, (c_ms, "s_cbranch_scc1 K2_Ms1"))
    B['PVs0'], _ = pv_block('s', 0, (f"s_cmp_ge_u32 s{S_Q}, 33", "s_cbranch_scc1 K2_tail"))
    B['QKs0'] = qk_block('s', 0, (f"s_cmp_lt_u32 s{S_Q}, s{S_LIM}", "s_cbranch_scc1 K2_PVs1"))
    for T in 'ds':
        for p in range(2): B['M'+T+str(p)] = mask_block(T, p)
    A(".p2align 6")
    for n in ('PVd1', 'QKd1', 'PVd0', 'QKd0'):
        A(f"K2_{n}:"); L += B[n]
    A(c_md); A("s_cbranch_scc1 K2_Md0")
    evt = ["K2_EVT:", f"s_cmp_eq_u32 s{S_Q}, 0", "s_cbranch_scc1 K2_first",
           f"s_cmp_eq_u32 s{S_Q}, s{S_EA}", "s_cbranch_scc1 K2_evA", "K2_EVT2:",
           f"s_cmp_eq_u32 s{S_Q}, s{S_NE}", "s_cbranch_scc1 K2_evN", "K2_EVT3:",
           f"s_cmp_lt_u32 s{S_Q}, s{S_2D}", f"s_cselect_b32 s{S_LIM}, s{S_2DM4}, 32", f"s_min_u32 s{S_LIM}, s{S_LIM}, s{S_NE}", f"s_min_u32 s{S_LIM}, s{S_LIM}, s{S_EA}",
           f"s_cmp_le_u32 s{S_Q}, s{S_2D}", "s_cbranch_scc1 K2_PVd1", "s_branch K2_PVs1"]
    L += evt
    evA = o_epilogue((0, 1), 192) + [f"s_movk_i32 s{S_EA}, 99"]
    L += ["K2_evA:"] + evA + ["s_branch K2_EVT2"]
    A("K2_evN:"); A(f"s_add_u32 s{S_NE}, s{S_NE}, 4"); A(f"s_add_u32 s{S_EV}, s{S_EV}, 1")
    for k in range(1, len(events)): A(f"s_cmp_eq_u32 s{S_EV}, {k+1}"); A(f"s_cbranch_scc1 K2_ev{k}")
    for k, ev in enumerate(events):
        L += [f"K2_ev{k}:"] + ev + ([f"s_movk_i32 s{S_NE}, 99"] if k == len(events) - 1 else []) + ["s_branch K2_EVT3"]
    A("K2_first:")
    first = []
    first += [f"s_cmp_lg_u32 s{S_RETRY}, 0", "s_cbranch_scc1 K2_nomax", "s_nop 4"]
    for q in range(4):
        n = Sb(0, q, 0); m = V_T + q
        first += [f"v_max3_f32 v{m}, v{n}, v{n+1}, v{n+2}", f"v_max3_f32 v{m}, v{m}, v{n+3}, v{n+4}", f"v_max3_f32 v{m}, v{m}, v{n+5}, v{n+6}", f"v_max_f32 v{m}, v{m}, v{n+7}"]
    for q in range(4): first += xmax(V_T+q, V_T+4)
    for q in range(4):
        n = Sb(0, q, 0); m = V_T + q
        for r in range(4): first.append(f"v_sub_f32 v{CI+4*q+r}, 0, v{m}")
        for r in range(8): first.append(f"v_sub_f32 v{n+r}, v{n+r}, v{m}")
    first += ["K2_nomax:", "s_nop 4"]
    first += [rdK(1, j) for j in range(8)]
    first += flat(kv_simple('V', 2)) + [adv('K', 8192), togm0('K'), f"s_min_u32 s{S_LIM}, s{S_2DM4}, s{S_NE}"]
    E, C = sm_half(0, 0)
    first += E + C + ["s_waitcnt lgkmcnt(0)", "s_branch K2_QKd1"]
    L += first
    A("K2_Md1:"); L += B['Md1']; A("s_branch K2_PVd0")
    A("K2_Md0:"); L += B['Md0']; A("s_branch K2_EVT")
    A("K2_Ms1:"); L += B['Ms1']; A("s_branch K2_PVs0")
    A("K2_Ms0:"); L += B['Ms0']; A("s_branch K2_EVT")
    L += X[0] + X[1]
    A(".p2align 6")
    for n in ('PVs1', 'QKs1', 'PVs0', 'QKs0'):
        A(f"K2_{n}:"); L += B[n]
    A(c_ms); A("s_cbranch_scc1 K2_Ms0"); A("s_branch K2_EVT")
    E, C = sm_half(1, 1)
    tail = [f"s_add_u32 s{S_Q}, s{S_Q}, 1", "s_waitcnt vmcnt(0)", "s_barrier"] + [rdV(1, j) for j in range(8)] + E + C + ["s_waitcnt lgkmcnt(0)", "s_branch K2_PVs1"]
    A("K2_tail:"); L += tail
    fin = []
    fin += st_done
    fin += ["s_nop 7",
            f"v_add_f32 v{V_T+1}, v{LS}, v{LS+4}", f"v_add_f32 v{V_T+1}, v{V_T+1}, v{LS+8}", f"v_add_f32 v{V_T+1}, v{V_T+1}, v{LS+12}",
            f"v_mov_b32 v{V_T+2}, {fhex(float(os.environ.get('LTH', LTHRESH)))}",
            f"v_cmp_nle_f32 vcc, v{V_T+1}, v{V_T+2}", "s_nop 1",
            "s_cmp_lg_u64 vcc, 0", "s_cselect_b32 s28, 1, 0",
            f"v_mov_b32 v{V_T}, s28", f"s_lshl_b32 s29, s{S_W}, 2", f"s_add_u32 s29, s29, {hex(KBASE)}", f"v_mov_b32 v{V_T+1}, s29",
            f"ds_write_b32 v{V_T+1}, v{V_T}", f"v_mov_b32 v{V_T+1}, {hex(KBASE)}",
            "s_waitcnt vmcnt(0) lgkmcnt(0)", "s_barrier",
            f"ds_read_b128 v[{16}:{19}], v{V_T+1}"]
    fin += ["s_waitcnt lgkmcnt(0)", "v_or3_b32 v16, v16, v17, v18", "v_or_b32 v16, v16, v19", "s_nop 0", "v_readfirstlane_b32 s28, v16",
            f"s_andn2_b32 s28, s28, s{S_RETRY}", "s_cmp_lg_u32 s28, 0" if not os.environ.get("DROP") else "s_cmp_eq_u32 s28, 77", "s_cbranch_scc1 K2_slow"]
    fin += fin_pre
    fin += o_epilogue((2, 3), 192)
    finA = [f"s_cmp_eq_u32 s{S_EA}, 99", "s_cbranch_scc1 K2_finB"] + o_epilogue((0, 1), 32) + ["K2_finB:"]
    fin += finA
    sl = ["K2_slow:", f"s_mov_b32 s{S_RETRY}, 1", "s_barrier"]
    for q in range(4): sl.append(f"v_mov_b32 v{LS+q}, v{V_NEG}")
    sl += [f"v_add_u32 v{V_KA}, {hex(KBASE)}, v{V_L16}", f"s_mov_b32 s{S_KOFF}, 0", f"s_mov_b32 s{S_Q}, 0", f"s_lshr_b32 s{S_KCNT}, s{SRD_K+2}, 13",
           f"s_lshl_b32 s62, s58, 4",
           "K2_slowloop:", f"s_add_u32 m0, s{S_W2K}, {hex(KBASE)}", "s_nop 0",
           f"buffer_load_dwordx4 v{V_KVD}, s[{SRD_K}:{SRD_K+3}], s{S_KOFF} offen{SC} lds",
           f"buffer_load_dwordx4 v{V_KVD}, s[{SRD_K}:{SRD_K+3}], s{S_KOFF} offen offset:1024{SC} lds",
           f"s_add_u32 s{S_KOFF}, s{S_KOFF}, 8192", "s_waitcnt vmcnt(0)", "s_barrier"]
    sl += [rdK(0, j) for j in range(8)] + ["s_waitcnt lgkmcnt(0)", "s_barrier"]
    for kv in range(2):
        for q in range(4):
            for ds in range(4):
                sl.append(mfma16(vr(Sb(0, q, kv), 4), Kf(kv*4+ds), Qf(q, ds), "0" if ds == 0 else None))
    sl += [f"s_lshl_b32 s28, s{S_Q}, 5", f"s_sub_u32 s29, s{S_YA}, s28", f"v_add_u32 v{V_T}, s29, v{V_Y}",
           f"s_sub_u32 s29, s62, s28", f"v_add_u32 v{V_T+1}, s29, v{V_Y}", "s_nop 7"]
    sl += mask_ops([(Sb(0, q, kv), 16*kv - 16*q) for kv in range(2) for q in range(2)], V_T)
    sl += mask_ops([(Sb(0, 2+q, kv), 16*kv - 16*q) for kv in range(2) for q in range(2)], V_T+1)
    for q in range(4):
        n = Sb(0, q, 0)
        for r in range(4): sl.append(f"v_max3_f32 v{LS+q}, v{LS+q}, v{n+2*r}, v{n+2*r+1}")
    sl += [f"s_add_u32 s{S_Q}, s{S_Q}, 1", f"s_cmp_lt_u32 s{S_Q}, s{S_KCNT}", "s_cbranch_scc1 K2_slowloop"]
    for q in range(4): sl += xmax(LS+q, V_T+4)
    for q in range(4):
        for r in range(4): sl.append(f"v_sub_f32 v{CI+4*q+r}, 0, v{LS+q}")
    for r in range(16): sl.append(f"v_mov_b32 v{LS+r}, 0")
    for r in range(128): sl.append(f"v_accvgpr_write_b32 a{r}, 0")
    sl += kv_init_state()
    for wch, idx in (('K', 0), ('K', 1), ('V', 0), ('K', 2), ('V', 1)): sl += flat(kv_simple(wch, idx))
    sl += ["s_waitcnt vmcnt(8)", "s_barrier"] + [rdK(0, j) for j in range(8)] + ["s_waitcnt lgkmcnt(0)", "s_branch K2_QKd0"]
    L += sl
    A("K2_done:"); L += fin + after
    for i in (0, 3, 7):
        D2 = 4*i + 4
        tr = list(pre)
        def qk(h):
            T = 'd' if h < D2 else 's'
            t = list(B['QK'+T+str(h & 1)])
            if (T == 'd' and h + 4 >= D2) or (T == 's' and h >= 32): t = t + B['M'+T+str(h & 1)]
            if h == D2 + 2: t = t + evA
            if h >= EV0 and (h - EV0) % 4 == 0 and (h - EV0)//4 < len(events): t = t + events[(h - EV0)//4]
            return t
        def pv(h):
            t = list(B["PV"+("d" if h < D2 else "s")+str(h & 1)])
            if h < D2 and h + 4 >= D2:
                k = t.index(f"K2_X{h&1}r:")
                x = X[h & 1] if h + 3 >= D2 else X[h & 1][:8]
                t = t[:k] + x + t[k:]
            return t
        tr += qk(0) + first + qk(1)
        for h in range(0, 32): tr += pv(h) + qk(h+2)
        tr += pv(32) + tail + pv(33) + fin + (after if i == 0 else sl)
        check_trace(resolve_waits(tr), f"k2 i={i}")
    return L
```

```python
from common import *
from attn import *
import k0

V_CA0, V_CA1, V_CV0, V_CV1 = 5, 6, 7, 12
V_TR2 = 24; V_WV0 = 28; V_SIG = 29; V_ONE = 30; V_POLL = 31; V_HST = 0; V_MODA = 23
SRD_C = 12; SRD_WQ = 68; SRD_WS = 72; SRD_DBG = 76
A_C = 128; A_W = 192; A_N = 224; A_CS = 32; A_DUM = 249
S_M0W = 40; S_M0C = 41; S_XF = 63; S_WOFF = 43
CBASE = [0x20000, 0x18000]
HUGE = 0x7ffffff0

def acc_idx(n, kv):
    if n < 8: return 2*((n >> 1)*4 + kv) + (n & 1)
    return 2*(16 + (n - 8)*2 + (kv >> 1)) + (kv & 1)
def accr(a): return vr(32 + 4*a, 4) if a < 56 else ar(4*(a-56), 4)
def cf(c, kv, k): return ar(A_C + (c & 1)*32 + (kv*2+k)*4, 4)
def wf(n, k): return ar(A_W + ((n & 3)*2+k)*4, 4)
def hf(c, q, k): return ar((((c+1) & 3)*8 + q*2 + k)*4, 4)
def qacc(d, q): return vr(QACC + (d*4+q)*4, 4)

def rd_w(sc, grp, n, tag):
    st = sc % 3
    L = []
    for k in range(2):
        base = A_W + ((n & 3)*2+k)*4
        for t in range(2):
            av = (V_TR2 if st == 2 else V_TR) + (n & 3)
            L.append(f"ds_read_b64_tr_b16 {ar(base+2*t,2)}, v{av} offset:{(st&1)*32768 + grp*8192 + k*4096 + t*2048} ; tag={tag}")
    return L
def w_issue(sc):
    L = []
    srd_ = SRD_W if sc < 8 else SRD_WQ
    if sc == 8: L.append(f"v_subrev_u32 v{V_WV}, {8*64*8192}, v{V_WV}")
    for j in range(8):
        if j % 4 == 0: L.append(f"s_add_u32 m0, s{S_M0W}, {(sc % 3)*32768 + (j >> 2)*4096}")
        L.append(f"buffer_load_dwordx4 v{V_WV}, s[{srd_}:{srd_+3}], s{44+j} offen offset:{(j&3)*1024} lds ; tag=W{sc}")
    L.append(f"v_add_u32 v{V_WV}, {(64 if sc < 8 else 128)*8192}, v{V_WV}")
    return L
def c_issue(c):
    L = []
    for j in range(8):
        if j % 4 == 0: L.append(f"s_add_u32 m0, s{S_M0W}, {CBASE[c & 1] + (j >> 2)*4096}")
        L.append(f"buffer_load_dwordx4 v{V_CV1 if j & 1 else V_CV0}, s[{SRD_C}:{SRD_C+3}], s{52+j} offen offset:{(j&3)*1024} lds ; tag=C{c}")
    L += [f"v_add_u32 v{V_CV0}, 128, v{V_CV0}", f"v_add_u32 v{V_CV1}, 128, v{V_CV1}"]
    return L
def rd_c(c):
    return [f"ds_read_b128 {cf(c, kv, k)}, v{V_CA0 + k} offset:{CBASE[c & 1] - 0x18000 + kv*2048} ; tag=RC{c}" for kv in range(4) for k in range(2)]
def h_issue(c):
    L = [f"buffer_load_dwordx4 {hf(c,q,k)}, v{V_L16}, s[{SRD_WS}:{SRD_WS+3}], s{52+q} offen offset:{((2*c+k)&3)*1024} sc1 ; tag=H{c}" for q in range(4) for k in range(2)]
    if c & 1: L += [f"s_add_u32 s{52+q}, s{52+q}, 4096" for q in range(4)]
    return L
def nop_m0(L):
    out = []
    for x in L:
        out.append(x)
        if x.startswith("s_add_u32 m0"): out.append("s_nop 0")
    return out

spins = []
SLEEP = int(os.environ.get('SLEEP', '8'))
def poll_addr(n8):
    if not n8: return [], V_SIG
    return [f"v_lshrrev_b32 v{V_POLL}, 3, v{V_LANE}", f"v_lshl_or_b32 v{V_POLL}, v{V_POLL}, 26, s{S_WOFF}", f"v_lshl_or_b32 v{V_POLL}, v{V_LANE}, 7, v{V_POLL}"], V_POLL
def poll_issue(srd_, soff, tag, n8=False):
    pre, va = poll_addr(n8)
    return pre + [f"buffer_load_dword v{V_POLL}, v{va}, s[{srd_}:{srd_+3}], {soff} offen sc1" + (f" ; tag={tag}" if tag else "")]
def poll_check(name, srd_, soff, target, n8=False, bar=True):
    msk = 0xff if n8 else 1
    spins.append([f"KA_spin_{name}:", f"s_cmp_lg_u32 s{S_W}, 0", f"s_cbranch_scc1 KA_ret_{name}",
                  "s_mov_b32 s29, 0x20000", f"KA_spinl_{name}:", f"s_sleep {SLEEP}"] + poll_issue(srd_, soff, None, n8) +
                 ["s_waitcnt vmcnt(0)", f"v_cmp_gt_u32 vcc, {target}, v{V_POLL}", "s_sub_u32 s29, s29, 1", "s_cmp_eq_u32 s29, 0", f"s_cbranch_scc1 KA_ret_{name}",
                  f"s_and_b32 s28, vcc_lo, {msk}", "s_cmp_lg_u32 s28, 0", f"s_cbranch_scc1 KA_spinl_{name}", f"s_branch KA_ret_{name}"])
    return [f"v_cmp_gt_u32 vcc, {target}, v{V_POLL}", (f"s_and_b32 s28, vcc_lo, {msk}", 1), f"s_cmp_lg_u32 s28, 0\ns_cbranch_scc1 KA_spin_{name}", f"KA_ret_{name}:"] + (["s_barrier"] if bar else [])
def signal(srd_, soff, vaddr=V_SIG, val=V_ONE): return f"buffer_atomic_add v{val}, v{vaddr}, s[{srd_}:{srd_+3}], {soff} offen"

ORDER = int(os.environ.get("ORDER", "1"))
WARM = int(os.environ.get("WARM", "1"))
DST = float(os.environ.get("DST", "6"))
WARMS = {0: [('wuk', 512*8192), ('wuv', 512*8192), ('ckv', 2048*1024), ('code', 0)], 1: [('wq', 640*8192)], 5: [('wo', 4096*1280), ('wd', 1728*1280)], 6: [('wg', 640*3456), ('wu', 640*3456)]}
WARMN = [0]
PM_GAP = int(os.environ.get("PM_GAP", "10"))
MW_GAP = int(os.environ.get("MW_GAP", "8"))
LN2 = 8
WQC = int(os.environ.get("WQC", "4"))
HS_GAP = int(os.environ.get("HS_GAP", "44"))
STPOS = os.environ.get("STPOS", "p,c7,q").split(",")
def pst(name):
    if not STAMPS or name not in STPOS: return []
    return stamp(1 + STPOS.index(name)) + ["s_waitcnt lgkmcnt(0)"]

A_MW = 72; A_S = 244; A_X = 96
MACC = 14
V_MU, V_RS = 30, 4

A_PF = 124; A_MW2 = 224
_dum = [0]
PFS = os.environ.get('PFS', 'mqiwj')
EVEN = int(os.environ.get('EVEN', '1'))
def dum():
    _dum[0] += 1
    return f"a{A_DUM + _dum[0] % 7}"
def pfw(step, v):
    if step < 4 and 'w' not in PFS: return []
    if step >= 4 and 'q' not in PFS: return []
    if step < 4: return [f"s_mov_b32 s41, {step*128*8192}", f"buffer_load_dword {dum()}, v{v}, s[{SRD_W}:{SRD_W+3}], s41 offen"]
    return [f"s_lshr_b32 s41, s{S_W}, 1", "s_lshl_b32 s41, s41, 19", f"s_add_u32 s41, s41, {(step-4)*256*8192}", f"buffer_load_dword {dum()}, v{v}, s[{SRD_WQ}:{SRD_WQ+3}], s41 offen"]
def pfc(step, v): return [] if 'c' not in PFS else [f"buffer_load_dword {dum()}, v{v}, s[{SRD_C}:{SRD_C+3}], 0 offen offset:{step*256}"]
def pf(step, v):
    if not WARM: return []
    L = [f"v_accvgpr_read_b32 v{v}, a{A_PF}"] + pfw(step, v)
    if step < 4: L += [f"v_accvgpr_read_b32 v{v}, a{A_PF+1}"] + pfc(step, v)
    return L

def prologue():
    L = []; A = L.append
    A("s_cmp_ge_u32 s2, 256"); A("s_cbranch_scc1 KA_end")
    L += stamp_init()
    A("s_load_dwordx4 s[16:19], s[0:1], 0")
    A("s_load_dwordx4 s[20:23], s[0:1], 24")
    A("s_load_dwordx4 s[32:35], s[0:1], 80")
    A("s_load_dwordx4 s[36:39], s[0:1], 104")
    A(ldptr(6, 'wq')); A(ldptr(96, 'wo')); A(ldptr(98, 'wd')); A("s_load_dwordx4 s[84:87], s[0:1], 56")
    if 'i' in PFS:
        A("s_getpc_b64 s[8:9]"); A(f"s_mov_b32 s10, KA_end-{NAME}_kernel-64"); A("s_mov_b32 s11, 0x20000")
        A("s_lshr_b32 s28, s2, 3"); A("s_lshl_b32 s28, s28, 7"); A("v_lshlrev_b32 v1, 12, v0")
        A(f"buffer_load_dword {dum()}, v1, s[8:11], s28 offen")
    L += wave_id(S_W, 1)
    A(f"v_and_b32 v{V_LANE}, 63, v0")
    A(f"s_and_b32 s{S_HEAD}, s2, 7"); A(f"s_lshl_b32 s{S_HEAD}, s{S_HEAD}, 2"); A("s_bfe_u32 s28, s2, 0x20003"); A(f"s_add_u32 s{S_HEAD}, s{S_HEAD}, s28")
    A(f"s_lshr_b32 s{S_I}, s2, 5")
    A(f"s_lshl_b32 s{S_M0W}, s{S_W}, 13")
    for j in range(8):
        A(f"s_mov_b32 s{44+j}, {(NATROW[j&3] + 32*(j>>2))*8192 - (j&3)*1024}")
        A(f"s_mov_b32 s{52+j}, {j*8192 - (j&3)*1024}")
    A("s_movk_i32 s28, 8192")
    L += wdma_voff(V_WV, V_LANE, 13, 14, "s28", nat=True)
    A(f"v_lshrrev_b32 v13, 3, v{V_LANE}"); A("v_lshrrev_b32 v16, 1, v13"); A(f"v_and_b32 v15, 7, v{V_LANE}")
    A("v_xor_b32 v14, v16, v15"); A("v_lshlrev_b32 v14, 4, v14"); A(f"v_lshl_add_u32 v{V_CV0}, v13, 10, v14")
    A(f"v_xor_b32 v{V_CV1}, 64, v{V_CV0}")
    A(f"s_lshl_b32 s30, s{S_I}, 18"); A(f"s_lshl_b32 s29, s{S_W}, 16"); A("s_add_u32 s30, s30, s29")
    A(f"s_lshl_b32 s28, s{S_HEAD}, 8"); A(f"s_and_b32 s29, s{S_W}, 1"); A("s_lshl_b32 s29, s29, 7"); A("s_add_u32 s28, s28, s29")
    A("v_and_b32 v36, 0xfe, v0")
    A("s_lshr_b32 s31, s2, 3"); A("s_lshl_b32 s31, s31, 1"); A(f"s_and_b32 s41, s{S_W}, 1"); A("s_add_u32 s31, s31, s41"); A("s_lshl_b32 s31, s31, 13")
    A("s_and_b32 s41, s28, 0x3ff"); A("s_sub_u32 s31, s31, s41")
    A("v_lshlrev_b32 v22, 19, v13"); A("v_lshl_add_u32 v22, v15, 7, v22"); A("v_add_u32 v22, s31, v22"); A("v_lshl_or_b32 v22, v16, 26, v22")
    A(f"v_lshrrev_b32 v23, 1, v{V_LANE}"); A(f"s_and_b32 s31, s{S_HEAD}, 3"); A("s_lshl_b32 s31, s31, 14"); A(f"v_lshl_add_u32 v23, v23, 10, s31")
    A(f"v_and_b32 v17, 1, v{V_LANE}"); A("v_lshl_add_u32 v23, v17, 7, v23"); A(f"v_lshrrev_b32 v17, 5, v{V_LANE}"); A("v_lshl_or_b32 v23, v17, 26, v23")
    A("s_lshr_b32 s41, s2, 3"); A("s_lshl_b32 s41, s41, 2"); A(f"s_add_u32 s41, s41, s{S_W}"); A(f"s_mul_i32 s41, s41, {5*7680}")
    A("s_and_b32 s31, s2, 7"); A("s_lshl_b32 s31, s31, 7"); A("s_add_u32 s41, s41, s31")
    A(f"v_and_b32 v18, 7, v{V_LANE}"); A("v_mul_u32_u24 v19, 7680, v18"); A(f"v_lshrrev_b32 v20, 3, v{V_LANE}"); A("v_lshl_add_u32 v19, v20, 10, v19"); A("v_add_u32 v19, s41, v19")
    A("v_add_u32 v18, 3, v18"); A("v_lshrrev_b32 v18, 3, v18"); A("v_lshl_or_b32 v19, v18, 26, v19")
    A("v_add_u32 v18, 5, v20"); A("v_lshrrev_b32 v18, 3, v18"); A("v_lshl_or_b32 v19, v18, 26, v19")
    A("s_waitcnt lgkmcnt(0)")
    L += srd(64, 34, 640*7680)
    if 'm' in PFS: A(f"buffer_load_dword {dum()}, v19, s[64:67], 0 offen")
    L += srd(SRD_C, 18, 65536, "s30")
    A(f"s_cmp_ge_u32 s{S_W}, 2"); A("s_cselect_b32 s20, s22, s20"); A("s_cselect_b32 s21, s23, s21")
    A(f"s_add_u32 s{SRD_W}, s20, s28"); A(f"s_addc_u32 s{SRD_W+1}, s21, 0"); A(f"s_sub_u32 s{SRD_W+2}, {512*8192}, s28"); A(f"s_mov_b32 s{SRD_W+3}, 0x20000")
    if '0' in PFS: L += pfw(0, 22) + pfc(0, 23)
    L += srd(68, 32, 1280)
    for i in range(5): A(f"buffer_load_ushort v{40+i}, v36, s[68:71], 0 offen offset:{i*256} ; tag=MC")
    L += nop_m0(w_issue(0) + c_issue(0))
    if '1' in PFS: L += pfw(1, 22) + pfc(1, 23)
    A(f"v_accvgpr_write_b32 a{A_PF}, v22"); A(f"v_accvgpr_write_b32 a{A_PF+1}, v23")
    L += pst("p0")
    mark0 = len(L)
    A(f"v_lshlrev_b32 v{V_L16}, 4, v{V_LANE}")
    A("s_mov_b32 s4, s38"); A("s_mov_b32 s5, s39")
    A(f"s_lshr_b32 s29, s{S_W}, 1"); A("s_lshl_b32 s29, s29, 19"); A("s_add_u32 s28, s28, s29")
    A(f"s_add_u32 s{SRD_WQ}, s6, s28"); A(f"s_addc_u32 s{SRD_WQ+1}, s7, 0"); A(f"s_sub_u32 s{SRD_WQ+2}, {640*8192}, s28"); A(f"s_mov_b32 s{SRD_WQ+3}, 0x20000")
    L += srd(SRD_WS, 4, 0x1000000); L += srd(SRD_DBG, 36, 256)
    A(f"s_lshl_b32 s60, s{S_I}, 5"); A(f"s_add_u32 s60, s60, s{S_HEAD}")
    A("s_cmp_lt_u32 s60, 80"); A("s_cselect_b32 s66, s66, 0")
    L += srd(SRD_V, 16, 2048*1280)
    A("v_lshrrev_b32 v33, 1, v0"); A("s_movk_i32 s28, 7680"); A("v_mul_lo_u32 v28, v33, s28"); A("v_and_b32 v35, 1, v0")
    A("v_lshl_add_u32 v28, v35, 4, v28"); A("s_lshl_b32 s29, s60, 5"); A("v_add_u32 v28, s29, v28")
    A(f"v_lshrrev_b32 v37, 5, v{V_LANE}"); A("s_lshl_b32 s28, s2, 3"); A(f"s_lshl_b32 s29, s{S_W}, 1"); A("s_add_u32 s28, s28, s29"); A("v_add_u32 v37, s28, v37")
    A(f"v_and_b32 v38, 31, v{V_LANE}"); A("s_movk_i32 s28, 1280"); A("v_mul_lo_u32 v31, v37, s28"); A("v_lshl_add_u32 v30, v38, 3, v31"); A("v_lshl_add_u32 v31, v38, 4, v31")
    A(f"v_mov_b32 v13, {hex(HUGE)}"); A("v_cmp_eq_u32 vcc, 0, v0"); A("s_nop 1"); A(f"v_cndmask_b32 v{V_SIG}, v13, 0, vcc")
    A(f"s_getreg_b32 s{S_XF}, hwreg(HW_REG_XCC_ID, 0, 3)"); A(f"s_lshl_b32 s{S_XF}, s{S_XF}, 2")
    A("v_lshlrev_b32 v15, 7, v0"); A("s_cmp_eq_u32 s2, 0"); A("s_cselect_b32 s28, 64, 0"); A("v_cmp_gt_u32 vcc, s28, v0"); A("v_mov_b32 v16, 0"); A("v_mov_b32 v17, 0"); A("v_mov_b32 v18, 0"); A("v_mov_b32 v19, 0")
    A(f"s_movk_i32 s28, {WS_CNT}"); A("v_cndmask_b32 v15, v13, v15, vcc"); A(f"s_movk_i32 s29, {WS_CNT + 8192}")
    A(f"buffer_store_dwordx4 v[16:19], v15, s[{SRD_WS}:{SRD_WS+3}], s28 offen sc1 ; tag=ZI")
    A(f"buffer_store_dwordx4 v[16:19], v15, s[{SRD_WS}:{SRD_WS+3}], s29 offen sc1 ; tag=ZI")
    A(f"s_cmp_eq_u32 s{S_W}, 0"); A(f"s_cselect_b32 s{S_WOFF}, 0, {1 << 26}")
    A("s_cmp_eq_u32 s2, 0"); A("s_cselect_b32 s31, 0, 0x1000")
    L += tr_addr(V_TR, V_LANE, 13, 14)
    for b in range(4): A(f"v_add_u32 v{V_TR2+b}, 0x10000, v{V_TR+b}")
    A(f"v_and_b32 v13, 15, v{V_LANE}"); A(f"v_lshrrev_b32 v14, 4, v{V_LANE}"); A("v_lshrrev_b32 v15, 1, v13")
    A("v_xor_b32 v14, v14, v15"); A("v_lshlrev_b32 v14, 4, v14"); A("v_lshl_add_u32 v13, v13, 7, v14")
    A(f"s_add_u32 s28, s{S_M0W}, 0x18000"); A(f"v_add_u32 v{V_CA0}, s28, v13"); A(f"v_xor_b32 v{V_CA1}, 64, v{V_CA0}")
    A("v_lshrrev_b32 v13, 4, v37"); A("v_mul_u32_u24 v13, 20, v13"); A("v_lshrrev_b32 v14, 3, v38"); A("v_add_u32 v13, v13, v14"); A("v_lshlrev_b32 v13, 6, v13")
    A("v_bfe_u32 v14, v38, 1, 2"); A("v_lshl_add_u32 v13, v14, 4, v13"); A("v_and_b32 v14, 15, v37"); A("v_add_u32 v13, v13, v14"); A("v_lshlrev_b32 v13, 4, v13")
    A("v_and_b32 v14, 1, v38"); A("v_lshl_add_u32 v13, v14, 3, v13"); A(f"v_add_u32 v13, {WS_H + 16384}, v13"); A(f"v_accvgpr_write_b32 a{A_PF+3}, v13")
    A("v_lshrrev_b32 v13, 4, v37"); A("v_mul_u32_u24 v13, 20480, v13"); A("v_lshl_add_u32 v13, v38, 8, v13"); A("v_and_b32 v14, 15, v37"); A("v_lshl_add_u32 v13, v14, 4, v13")
    A(f"v_add_u32 v{V_HST}, {WS_H}, v13")
    if 'f' in os.environ.get("EXP", ""):
        A("s_lshl_b32 s28, s2, 2"); A(f"s_add_u32 s28, s28, s{S_W}"); A("s_lshl_b32 s28, s28, 10"); A("s_and_b32 s29, s28, 0x1fff"); A("s_andn2_b32 s28, s28, 0x1fff"); A("s_lshl_b32 s28, s28, 1"); A("s_add_u32 s28, s28, s29")
        A(f"s_add_u32 s28, s28, {WS_H}"); A(f"v_add_u32 v{V_HST}, s28, v{V_L16}")
        A("s_lshl_b32 s28, s2, 2"); A(f"s_add_u32 s28, s28, s{S_W}"); A("s_lshl_b32 s28, s28, 9"); A(f"s_add_u32 s28, s28, {WS_H + 0x200000}"); A(f"v_lshlrev_b32 v13, 3, v{V_LANE}"); A("v_add_u32 v13, s28, v13")
        A(f"v_accvgpr_write_b32 a{A_PF+3}, v13")
    A(f"s_lshl_b32 s{S_W2K}, s{S_W}, 11")
    A(f"s_lshl_b32 s{S_2D}, s{S_I}, 2"); A(f"s_add_u32 s{S_2D}, s{S_2D}, 4")
    A(f"s_sub_u32 s{S_2DM1}, s{S_2D}, 1"); A(f"s_sub_u32 s{S_2DM4}, s{S_2D}, 4"); A(f"s_mov_b32 s{S_RETRY}, 0")
    A("s_lshr_b32 s28, s2, 4"); A("s_sub_u32 s29, 15, s28"); A("s_min_u32 s28, s28, s29"); A("s_lshl_b32 s28, s28, 3"); A("s_and_b32 s29, s2, 7"); A("s_add_u32 s28, s28, s29")
    A("s_lshl_b32 s28, s28, 7"); A(f"s_add_u32 s24, s28, {WS_CNT + 8*128}")
    A(f"s_lshl_b32 s28, s{S_I}, 10"); A(f"s_add_u32 s25, s28, {WS_CNT + 8*128}")
    A(f"s_lshl_b32 s28, s{S_HEAD}, 7"); A(f"s_add_u32 s62, s28, {WS_CNT + 72*128}")
    A(f"s_lshl_b32 s28, s{S_I}, 16"); A(f"s_lshl_b32 s29, s{S_W}, 14"); A("s_add_u32 s32, s28, s29")
    for j in range(1, 4): A(f"s_add_u32 s{32+j}, s32, {j*4096}")
    A("s_and_b32 s28, s60, 7"); A("s_lshl_b32 s28, s28, 7"); A(f"s_add_u32 s28, s28, {WS_CNT}")
    A("s_cmp_lt_u32 s60, 80"); A(f"s_cselect_b32 s61, s28, 0x2000000")
    A("s_cmp_lt_u32 s60, 40"); A("s_cselect_b32 s80, 0, 1.0"); A(f"s_cselect_b32 s81, {fhex(QSCALE)}, 1.0")
    A("s_cmp_lt_u32 s60, 80"); A("s_cselect_b32 s82, 16, 0")
    A(f"s_cmp_lg_u32 s{S_W}, 0"); A("s_cmov_b32 s82, 0"); A("s_lshl_b32 s60, s60, 6")
    A(f"s_cmp_ge_u32 s{S_W}, 2"); A("s_cselect_b32 s86, s86, s84"); A("s_cselect_b32 s87, s87, s85")
    A("s_lshl_b32 s28, s2, 2"); A(f"s_add_u32 s28, s28, s{S_W}"); A("s_cmp_lt_u32 s28, 640")
    A("s_cselect_b32 s96, s96, s98"); A("s_cselect_b32 s97, s97, s99"); A(f"s_mov_b32 s98, {1728*1280}"); A(f"s_cmov_b32 s98, {4096*1280}"); A("s_mov_b32 s99, 0x20000")
    A("s_cselect_b32 s29, 0, 640"); A(f"s_mov_b32 s84, {54*1024}"); A(f"s_cmov_b32 s84, {128*1024}"); A(f"s_mov_b32 s83, {WS_WD - WS_WO}"); A("s_cmov_b32 s83, 0")
    A("s_cmp_lt_u32 s28, 910"); A("s_cselect_b32 s83, s83, 0x4000000"); A("s_cselect_b32 s28, s28, 640")
    A("s_sub_u32 s28, s28, s29"); A("s_mul_i32 s29, s28, 13108"); A("s_lshr_b32 s29, s29, 16"); A("s_mul_i32 s41, s29, 5"); A("s_sub_u32 s28, s28, s41")
    A("s_mul_i32 s41, s28, s84"); A("s_lshl_b32 s41, s41, 3"); A("s_add_u32 s83, s83, s41"); A("s_lshl_b32 s41, s29, 10"); A("s_add_u32 s83, s83, s41")
    A(f"s_mul_i32 s36, s29, {32*1280}"); A("s_lshl_b32 s28, s28, 8"); A("s_add_u32 s36, s36, s28")
    A("s_add_u32 s28, s96, s36"); A("s_addc_u32 s29, s97, 0"); A("v_mov_b32 v54, s28"); A("v_mov_b32 v55, s29"); A(f"v_mov_b32 v56, {4*1280}")
    A(f"v_lshrrev_b32 v57, 1, v{V_LANE}"); A("v_mul_u32_u24 v57, 1280, v57"); A(f"v_and_b32 v58, 1, v{V_LANE}"); A("v_lshl_add_u32 v57, v58, 7, v57")
    A(f"v_cmp_gt_u32 vcc, 8, v{V_LANE}"); A(f"v_and_b32 v58, 7, v{V_LANE}"); A(f"v_lshrrev_b32 v59, 3, v{V_LANE}"); A("v_cndmask_b32 v57, 0, v57, vcc")
    A("s_and_b32 s28, s2, 31"); A("s_min_u32 s28, s28, 26"); A("s_lshl_b32 s28, s28, 7"); A(f"s_lshl_b32 s29, s{S_I}, 1"); A(f"s_and_b32 s41, s{S_W}, 1"); A("s_add_u32 s29, s29, s41")
    A(f"s_mul_i32 s29, s29, {40*3456}"); A("s_add_u32 s28, s28, s29"); A("s_add_u32 s86, s86, s28"); A("s_addc_u32 s87, s87, 0")
    A("v_cmp_gt_u32 s[28:29], 5, v58"); A("v_cmp_eq_u32 vcc, 1, v59"); A("v_mul_u32_u24 v60, 3456, v58"); A("s_and_b64 vcc, vcc, s[28:29]")
    A("v_mov_b32 v61, s86"); A("v_cndmask_b32 v54, v54, v61, vcc"); A("v_mov_b32 v61, s87"); A("v_cndmask_b32 v55, v55, v61, vcc")
    A(f"v_mov_b32 v61, {5*3456}"); A("v_cndmask_b32 v56, v56, v61, vcc"); A("v_cndmask_b32 v57, v57, v60, vcc")
    A("v_cmp_eq_u32 vcc, 2, v59"); A("v_mul_u32_u24 v60, 7680, v58"); A("s_nop 0"); A("s_and_b64 vcc, vcc, s[28:29]")
    A("s_lshr_b32 s28, s2, 3"); A("s_lshl_b32 s28, s28, 2"); A(f"s_add_u32 s28, s28, s{S_W}"); A(f"s_mul_i32 s28, s28, {5*7680}"); A("v_add_u32 v60, s28, v60"); A(f"v_min_u32 v60, {638*7680}, v60")
    A("s_and_b32 s28, s2, 7"); A("s_lshl_b32 s28, s28, 7"); A("s_mov_b32 s6, s64"); A("s_mov_b32 s7, s65")
    A("s_add_u32 s28, s6, s28"); A("s_addc_u32 s29, s7, 0")
    A("v_mov_b32 v61, s28"); A("v_cndmask_b32 v54, v54, v61, vcc"); A("v_mov_b32 v61, s29"); A("v_cndmask_b32 v55, v55, v61, vcc")
    A("v_mov_b32 v61, 1024"); A("v_cndmask_b32 v56, v56, v61, vcc"); A("v_cndmask_b32 v57, v57, v60, vcc")
    A("v_add_co_u32 v54, vcc, v54, v57"); A("s_nop 1"); A("v_addc_co_u32 v55, vcc, 0, v55, vcc")
    for r in range(3): A(f"v_accvgpr_write_b32 a{224+r}, v{54+r}")
    A("WAITVM MC")
    for i in range(5):
        A(f"v_lshlrev_b32 v{40+i}, 16, v{40+i}"); A(f"v_mul_f32 v{70+i}, {fhex(-math.log2(math.e))}, v{40+i}")
    for i in range(5): A(f"v_exp_f32 v{70+i}, v{70+i}")
    for i in range(5): A(f"v_add_f32 v{70+i}, 1.0, v{70+i}")
    for i in range(5): A(f"v_rcp_f32 v{70+i}, v{70+i}")
    for i in range(5): A(f"v_mul_f32 v{70+i}, v{70+i}, v{40+i}")
    for i in range(5): A(f"v_cvt_pk_bf16_f32 v{70+i}, v{70+i}, v{70+i}");
    for i in range(5): A(f"v_lshlrev_b32 v{40+i}, 16, v{70+i}")
    for i in range(5): A(f"v_accvgpr_write_b32 a{A_S+i}, v{40+i}")
    L += mw_loads(A_MW, "MW")
    L += nop_m0(w_issue(1) + c_issue(1))
    L += pst("p3")
    A("WAITVM W0,C0"); A("s_barrier")
    L += pst("p")
    L += rd_c(0) + rd_w(0, 0, 0, "P0") + ["s_waitcnt lgkmcnt(2)"] + rd_w(0, 0, 1, "P1") + ["WAITLG P0"]
    return L

def mw_loads(base, tag):
    o = []
    for i in range(5): o += [f"s_mov_b32 s28, {i*128*7680}", f"buffer_load_dwordx4 a[{base+4*i}:{base+4*i+3}], v28, s[64:67], s28 offen ; tag={tag}"]
    return o
def rsum32(r, t):
    o = []
    for sh in (8, 4, 2, 1): o += [(f"v_add_f32 v{r}, v{r}, v{r} row_ror:{sh}", 2)]
    o += [f"v_mov_b32 v{t}, v{r}", (f"v_permlane16_swap_b32 v{r}, v{t}", 2), f"v_add_f32 v{r}, v{r}, v{t}"]
    return o
def xunpack(j): return [f"v_accvgpr_read_b32 v22, a{A_X+j}", "v_lshlrev_b32 v23, 16, v22", "v_and_b32 v22, 0xffff0000, v22"]
def sig(srd_, soff): return ["v_mov_b32 v13, 1", signal(srd_, soff, val=13)]

def kv_store(i, reg):
    srd_ = SRD_K if i < 16 else SRD_V
    o = ((i & 3)*4 + (i >> 2))*1024 if i < 16 else ((i & 1)*8 + ((i - 16) >> 1))*1024
    return [f"buffer_store_dwordx4 v[{reg}:{reg+3}], v{V_L16}, s[{srd_}:{srd_+3}], s{32 + (o >> 12)} offen offset:{o & 0xfff} ; tag=KVST"]
def kv_cvt(i, dst):
    L = []
    for hfi in range(2):
        a = 2*i + hfi
        if a < 56: r = 32 + 4*a
        else:
            r = 13 + 4*hfi
            L += [f"v_accvgpr_read_b32 v{r+e}, a{4*(a-56)+e}" for e in range(4)]
        L += [f"v_cvt_pk_bf16_f32 v{dst+2*hfi}, v{r}, v{r+1}", f"v_cvt_pk_bf16_f32 v{dst+2*hfi+1}, v{r+2}, v{r+3}"]
    return L
def kv_dst(i): return 32 + 4*i if i < 24 else 32 + 4*(i - 24)

def k1_chunk(c):
    mf = []
    for n in range(16):
        for kv in range(4):
            for k in range(2):
                a, b = (wf(n, k), cf(c, kv, k)) if n < 8 else (cf(c, kv, k), wf(n, k))
                mf.append(mfma16(accr(acc_idx(n, kv)), a, b, "0" if (c == 0 and k == 0) else None))
    P = Packer(mf)
    for n in range(14):
        P.stream(rd_w(c, (n+2) >> 2, n+2, f"R{c}_{n+2}"), start=n*8, limit=n*8+3)
        P.stream([f"WAITLG {'P1' if n == 0 else f'R{c}_{n+1}'}"], start=n*8+7, limit=n*8+7)
    need = f"W{c+1}" + (f",C{c+1}" if c < 7 else ",H0") + {4: ("" if HS_GAP else ",HST")}.get(c, "")
    P.stream([f"WAITVM {need} LG R{c}_15", "s_barrier"], start=112, limit=113)
    nx = rd_w(c+1, 0, 0, "P0") + (rd_c(c+1) + ["WAITLG P0"] if c < 7 else []) + rd_w(c+1, 0, 1, "P1")
    P.stream(nx, start=114, limit=123)
    P.stream([f"WAITLG {'RC%d' % (c+1) if c < 7 else 'P0'}"], start=127, limit=127)
    wi, ci = w_issue(c+2), (c_issue(c+2) if c + 2 < 8 else [])
    def dma(dm, g, end=104):
        nd = sum(1 for x in dm if not isinstance(x, tuple) and x.startswith(('buffer', 'global')))
        return P.stream(dm, start=g+1, limit=111, dstep=min(DST, (end - g) / nd))
    def mod_fma(base):
        m = []
        for i in range(5):
            m += [f"v_accvgpr_read_b32 v28, a{A_S+i}"]
            for d in range(4):
                op = "v_mul_f32" if i == 0 else "v_fmac_f32"
                m += [f"v_accvgpr_read_b32 v22, a{base+4*i+d}", "v_lshlrev_b32 v23, 16, v22", "v_and_b32 v22, 0xffff0000, v22",
                      f"{op} v{MACC+2*d}, v23, v28", f"{op} v{MACC+2*d+1}, v22, v28"]
        for k_, sh in enumerate((2, 4)):
            for e in range(8): m.append((f"v_add_f32 v{MACC+e}, v{MACC+e}, v{MACC+e} row_ror:{sh}", 1 if (k_ == 0 and e == 0) else 0))
        return m
    def mod_fin(scr, snl, vec):
        m = [f"v_add_f32 v{MACC+e}, v{MACC+e}, v{MACC+e} row_ror:8" for e in range(8)]
        m += [f"v_lshrrev_b32 v13, 4, v{V_LANE}", "v_lshlrev_b32 v13, 6, v13", f"v_and_b32 v22, 1, v{V_LANE}", "v_lshl_add_u32 v13, v22, 5, v13", f"v_add_u32 v13, s{S_M0W}, v13",
              f"v_add_u32 v13, {scr}, v13",
              f"ds_write_b128 v13, v[{MACC}:{MACC+3}] ; tag=SW", f"ds_write_b128 v13, v[{MACC+4}:{MACC+7}] offset:16 ; tag=SW",
              f"v_and_b32 v22, 15, v{V_LANE}", f"v_lshrrev_b32 v23, 4, v{V_LANE}", "v_lshlrev_b32 v28, 2, v22", "v_lshl_add_u32 v13, v23, 13, v28", f"v_add_u32 v13, {scr}, v13",
              ("WAITLG SW", 2), "s_barrier"]
        m += [f"ds_read_b32 v{MACC+r}, v13 offset:{r*64} ; tag=SR" for r in range(4)]
        m += [f"v_cmp_gt_u32 s[16:17], s{snl}, v{V_LANE}", f"v_mov_b32 v23, {hex(HUGE)}", ("v_cndmask_b32 v28, v23, v28, s[16:17]", 1),
              ("WAITLG SR", 2), f"v_add_f32 v14, v14, v15", "v_add_f32 v16, v16, v17", "v_add_f32 v14, v14, v16",
              "v_mov_b32 v15, v14", ("v_permlane32_swap_b32 v14, v15", 2), "v_add_f32 v14, v14, v15",
              "v_mov_b32 v15, v14", ("v_permlane16_swap_b32 v14, v15", 2), "v_add_f32 v14, v14, v15",
              "v_cvt_pk_bf16_f32 v14, v14, v14", "v_lshlrev_b32 v14, 16, v14", "v_add_f32 v14, s80, v14",
              "v_cvt_pk_bf16_f32 v14, v14, v14", "v_lshlrev_b32 v14, 16, v14", "v_mul_f32 v15, s81, v14",
              f"buffer_store_dword v15, v28, s[{SRD_WS}:{SRD_WS+3}], s60 offen" + (" sc1 ; tag=MOD2" if vec else " sc1 ; tag=MOD")]
        if vec:
            m += [f"v_cmp_gt_u32 s[16:17], s83, v{V_LANE}", "v_lshrrev_b32 v16, 2, v22", "v_lshlrev_b32 v16, 8, v16", "v_and_b32 v22, 3, v22", "v_lshl_add_u32 v16, v22, 1, v16",
                  "v_cndmask_b32 v16, v23, v16, s[16:17]", "v_and_b32 v22, 1, v22", "v_lshl_or_b32 v16, v22, 28, v16", "v_mov_b32 v17, v14 quad_perm:[1,1,3,3] row_mask:0xf bank_mask:0xf",
                  "v_cvt_pk_bf16_f32 v17, v14, v17", f"buffer_store_dword v17, v16, s[{SRD_WS}:{SRD_WS+3}], s36 offen sc1"]
        return m
    def h_part(js):
        hs = []
        for j in js:
            hs += xunpack(j) + [f"v_fma_f32 v23, v23, v{V_RS}, v{V_MU}", f"v_fma_f32 v22, v22, v{V_RS}, v{V_MU}"]
            for e in range(2):
                hs += [f"v_accvgpr_read_b32 v{14+e}, a{A_CS+20+2*j+e}", f"v_accvgpr_read_b32 v{16+e}, a{A_CS+2*j+e}"]
            hs += ["v_fma_f32 v23, v23, v14, v16", "v_fma_f32 v22, v22, v15, v17", f"v_cvt_pk_bf16_f32 v{18+(j&3)}, v23, v22"]
            if j == 7: hs += ["s_movk_i32 s29, 8192"]
            if j in (3, 7): hs += [f"buffer_store_dwordx4 v[18:21], v{V_HST}, s[{SRD_WS}:{SRD_WS+3}], {'0' if j == 3 else 's29'} offen sc1 ; tag=HST"]
            if j == 9: hs += [f"v_accvgpr_read_b32 v28, a{A_PF+3}", f"buffer_store_dwordx2 v[18:19], v28, s[{SRD_WS}:{SRD_WS+3}], 0 offen sc1 ; tag=HST"]
        return hs
    if c == 0:
        zi = ["WAITVM ZI"] + sig(SRD_DBG, "s31")
        xl = [f"buffer_load_dwordx4 a[{A_X+4*n}:{A_X+4*n+3}], v31, s[{SRD_V}:{SRD_V+3}], 0 offen offset:{n*512} ; tag=X" for n in range(2)]
        xl += [f"buffer_load_dwordx2 a[{A_X+8}:{A_X+9}], v30, s[{SRD_V}:{SRD_V+3}], 0 offen offset:1024 ; tag=X"]
        dma(zi + pf(2, 13) + wi + ci + xl + poll_issue(SRD_DBG, "0", "X"), 1)
        P.stream(["WAITVM MW"] + mod_fma(A_MW)[:-8], start=MW_GAP)
    if c == 1:
        if EVEN: dma(wi[:-2] + ci, 1)
        g = P.stream(mod_fma(A_MW)[-8:] + mod_fin(7168, 82, False), start=0)
        P.stream(["WAITVM MOD"] + poll_check("ini", SRD_DBG, "0", 1, bar=False) + sig(SRD_WS, "s61"), start=min(g + 48, 98))
        if not EVEN: dma(wi[:-2] + ci, g)
    if c == 2:
        late = [f"s_add_u32 m0, s{S_M0W}, 4096"] + w_issue(3)[-2:]
        g = dma(late + pf(3, 14) + wi + ci, 1, end=92)
        P.stream([f"s_movk_i32 s41, {WS_CNT}"] + poll_issue(SRD_WS, "s41", "PM", True), start=g + 1)
        ln = []
        for j in range(10): ln += xunpack(j) + ([f"v_add_f32 v{V_MU}, v23, v22"] if j == 0 else [f"v_add_f32 v{V_MU}, v{V_MU}, v23", f"v_add_f32 v{V_MU}, v{V_MU}, v22"])
        ln += rsum32(V_MU, 13) + [f"v_mul_f32 v{V_MU}, {fhex(-1/640)}, v{V_MU}"]
        for j in range(LN2):
            ln += xunpack(j) + [f"v_add_f32 v23, v23, v{V_MU}", f"v_add_f32 v22, v22, v{V_MU}",
                                f"{'v_mul_f32' if j == 0 else 'v_fmac_f32'} v{V_RS}, v23, v23", f"v_fmac_f32 v{V_RS}, v22, v22"]
        P.stream(ln, start=0)
    if c == 3:
        ck = ["WAITVM PM"] + poll_check("mod", SRD_WS, "s41", 10, True) + [f"v_and_b32 v28, 31, v{V_LANE}", "v_lshlrev_b32 v28, 4, v28", "s_movk_i32 s29, 2560"]
        g = P.stream(ck, start=PM_GAP)
        ld_ = []
        for arr, so in ((0, "0"), (20, "s29")):
            ld_ += [f"buffer_load_dwordx4 a[{A_CS+arr+16}:{A_CS+arr+19}], v28, s[{SRD_WS}:{SRD_WS+3}], {so} offen offset:2048 sc1 ; tag=CS"]
        ld_ += ["v_lshlrev_b32 v28, 1, v28"]
        for arr, so in ((0, "0"), (20, "s29")):
            for n in range(4):
                ld_ += [f"buffer_load_dwordx4 a[{A_CS+arr+4*n}:{A_CS+arr+4*n+3}], v28, s[{SRD_WS}:{SRD_WS+3}], {so} offen offset:{(n>>1)*1024 + (n&1)*16} sc1 ; tag=CS"]
        g = P.stream(ld_, start=g+1, dstep=2)
        dma(wi + ci, g, end=106)
        ln = []
        for j in range(LN2, 10):
            ln += xunpack(j) + [f"v_add_f32 v23, v23, v{V_MU}", f"v_add_f32 v22, v22, v{V_MU}", f"v_fmac_f32 v{V_RS}, v23, v23", f"v_fmac_f32 v{V_RS}, v22, v22"]
        ln += rsum32(V_RS, 13) + [f"v_mov_b32 v13, {fhex(1e-5)}", f"v_fmac_f32 v13, {fhex(1/640)}, v{V_RS}", f"v_rsq_f32 v{V_RS}, v13", (f"v_mul_f32 v{V_RS}, {fhex(QSCALE)}, v{V_RS}", 1),
                                  f"v_mul_f32 v{V_MU}, v{V_MU}, v{V_RS}"]
        g2 = P.stream(ln, start=0)
        P.stream(["WAITVM CS"] + h_part(range(3)), start=max(g + 36, g2 + 1))
    if c == 4:
        if EVEN: dma(wi + ci + pf(4, 13), 1)
        g = P.stream(h_part(range(3, 10)), start=0)
        if not EVEN: dma(pf(4, 13) + wi + ci, g, end=108)
    if c == 5:
        g = P.stream((["WAITVM HST", "s_barrier"] if HS_GAP else []) + sig(SRD_WS, "s24") + [f"s_lshl_b32 s28, 1, s{S_XF}", "v_mov_b32 v4, s28", signal(SRD_WS, "s62", val=4) + " offset:4"], start=HS_GAP)
        g = dma(wi + ci, 1 if HS_GAP else g, end=96)
        if HS_GAP <= 48: P.stream(poll_issue(SRD_WS, "s25", "PH", True) + pf(5, 30), start=g + 1)
    if c == 6:
        st = [f"s_lshl_b32 s28, s{S_I}, 3", f"s_lshl_b32 s29, s{S_W}, 1", "s_add_u32 s56, s28, s29", "s_add_u32 s57, s56, 1",
              "s_sub_u32 s58, 120, s28", "s_add_u32 s58, s58, s29", "s_add_u32 s59, s58, 1"]
        for q in range(4): st += [f"s_mul_i32 s{52+q}, s{56+q}, 20480", f"s_add_u32 s{52+q}, s{52+q}, {WS_H}"]
        g = P.stream(st, start=0)
        if HS_GAP <= 48:
            g = dma(wi[:5], g, end=g+16)
            g = P.stream(["WAITVM PH"] + poll_check("h", SRD_WS, "s25", 4, True), start=g+1)
            g = dma(h_issue(0) + wi[5:] + h_issue(1), g)
        else:
            g = P.stream(poll_issue(SRD_WS, "s25", "PH", True) + pf(5, 30), start=max(g, HS_GAP - 70))
            g = dma(wi, g, end=g+36)
            g = P.stream(["WAITVM PH"] + poll_check("h", SRD_WS, "s25", 4, True), start=g+1)
            g = dma(h_issue(0), g)
        ds = [f"s_lshl_b32 s31, s{S_HEAD}, 19", f"s_add_u32 s41, s31, {hex(WS_K)}", f"s_add_u32 s{SRD_K}, s4, s41\ns_addc_u32 s{SRD_K+1}, s5, 0",
              f"s_add_u32 s41, s31, {hex(WS_V)}", f"s_add_u32 s{SRD_V}, s4, s41\ns_addc_u32 s{SRD_V+1}, s5, 0",
              f"s_mov_b32 s{SRD_K+2}, {32*16384}", f"s_mov_b32 s{SRD_V+2}, {32*16384}", f"s_mov_b32 s{SRD_K+3}, 0x20000", f"s_mov_b32 s{SRD_V+3}, 0x20000",
              f"s_lshl_b32 s31, s{S_HEAD}, 12", f"s_add_u32 s31, s31, {hex(WS_CTX)}",
              f"s_add_u32 s{SRD_O}, s4, s31\ns_addc_u32 s{SRD_O+1}, s5, 0", f"s_mov_b32 s{SRD_O+2}, {1<<24}", f"s_mov_b32 s{SRD_O+3}, 0x20000"]
        P.stream([x.replace('s41', 's80') for x in ds], start=30, step=1)
    if c == 7:
        if HS_GAP <= 48: dma(pf(6, 30) + wi + h_issue(2), 1, end=70)
        else: dma(h_issue(1) + pf(6, 30) + wi + h_issue(2), 1, end=100)

        g = 0
        for i in range(16):
            cv = kv_cvt(i, kv_dst(i)) + (kv_store(i, kv_dst(i)) if i < 8 else [])
            g = P.stream(cv, start=max(g + 1, (i >> 2)*16 + 16 + 4, 20 + 9*i if i < 8 else 0))
    return P.emit()

def q_chunk(c):
    sc = 8 + (c >> 1)
    mf = [mfma16(qacc(d, q), wf(d, k), hf(c, q, k), "0" if (c == 0 and k == 0) else None) for d in range(8) for q in range(4) for k in range(2)]
    P = Packer(mf)
    for d in range(6):
        P.stream(rd_w(sc, (c & 1)*2 + ((d+2) >> 2), d+2, f"Q{c}_{d+2}"), start=d*8, limit=d*8+3)
        P.stream([f"WAITLG {'P1' if d == 0 else f'Q{c}_{d+1}'}"], start=d*8+7, limit=d*8+7)
    if c < 9:
        nsc = 8 + ((c+1) >> 1)
        if c & 1:
            need = f"W{nsc},H{c+1}" + (",KVST,PX" if c == 5 else "") + (",PK" if c == 7 else "")
            P.stream([f"WAITVM {need} LG Q{c}_7", "s_barrier"], start=48, limit=49); s0 = 50
        else:
            P.stream([f"WAITVM H{c+1} LG Q{c}_7"], start=55, limit=55); s0 = 48
        P.stream(rd_w(nsc, ((c+1) & 1)*2, 0, "P0"), start=s0, limit=55)
        P.stream(rd_w(nsc, ((c+1) & 1)*2, 1, "P1"), start=56, limit=59)
        P.stream(["WAITLG P0"], start=63, limit=63)
    else:
        P.stream(["WAITVM K0 LG Q9_7", "s_barrier"], start=54, limit=55)
    g = 1
    dm = []
    if c == 6:
        xf = [f"v_readfirstlane_b32 s28, v{V_POLL}", (f"s_lshr_b32 s28, s28, s{S_XF}", 1), "s_and_b32 s28, s28, 15", "s_cmp_lg_u32 s28, 8\ns_cbranch_scc1 KA_wb", "KA_wbr:"] + sig(SRD_WS, "s62")
        spins.append(["KA_wb:", f"s_cmp_lg_u32 s{S_W}, 0", "s_cbranch_scc1 KA_wbr", "buffer_wbl2 sc1", "s_waitcnt vmcnt(0)", "s_branch KA_wbr"])
        g = P.stream(xf, start=0)
    if c == 7: dm += poll_issue(SRD_WS, "s62", "PK")
    if c == 6 and 'j' in PFS:
        dm += ["s_getpc_b64 s[12:13]\nKA_pcq:\ns_add_u32 s12, s12, K2_PVd1-KA_pcq\ns_addc_u32 s13, s13, 0", "s_mov_b32 s14, K2_slow-K2_PVd1", "s_mov_b32 s15, 0x20000",
               "s_lshr_b32 s29, s2, 3", "s_lshl_b32 s29, s29, 2", f"s_add_u32 s29, s29, s{S_W}", "s_lshl_b32 s29, s29, 7", f"v_lshlrev_b32 v14, 14, v{V_LANE}",
               f"buffer_load_dword {dum()}, v14, s[12:15], s29 offen"]
    if c == 3: dm += ["s_add_u32 s29, s62, 4"] + poll_issue(SRD_WS, "s29", "PX")
    if c == 8:
        g = P.stream(poll_check("kv", SRD_WS, "s62", 8), start=0)
        dm += [f"s_lshl_b32 s28, s{S_I}, 15", f"s_sub_u32 s{SRD_K+2}, {32*16384}, s28", f"s_mov_b32 s{SRD_V+2}, s{SRD_K+2}"] + kv_init_state()
        for wch, idx in (('K', 0), ('K', 1), ('V', 0)):
            x = sum(kv_simple(wch, idx), [])
            if (wch, idx) == ('K', 0): x = [y.replace("tag=K", "tag=K0") for y in x]
            dm += x
    if c == 9:
        for wch, idx in (('K', 2), ('V', 1)): dm += sum(kv_simple(wch, idx), [])
    if 1 <= c <= 7: dm += h_issue(c+2)
    if c in (1, 3, 5): dm += w_issue(sc+2)
    sts = {0: list(range(8, 18)), 2: list(range(18, 25)), 4: list(range(25, 32))}.get(c, [])
    for i in sts: dm += kv_store(i, kv_dst(i))
    if c == 1: dm = dm[12:] + dm[:12]; g = 1
    nd = sum(1 for x in dm if x.startswith('buffer'))
    if dm: P.stream(dm, start=g+1, limit=63, dstep=min(DST, (58 - g) / nd))
    if c == 0:
        gg = 0
        for i in range(16, 28): gg = P.stream(kv_cvt(i, kv_dst(i)), start=gg, limit=8*((i-12)//2) - 1)
        P.stream(sum([kv_cvt(i, kv_dst(i)) for i in range(28, 29)], []), start=gg)
    if c == 1:
        lim = min(k for k, gp in enumerate(P.g) if any("tag=H3" in x[2] for x in gp))
        P.stream(sum([kv_cvt(i, kv_dst(i)) for i in range(29, 32)], []), start=0, limit=lim + 12)
        pos = {}
        for k, gp in enumerate(P.g):
            for x in gp:
                if x[2].startswith("v_accvgpr_read"): pos[int(x[2].split(", a")[1])] = k
                if "tag=H3" in x[2]:
                    lo = int(x[2].split("a[")[1].split(":")[0])
                    for r in range(lo, lo+4): assert r < 8 or (r in pos and pos[r] < k), (r, k)
    if c >= 7:
        fr = {7: [], 8: [0], 9: [1]}[c]
        if c == 7: fr = [3]
        z = [f"v_accvgpr_write_b32 a{sl*32+r}, 0" for sl in fr for r in range(32)]
        P.stream(z, start=1)
    if c == 9:
        ini = [f"v_mov_b32 v{CI+r}, 0" for r in range(16)] + [f"v_mov_b32 v{LS+r}, 0" for r in range(16)]
        P.stream(ini, start=1)
    if c == 7:
        P.stream(["s_movk_i32 s41, 1280"] + wdma_voff(V_WV, V_LANE, 15, 16, "s41", nat=False), start=1)
    if c == 5:
        ini = [f"v_and_b32 v{V_T}, 15, v{V_LANE}", f"v_lshrrev_b32 v{V_T+1}, 4, v{V_LANE}", f"v_lshlrev_b32 v{V_T+1}, 2, v{V_T+1}", f"v_sub_u32 v{V_Y}, v{V_T}, v{V_T+1}",
               f"v_mov_b32 v{V_NEG}, 0xff800000", f"v_add_u32 v{V_KVD}, s{S_W2K}, v{V_L16}", f"v_add_u32 v{V_KVD2}, 0x2000, v{V_KVD}",
               f"s_mov_b32 s{S_NE}, {EV0}", f"s_mov_b32 s{S_EV}, 0",
               f"s_lshl_b32 s{S_YA}, s56, 4", f"s_lshl_b32 s{S_YB}, s58, 4", f"s_lshl_b32 s29, s{S_2D}, 5", f"s_add_u32 s{S_YB}, s{S_YB}, s29"]
        P.stream(ini, start=1)
    return P.emit()

def ka():
    del spins[:]
    L = prologue(); A = L.append
    for c in range(8): L += k1_chunk(c) + pst(f"c{c}")
    for c in range(10): L += q_chunk(c) + pst(f"q{c}")
    for r in range(32): A(f"v_accvgpr_write_b32 a{64+r}, 0")
    for j in range(8): A(rdK(0, j))
    for r in range(4): A(f"v_mov_b32 v{ONES+r}, 0x3f803f80")
    for b in range(4): A(f"v_add_u32 v{V_TR+b}, s{S_M0W}, v{V_TR+b}")
    for q in range(4):
        for ds in range(4):
            r0 = QACC + ((2*ds)*4+q)*4; r1 = QACC + ((2*ds+1)*4+q)*4; t = V_T + 4*(ds & 1)
            A(f"v_cvt_pk_bf16_f32 v{t}, v{r0}, v{r0+1}"); A(f"v_cvt_pk_bf16_f32 v{t+1}, v{r0+2}, v{r0+3}")
            A(f"v_cvt_pk_bf16_f32 v{t+2}, v{r1}, v{r1+1}"); A(f"v_cvt_pk_bf16_f32 v{t+3}, v{r1+2}, v{r1+3}")
            for r in range(4): A(f"v_accvgpr_write_b32 a{A_Q+(q*4+ds)*4+r}, v{t+r}")
    for i in range(5): A(f"v_accvgpr_read_b32 v{250+i}, a{A_S+i}")
    for r in range(3): A(f"v_accvgpr_read_b32 v{V_PFL+r}, a{224+r}")
    A(f"v_mov_b32 v{V_PFL+3}, 0")
    L += pst("q")
    A("s_waitcnt lgkmcnt(0)")
    A("s_branch K2_QKd0")
    ex = os.environ.get("EXP", "")
    if 's' in ex: L = [("s_nop 0" if ("tag=KVST" in x and "s35 offen offset:3072" not in x) else x) for x in L]
    if 'n' in ex: L = [(x.replace(" ; tag=KVST", " nt ; tag=KVST")) for x in L]
    if 'h' in ex: L = [(x.replace(" sc1 ; tag=H", " ; tag=H") if "tag=HST" not in x else x) for x in L]
    L = resolve_waits(L)
    pre = list(L)
    for sp in spins: L += sp
    import kb
    job = [f"s_lshl_b32 s80, s{S_I}, 5", f"s_add_u32 s80, s80, s{S_HEAD}", "s_sub_u32 s81, s80, 80", "s_cmp_ge_u32 s81, 160"]
    m2l = job + ["s_cbranch_scc1 KA_nm2l", f"s_lshl_b32 s28, s{S_W}, 5", f"v_lshrrev_b32 v13, 1, v{V_LANE}", "v_add_u32 v13, s28, v13", "v_mul_u32_u24 v13, 7680, v13",
                 f"v_and_b32 v14, 1, v{V_LANE}", "v_lshl_add_u32 v13, v14, 4, v13", "s_lshl_b32 s80, s80, 5"]
    for i in range(5): m2l += [f"buffer_load_dwordx4 v[{228+4*i}:{231+4*i}], v13, s[76:79], s80 offen", f"s_add_u32 s80, s80, {128*7680}"]
    m2l += ["KA_nm2l:"]
    M2 = 192
    m2c = job + ["s_cbranch_scc1 KA_nm2c"]
    for i in range(5):
        for d in range(4):
            m2c += [f"v_lshlrev_b32 v{200+2*d}, 16, v{228+4*i+d}", f"v_and_b32 v{201+2*d}, 0xffff0000, v{228+4*i+d}"]
        for d in range(4):
            p2 = lambda x: f"v[{x}:{x+1}]"
            sv = 250 + (i & ~1)
            sel = f"op_sel:[0,{i&1}" ; selh = f"op_sel_hi:[1,{i&1}"
            if i == 0: m2c += [f"v_pk_mul_f32 {p2(M2+2*d)}, {p2(200+2*d)}, {p2(sv)} {sel}] {selh}]"]
            else: m2c += [f"v_pk_fma_f32 {p2(M2+2*d)}, {p2(200+2*d)}, {p2(sv)}, {p2(M2+2*d)} {sel},0] {selh},1]"]
    m2c += ["s_nop 0"]
    for sh in (2, 4, 8):
        for e in range(8): m2c.append(f"v_add_f32 v{M2+e}, v{M2+e}, v{M2+e} row_ror:{sh}")
    m2c += [f"v_lshrrev_b32 v15, 4, v{V_LANE}", "v_lshlrev_b32 v13, 6, v15", f"v_and_b32 v14, 1, v{V_LANE}", "v_lshl_add_u32 v13, v14, 5, v13", f"v_add_u32 v13, s{S_M0W}, v13",
            f"ds_write_b128 v13, v[{M2}:{M2+3}]", f"ds_write_b128 v13, v[{M2+4}:{M2+7}] offset:16",
            f"v_and_b32 v14, 15, v{V_LANE}", "v_lshlrev_b32 v16, 2, v14", "v_lshl_add_u32 v13, v15, 13, v16",
            "s_mul_i32 s81, s80, 1639", "s_lshr_b32 s81, s81, 16", "s_cmp_eq_u32 s81, 4", "s_cselect_b32 s82, 1.0, 0",
            "s_waitcnt lgkmcnt(0)", "s_barrier"]
    m2c += [f"ds_read_b32 v{M2+r}, v13 offset:{r*64}" for r in range(4)]
    m2c += [f"v_add_u32 v15, s{S_W}, v15", "v_lshl_or_b32 v16, v15, 26, v16",
            "v_lshrrev_b32 v17, 2, v14", "v_lshlrev_b32 v17, 8, v17", "v_and_b32 v18, 3, v14", "v_lshl_add_u32 v17, v18, 1, v17", "v_and_b32 v18, 1, v14", "v_add_u32 v15, v15, v18", "v_lshl_or_b32 v17, v15, 26, v17",
            "s_mul_i32 s83, s81, 40", "s_sub_u32 s83, s80, s83", "s_lshr_b32 s28, s83, 1", "s_lshl_b32 s28, s28, 10", "s_and_b32 s83, s83, 1", "s_lshl_b32 s83, s83, 3", "s_add_u32 s28, s28, s83",
            "s_cmp_eq_u32 s81, 3", f"s_cselect_b32 s83, 16, 0", "s_add_u32 s28, s28, s83", f"s_add_u32 s28, s28, {WS_VEC}",
            "s_sub_u32 s81, s81, 3", "s_cmp_lt_u32 s81, 2", "s_cselect_b32 s28, s28, 0x2000000", "s_lshl_b32 s80, s80, 6",
            "s_waitcnt lgkmcnt(0)", f"v_add_f32 v{M2}, v{M2}, v{M2+1}", f"v_add_f32 v{M2+2}, v{M2+2}, v{M2+3}", f"v_add_f32 v{M2}, v{M2}, v{M2+2}"] + kb.xsum(M2, 13)
    m2c += [f"v_cvt_pk_bf16_f32 v{M2}, v{M2}, v{M2}", f"v_lshlrev_b32 v{M2}, 16, v{M2}", f"v_add_f32 v{M2}, s82, v{M2}",
            f"v_cvt_pk_bf16_f32 v{M2}, v{M2}, v{M2}", f"v_lshlrev_b32 v{M2}, 16, v{M2}",
            f"buffer_store_dword v{M2}, v16, s[{SRD_WS}:{SRD_WS+3}], s80 offen sc1", "s_nop 0",
            f"v_mov_b32 v13, v{M2} quad_perm:[1,1,3,3] row_mask:0xf bank_mask:0xf", f"v_cvt_pk_bf16_f32 v13, v{M2}, v13",
            f"buffer_store_dword v13, v17, s[{SRD_WS}:{SRD_WS+3}], s28 offen sc1", "KA_nm2c:"]
    e1 = [f"v_mov_b32 v{V_PFL}, s4", f"v_mov_b32 v{V_PFL+1}, s5", f"v_mov_b32 v{V_PFL+2}, 0"]
    for u in range(2):
        e1 += [f"s_add_u32 m0, s{S_M0W}, {u*4096}"]
        for j in range(4): e1 += [f"s_add_u32 s80, s36, {u*128 + j*(8*1280-1024)}", f"buffer_load_dwordx4 v{V_WV}, s[96:99], s80 offen offset:{j*1024} lds"]
    e1 += srd(76, 6, 640*7680)
    RD = [192, 196, 200, 204, 208, 212, 216, 16]
    e2 = ["s_waitcnt lgkmcnt(0)"]
    for u in range(2):
        for b in range(4):
            r = RD[4*u+b]
            e2 += [f"ds_read_b64_tr_b16 v[{r+2*t}:{r+2*t+1}], v{V_TR+b} offset:{u*4096+t*2048}" for t in range(2)]
        if u == 0: e2 += srd(8, 4, WS_K - WS_WO, off_s=hex(WS_WO)) + ["s_waitcnt lgkmcnt(4)"]
    for k in range(8):
        e2 += [f"s_waitcnt lgkmcnt({min(12, 14-2*k)})", f"buffer_store_dwordx4 v[{RD[k]}:{RD[k]+3}], v{V_L16}, s[8:11], s83 offen sc1", "s_add_u32 s83, s83, s84"]
    e2 += ["s_nop 0"]
    e3 = ["s_and_b32 s28, s2, 7", "s_lshl_b32 s28, s28, 7", f"s_add_u32 s28, s28, {WS_CNT}", "v_mov_b32 v13, 1", signal(SRD_WS, "s28", val=13) + " offset:4"]
    after = kb.back(pst) + ["s_waitcnt vmcnt(0)"] + stamp_out(0, len(STPOS) + 2)
    def codepf(lab0, lab1, dst, t):
        return [f"s_getpc_b64 s[{t}:{t+1}]", f"KA_pc{lab0}:", f"s_add_u32 s{t}, s{t}, {lab0}-KA_pc{lab0}", f"s_addc_u32 s{t+1}, s{t+1}, 0", f"s_mov_b32 s{t+2}, {lab1}-{lab0}", f"s_mov_b32 s{t+3}, 0x20000",
                "s_lshr_b32 s28, s2, 3", "s_lshl_b32 s28, s28, 2", f"s_add_u32 s28, s28, s{S_W}", "s_lshl_b32 s28, s28, 7", f"v_lshlrev_b32 v13, 14, v{V_LANE}",
                f"buffer_load_dword {dst}, v13, s[{t}:{t+3}], s28 offen"]
    evs = [e1 + m2l, e2 + m2c, e3 + (codepf("K2_done", "KA_end", "v227", 8) if 'j' in PFS else [])]
    if 'e' in ex: evs = [e1[:3] + e3]
    L += resolve_waits(attn_part(pre, evs, [], after, pst("a")))
    L += ["KA_end:", "s_endpgm"]
    return L
```

```python
from asmlib import *
import math

NAME = "adaLN_cond__compressed_kv_cla__glu_gated_geglu__prompt"
KA = dict(x=0, ckv=8, wq=16, wuk=24, wuv=32, wo=40, bx=48, wg=56, wu=64, wd=72, c=80, wmod=88, out=96, dbg=104, ws=112)
WS_MOD  = 0x0
WS_VEC  = 0x8000
WS_CNT  = 0x4000
WS_STAT = 0x10000
WS_H    = 0x100000
WS_X1P  = 0x400000
WS_X1   = 0x700000
WS_HH   = 0xA00000
WS_WO   = 0x1200000
WS_WD   = 0x1800000
WS_K    = 0x2000000
WS_V    = 0x3000000
WS_CTX  = 0x4000000
WS_SIZE = 0x10000000
QSCALE = math.log2(math.e) / math.sqrt(128.0)

import struct
def f2u(x): return struct.unpack('<I', struct.pack('<f', x))[0]
def fhex(x): return f"0x{f2u(x):08x}"

def ldptr(dst, name): return f"s_load_dwordx2 s[{dst}:{dst+1}], s[0:1], {KA[name]}"

def wave_id(sdst, vtmp):
    return [f"v_lshrrev_b32 v{vtmp}, 6, v0", "s_nop 0", f"v_readfirstlane_b32 s{sdst}, v{vtmp}"]

def tr_addr(vbase, vlane, t0, t1, base_expr_s=None):
    L = []
    L += [f"v_lshrrev_b32 v{t0}, 2, v{vlane}",
          f"v_lshrrev_b32 v{t1}, 3, v{vlane}",
          f"v_and_b32 v{t1}, 3, v{t1}",
          f"v_lshlrev_b32 v{t1}, 5, v{t1}",
          f"v_lshlrev_b32 v{t0}, 7, v{t0}",
          f"v_add_u32 v{t0}, v{t0}, v{t1}",
          f"v_and_b32 v{t1}, 3, v{vlane}",
          f"v_lshlrev_b32 v{t1}, 3, v{t1}",
          f"v_add_u32 v{t0}, v{t0}, v{t1}"]
    if base_expr_s is not None:
        L += [f"v_add_u32 v{t0}, {base_expr_s}, v{t0}"]
    for b in range(4):
        L += [f"v_xor_b32 v{vbase+b}, {b*32}, v{t0}"]
    return L

def wdma_voff(vdst, vlane, t0, t1, rowstride_s, nat):
    L = [f"v_lshrrev_b32 v{t0}, 3, v{vlane}"]
    if nat:
        L += [f"v_and_b32 v{t1}, 4, v{t0}", f"v_add_u32 v{t0}, v{t0}, v{t1}"]
    L += [f"v_mul_lo_u32 v{vdst}, v{t0}, {rowstride_s}",
          f"v_lshrrev_b32 v{t0}, 3, v{vlane}",
          f"v_and_b32 v{t0}, 6, v{t0}",
          f"v_and_b32 v{t1}, 7, v{vlane}",
          f"v_xor_b32 v{t0}, v{t0}, v{t1}",
          f"v_lshlrev_b32 v{t0}, 4, v{t0}",
          f"v_add_u32 v{vdst}, v{vdst}, v{t0}"]
    return L
NATROW = [0, 16, 4, 20]

WS_STAMP = 0x8000000
import os
STAMPS = int(os.environ.get("STAMPS", "0"))
def stamp(idx):
    if not STAMPS: return []
    return [f"{'s_memrealtime' if STAMPS == 1 else 's_memtime'} s[100:101]", "s_waitcnt lgkmcnt(0)", f"s_mov_b32 s{88+idx}, s100"]
def stamp_out(kidx, n):
    if not STAMPS: return []
    L = stamp(n-1) + ["s_load_dwordx2 s[72:73], s[0:1], 112", "s_waitcnt lgkmcnt(0)"]
    L += srd(76, 72, 0x100000, hex(WS_STAMP + kidx*0x10000))
    L += ["s_mov_b64 exec, -1", "v_mbcnt_lo_u32_b32 v0, -1, 0", "v_mbcnt_hi_u32_b32 v0, -1, v0", "v_cmp_eq_u32 vcc, 0, v0", "s_and_b64 exec, exec, vcc",
          "s_lshl_b32 s74, s2, 8", "s_lshl_b32 s75, s3, 6", "s_add_u32 s74, s74, s75", "v_mov_b32 v1, s74"]
    for i in range(n):
        L += [f"v_mov_b32 v2, s{88+i}", f"buffer_store_dword v2, v1, s[76:79], 0 offen offset:{4*i}"]
    if os.environ.get("DBGST"):
        L += ["s_load_dwordx2 s[72:73], s[0:1], 104", "s_waitcnt lgkmcnt(0)"] + srd(76, 72, 256)
        L += [f"s_sub_u32 s74, s2, {os.environ['DBGST']}", "s_or_b32 s74, s74, s3", "s_lshl_b32 s74, s74, 8", "v_mov_b32 v1, s74"]
        for i in range(1, n):
            L += [f"s_sub_u32 s75, s{88+i}, s88", "v_mov_b32 v2, s75", f"buffer_store_dword v2, v1, s[76:79], 0 offen offset:{4*i+4}"]
    L += ["s_waitcnt vmcnt(0)"]
    return L
def stamp_init():
    if not STAMPS: return []
    return stamp(0)
```

```python
import re

def vr(n, c=1): return f"v{n}" if c == 1 else f"v[{n}:{n+c-1}]"
def ar(n, c=1): return f"a{n}" if c == 1 else f"a[{n}:{n+c-1}]"
def sr(n, c=1): return f"s{n}" if c == 1 else f"s[{n}:{n+c-1}]"
def R(spec, off=0, c=1):
    f, b = spec
    return (vr if f == 'v' else ar)(b + off, c)

def mfma16(d, a, b, c=None):
    return f"v_mfma_f32_16x16x32_bf16 {d}, {a}, {b}, {c if c is not None else d}"

def interleave(mf, fill, tail=None):
    out = []
    out += fill.get(-1, [])
    for i, m in enumerate(mf):
        out.append(m)
        out += fill.get(i, [])
    for k in fill:
        assert -1 <= k < len(mf), f"filler gap {k} out of range {len(mf)}"
    return out

class Fill(dict):
    def add(self, gap, *ins, front=False):
        l = self.setdefault(gap, [])
        if front: l[0:0] = list(ins)
        else: l.extend(ins)

_reg = re.compile(r'^(-?\|?)(?:abs\()?([vas])(?:(\d+)|\[(\d+):(\d+)\])\)?\|?$')
def regs_of(op):
    op = op.strip()
    if op in ('vcc',): return [('s', 106), ('s', 107)]
    if op == 'vcc_lo': return [('s', 106)]
    if op == 'vcc_hi': return [('s', 107)]
    if op == 'm0': return [('s', 124)]
    if op == 'exec': return [('s', 126), ('s', 127)]
    m = _reg.match(op)
    if not m: return []
    f = m.group(2)
    if m.group(3) is not None: return [(f, int(m.group(3)))]
    return [(f, i) for i in range(int(m.group(4)), int(m.group(5)) + 1)]

TRANS = ('v_exp_f32', 'v_log_f32', 'v_rcp_f32', 'v_rsq_f32', 'v_sqrt_f32')

class Ins:
    def __init__(self, text):
        self.text = text
        t = text.split(';')[0].strip()
        self.label = t.endswith(':') or t.startswith('.') or t == ''
        if self.label:
            self.op = None; return
        parts = t.split(None, 1)
        self.op = parts[0]
        rest = parts[1] if len(parts) > 1 else ''
        ops = [o.strip() for o in re.split(r',(?![^\[]*\])', rest)] if rest else []
        self.mods = ''
        if ops:
            sp = ops[-1].split(None, 1)
            if len(sp) > 1 and not self.op.startswith('s_waitcnt'):
                ops[-1] = sp[0]; self.mods = sp[1]
        self.ops = ops
        op = self.op
        self.kind = 'salu'
        D, U = [], []
        allr = [regs_of(o) for o in ops]
        if op.startswith('v_mfma'):
            self.kind = 'mfma'; D = allr[0]; self.A, self.B, self.C = allr[1], allr[2], allr[3]; U = self.A + self.B + self.C
            self.passes = 4 if '16x16x32' in op else 8
        elif op.startswith('ds_read') or op.startswith('ds_bpermute') or op.startswith('ds_swizzle'):
            self.kind = 'dsr'; D = allr[0]; U = sum(allr[1:], [])
        elif op.startswith('ds_'):
            self.kind = 'dsw'; U = sum(allr, [])
        elif op.startswith('buffer_load') or op.startswith('global_load'):
            if 'lds' in self.mods.split() or '_lds_' in op:
                self.kind = 'dma'; U = sum(allr, []) + [('s', 124)]
            else:
                self.kind = 'vld'; D = allr[0]; U = sum(allr[1:], [])
        elif op.startswith('buffer_store') or op.startswith('global_store'):
            self.kind = 'vst'; U = sum(allr, [])
            self.data = allr[0] if op.startswith('buffer') else allr[1]
        elif op.startswith('buffer_atomic') or op.startswith('global_atomic'):
            self.kind = 'vst'; U = sum(allr, []); self.data = []
            if 'sc0' in self.mods.split(): D = allr[0]; self.kind = 'vld'
        elif op.startswith('buffer_inv') or op.startswith('buffer_wbl2'):
            self.kind = 'vst'; self.data = []
        elif op.startswith('s_load') or op.startswith('s_memtime') or op.startswith('s_memrealtime'):
            self.kind = 'smem'; D = allr[0]; U = sum(allr[1:], [])
        elif op.startswith('v_'):
            self.kind = 'valu'
            if op.startswith('v_cmp'):
                D = allr[0]; U = sum(allr[1:], [])
            elif op.startswith('v_permlane') and 'swap' in op:
                D = allr[0] + allr[1]; U = allr[0] + allr[1]
            elif op.startswith('v_readfirstlane') or op.startswith('v_readlane'):
                D = allr[0]; U = sum(allr[1:], [])
            elif op.startswith('v_add_co') or op.startswith('v_addc_co'):
                D = allr[0] + allr[1]; U = sum(allr[2:], [])
            elif op == 'v_nop':
                pass
            else:
                D = allr[0]; U = sum(allr[1:], [])
                if op.startswith('v_fmac') or op.startswith('v_dot2c') or 'dpp' in op or 'row_' in self.mods:
                    U = U + allr[0]
            self.dpp = ('row_' in self.mods or 'quad_perm' in self.mods or 'dpp' in op)
        elif op in ('s_waitcnt', 's_barrier', 's_nop', 's_endpgm', 's_setprio', 's_sleep') or op.startswith('s_cbranch') or op == 's_branch':
            self.kind = 'ctl'
        elif op.startswith('s_cmp') or op.startswith('s_bitcmp'):
            U = sum(allr, [])
        else:
            D = allr[0]; U = sum(allr[1:], [])
            if 'saveexec' in op: D = D + [('s',126),('s',127)]
            if op.startswith('s_addk') or op.startswith('s_mulk'): U = U + allr[0]
        self.D, self.U = D, U

def check_trace(lines, name="", verbose=True):
    probs = []
    pos = 0
    lastw = {}
    mfma_c_read = {}
    st_data = {}
    scc = [None]
    sp = []
    vm = []
    lg = []
    def pend(r):
        for q in (vm, lg, sp):
            for e in q:
                if r in e[0]: return e[1]
        return None
    for ln in lines:
        for sub in ln.split('\n'):
            I = Ins(sub)
            if I.op is None: continue
            def P(msg): probs.append(f"[{name}] {msg}: {I.text.strip()}")
            if I.op == 's_waitcnt':
                t = sub.split(';')[0]
                m = re.search(r'vmcnt\((\d+)\)', t)
                if m:
                    n = int(m.group(1))
                    while len(vm) > n: vm.pop(0)
                m = re.search(r'lgkmcnt\((\d+)\)', t)
                if m:
                    n = int(m.group(1))
                    if any(e[2] == 'smem' for e in lg) and n > 0: P("counted lgkmcnt with smem outstanding")
                    while len(lg) > n: lg.pop(0)
                    if n == 0: del sp[:]
                    elif n < len(sp): P("lgkm wait blocks on scalar poll")
                pos += 1; continue
            if I.op == 's_nop':
                pos += int(I.ops[0], 0) + 1; continue
            if I.op.startswith('s_cbranch_scc') or I.op.startswith('s_cselect') or I.op.startswith('s_cmov'):
                if scc[0] is None or not scc[0].startswith(('s_cmp', 's_bitcmp')): P(f"SCC last written by {scc[0]}")
            if I.op.startswith('s_addc'):
                if scc[0] != 's_add_u32': P(f"SCC last written by {scc[0]}")
            if I.kind == 'salu' and not re.match(r's_(mov|cmov|cselect|movk|mul_i32|getpc|getreg|mul_hi)', I.op): scc[0] = I.op
            for r in I.U + ([] if '; pf' in sub else I.D):
                p = pend(r)
                if p is not None: P(f"reg {r} has pending load ({p.strip()})")
            def dist(r):
                w = lastw.get(r)
                return (pos - w[0] - 1, w[1]) if w else (10**6, None)
            for r in I.U:
                d, W = dist(r)
                if W is None: continue
                need = 0
                if W.kind == 'mfma':
                    if I.kind == 'mfma':
                        if r in I.A or r in I.B: need = {4: 8, 8: 12}[W.passes]
                        elif I.C == W.D and I.passes == W.passes: need = 0
                        else: need = {4: 6, 8: 10}[W.passes]
                    else: need = {4: 8, 8: 12}[W.passes]
                elif W.kind == 'valu':
                    if r[0] in 'va':
                        if I.kind == 'mfma': need = 2
                        elif I.op.startswith('v_readfirstlane') or I.op.startswith('v_readlane'): need = 1
                        elif I.op.startswith('v_permlane'): need = 2
                        elif I.kind == 'valu' and I.dpp: need = 2
                        if W.op in TRANS and I.kind in ('valu',) : need = max(need, 1)
                        if W.op in TRANS and I.kind in ('vst','dsw','mfma'): need = max(need, 1)
                    else:
                        if I.kind in ('vld', 'vst', 'dma'): need = 5
                        elif I.kind == 'valu': need = 4 if I.op.startswith('v_readlane') else 2
                elif W.kind == 'salu' and r == ('s', 124) and I.kind == 'dma': need = 1
                if d < need: P(f"RAW {r} dist {d} < {need} after '{W.text.strip()}'")
            for r in I.D:
                d, W = dist(r)
                if W is not None and W.kind == 'mfma' and I.kind != 'mfma':
                    need = {4: 8, 8: 12}[W.passes]
                    if d < need: P(f"WAW {r} dist {d} < {need} after '{W.text.strip()}'")
                if W is not None and W.kind == 'mfma' and I.kind == 'mfma' and I.C != W.D:
                    need = {4: 6, 8: 10}[W.passes]
                    if d < 2: P(f"mfma WAW {r} dist {d}")
                if I.kind == 'valu' and r in mfma_c_read:
                    pp, ps = mfma_c_read[r]
                    need = {4: 3, 8: 7}[ps]
                    if pos - pp - 1 < need: P(f"WAR on SrcC {r}")
                if r in st_data and pos - st_data[r] - 1 < 2: P(f"WAR on store data {r}")
            if I.kind == 'mfma':
                for r in I.C: mfma_c_read[r] = (pos, I.passes)
            if I.kind == 'vst' and len(I.data) >= 3:
                for r in I.data: st_data[r] = pos
            if I.kind in ('vld', 'vst', 'dma'):
                vm.append((set(I.D), I.text, I.kind))
                if len(vm) > 63: P("vmcnt overflow (>63 outstanding)")
            elif I.kind == 'smem' and '; spoll' in sub:
                sp.append((set(I.D), I.text, I.kind))
            elif I.kind in ('dsr', 'dsw', 'smem'):
                lg.append((set(I.D), I.text, I.kind))
                if len(lg) + len(sp) > 15 : P("lgkmcnt > 15 outstanding (counted waits unreliable)")
            if I.kind not in ('vld', 'dsr', 'smem'):
                for r in I.D: lastw[r] = (pos, I)
            else:
                for r in I.D: lastw.pop(r, None)
            pos += 1
    if verbose:
        seen = set()
        for p in probs:
            if p not in seen and len(seen) < 12:
                print("HAZARD", p); seen.add(p)
    return len(probs)

def kernel_text(name, body, nvgpr, accum, nsgpr=102):
    t = [f".text\n.globl {name}\n.p2align 8\n.type {name},@function\n{name}:"]
    for l in body:
        for s in l.split('\n'):
            t.append(s if s.endswith(':') else "    " + s)
    t.append('.section .rodata,"a"\n.p2align 6')
    t.append(f".amdhsa_kernel {name}")
    t.append(f"  .amdhsa_next_free_vgpr {nvgpr}\n  .amdhsa_next_free_sgpr {nsgpr}\n  .amdhsa_accum_offset {accum}")
    t.append("  .amdhsa_group_segment_fixed_size 0\n  .amdhsa_kernarg_size 120\n  .amdhsa_user_sgpr_count 2")
    t.append("  .amdhsa_user_sgpr_kernarg_segment_ptr 1\n  .amdhsa_system_sgpr_workgroup_id_x 1")
    t.append("  .amdhsa_float_denorm_mode_32 3\n  .amdhsa_float_denorm_mode_16_64 3")
    t.append(".end_amdhsa_kernel")
    return "\n".join(t) + "\n"

def srd(d, ptr, nbytes, off_s=None):
    L = []
    if off_s is None:
        L += [f"s_mov_b32 s{d}, s{ptr}", f"s_mov_b32 s{d+1}, s{ptr+1}"]
    else:
        L += [f"s_add_u32 s{d}, s{ptr}, {off_s}", f"s_addc_u32 s{d+1}, s{ptr+1}, 0"]
    L += [f"s_mov_b32 s{d+2}, {nbytes}", f"s_mov_b32 s{d+3}, 0x20000"]
    return L

def cls_of(ins):
    op = ins.split('\n')[-1].split()[0]
    if op in ('WAITVM', 'WAITLG'): return 'S'
    if op == 's_barrier': return 'B'
    if op.startswith('s_cbranch') or op == 's_branch': return 'J'
    if op.startswith('s_'): return 'S'
    if op.startswith('ds_'): return 'L'
    if op.startswith('buffer_') or op.startswith('global_'): return 'D'
    if op in TRANS: return 'T'
    if op.startswith('v_mfma'): return 'M'
    if op.endswith(':'): return 'N'
    return 'V'

class Packer:
    ORD = {'S': 0, 'L': 1, 'V': 2, 'T': 2, 'D': 1, 'B': 1, 'J': 1, 'N': 3}
    def __init__(s, mf):
        s.mf = list(mf); n = len(mf)
        s.g = [[] for _ in range(n)]; s.ns = [0]*n; s.nv = [0]*n; s.excl = [False]*n
    def fits(s, g, c):
        if s.excl[g]: return c == 'N'
        if c == 'S': return s.ns[g] == 0 or (s.ns[g] + s.nv[g] < 3 and s.nv[g] == 0)
        if c in 'DBJ': return s.ns[g] == 0 and s.nv[g] == 0
        if c == 'N': return True
        w = 2 if c == 'T' else 1
        return s.nv[g] + w + max(0, s.ns[g] - 1) <= 2
    def stream(s, items, start=0, step=0, limit=None, dstep=0):
        prev, pc = start, None
        nd = 0
        for n_, it in enumerate(items):
            ins, d = (it, step) if isinstance(it, str) else it
            c = cls_of(ins)
            g = prev + (d if pc is not None else 0)
            if pc is not None and g == prev and (s.ORD[c] < s.ORD[pc] or pc in 'DBJ') and c != 'N': g += 1
            if c == 'D': g = max(g, int(start + nd * dstep)); nd += 1
            while True:
                assert g < len(s.mf), f"packer overflow: {ins}"
                if s.fits(g, c): break
                g += 1
            if limit is not None: assert g <= limit, f"{ins} placed at {g} > {limit}"
            s.g[g].append((s.ORD[c], len(s.g[g]), ins))
            if c == 'S': s.ns[g] += 1
            elif c in 'DBJ': s.excl[g] = True
            elif c != 'N': s.nv[g] += 2 if c == 'T' else 1
            prev, pc = g, c
        return prev
    def emit(s):
        out = []
        for m, g in zip(s.mf, s.g):
            out.append(m)
            out += [x[2] for x in sorted(g)]
        return out

def resolve_waits(lines):
    out = []; vt = []; lt = []
    def cnt(tags, want, ln):
        idx = [i for i, t in enumerate(tags) if t in want]
        assert idx, ln
        return len(tags) - 1 - max(idx)
    for ln in lines:
        if ln.startswith("WAITVM") or ln.startswith("WAITLG"):
            p = ln.split(); w = []
            if p[0] == "WAITVM":
                w.append(f"vmcnt({cnt(vt, p[1].split(','), ln)})")
                if len(p) > 3 and p[2] == 'LG': w.append(f"lgkmcnt({min(15, cnt(lt, p[3].split(','), ln))})")
                elif len(p) > 2: w += p[2:]
            else:
                w.append(f"lgkmcnt({min(15, cnt(lt, p[1].split(','), ln))})")
            out.append("s_waitcnt " + " ".join(w))
        else:
            m = re.search(r';\s*tag=(\w+)', ln); tg = m.group(1) if m else None
            if ln.startswith("buffer_") or ln.startswith("global_"): vt.append(tg)
            elif ln.startswith("ds_"): lt.append(tg)
            out.append(ln.split(';')[0].rstrip() if m else ln)
    return out
```

```python
from asmlib import *
import math

NAME = "adaLN_cond__compressed_kv_cla__glu_gated_geglu__prompt"
KA = dict(x=0, ckv=8, wq=16, wuk=24, wuv=32, wo=40, bx=48, wg=56, wu=64, wd=72, c=80, wmod=88, out=96, dbg=104, ws=112)
WS_MOD  = 0x0
WS_VEC  = 0x8000
WS_CNT  = 0x4000
WS_STAT = 0x10000
WS_H    = 0x100000
WS_X1P  = 0x400000
WS_X1   = 0x700000
WS_HH   = 0xA00000
WS_WO   = 0x1200000
WS_WD   = 0x1800000
WS_K    = 0x2000000
WS_V    = 0x3000000
WS_CTX  = 0x4000000
WS_SIZE = 0x10000000
QSCALE = math.log2(math.e) / math.sqrt(128.0)

import struct
def f2u(x): return struct.unpack('<I', struct.pack('<f', x))[0]
def fhex(x): return f"0x{f2u(x):08x}"

def ldptr(dst, name): return f"s_load_dwordx2 s[{dst}:{dst+1}], s[0:1], {KA[name]}"

def wave_id(sdst, vtmp):
    return [f"v_lshrrev_b32 v{vtmp}, 6, v0", "s_nop 0", f"v_readfirstlane_b32 s{sdst}, v{vtmp}"]

def tr_addr(vbase, vlane, t0, t1, base_expr_s=None):
    L = []
    L += [f"v_lshrrev_b32 v{t0}, 2, v{vlane}",
          f"v_lshrrev_b32 v{t1}, 3, v{vlane}",
          f"v_and_b32 v{t1}, 3, v{t1}",
          f"v_lshlrev_b32 v{t1}, 5, v{t1}",
          f"v_lshlrev_b32 v{t0}, 7, v{t0}",
          f"v_add_u32 v{t0}, v{t0}, v{t1}",
          f"v_and_b32 v{t1}, 3, v{vlane}",
          f"v_lshlrev_b32 v{t1}, 3, v{t1}",
          f"v_add_u32 v{t0}, v{t0}, v{t1}"]
    if base_expr_s is not None:
        L += [f"v_add_u32 v{t0}, {base_expr_s}, v{t0}"]
    for b in range(4):
        L += [f"v_xor_b32 v{vbase+b}, {b*32}, v{t0}"]
    return L

def wdma_voff(vdst, vlane, t0, t1, rowstride_s, nat):
    L = [f"v_lshrrev_b32 v{t0}, 3, v{vlane}"]
    if nat:
        L += [f"v_and_b32 v{t1}, 4, v{t0}", f"v_add_u32 v{t0}, v{t0}, v{t1}"]
    L += [f"v_mul_lo_u32 v{vdst}, v{t0}, {rowstride_s}",
          f"v_lshrrev_b32 v{t0}, 3, v{vlane}",
          f"v_and_b32 v{t0}, 6, v{t0}",
          f"v_and_b32 v{t1}, 7, v{vlane}",
          f"v_xor_b32 v{t0}, v{t0}, v{t1}",
          f"v_lshlrev_b32 v{t0}, 4, v{t0}",
          f"v_add_u32 v{vdst}, v{vdst}, v{t0}"]
    return L
NATROW = [0, 16, 4, 20]

WS_STAMP = 0x8000000
import os
STAMPS = int(os.environ.get("STAMPS", "0"))
def stamp(idx):
    if not STAMPS: return []
    return [f"{'s_memrealtime' if STAMPS == 1 else 's_memtime'} s[100:101]", "s_waitcnt lgkmcnt(0)", f"s_mov_b32 s{88+idx}, s100"]
def stamp_out(kidx, n):
    if not STAMPS: return []
    if os.environ.get("LEAK"):
        k = int(os.environ["LEAK"])
        return stamp(n-1) + ["s_cmp_lg_u32 s2, 100", "s_cbranch_scc1 KA_end", f"s_sub_u32 s72, s{88+k}, s88", "s_lshl_b32 s72, s72, 2", "s_min_u32 s72, s72, 100000",
                             "KA_leak:", "s_memrealtime s[100:101]", "s_waitcnt lgkmcnt(0)", f"s_sub_u32 s73, s100, s{88+n-1}", "s_cmp_lt_u32 s73, s72", "s_cbranch_scc1 KA_leak"]
    L = stamp(n-1) + ["s_load_dwordx2 s[72:73], s[0:1], 112", "s_waitcnt lgkmcnt(0)"]
    L += srd(76, 72, 0x100000, hex(WS_STAMP + kidx*0x10000))
    L += ["s_mov_b64 exec, -1", "v_mbcnt_lo_u32_b32 v0, -1, 0", "v_mbcnt_hi_u32_b32 v0, -1, v0", "v_cmp_eq_u32 vcc, 0, v0", "s_and_b64 exec, exec, vcc",
          "s_lshl_b32 s74, s2, 8", "s_lshl_b32 s75, s3, 6", "s_add_u32 s74, s74, s75", "v_mov_b32 v1, s74"]
    for i in range(n):
        L += [f"v_mov_b32 v2, s{88+i}", f"buffer_store_dword v2, v1, s[76:79], 0 offen offset:{4*i}"]
    if os.environ.get("DBGST"):
        L += ["s_load_dwordx2 s[72:73], s[0:1], 104", "s_waitcnt lgkmcnt(0)"] + srd(76, 72, 256)
        L += [f"s_sub_u32 s74, s2, {os.environ['DBGST']}", "s_or_b32 s74, s74, s3", "s_lshl_b32 s74, s74, 8", "v_mov_b32 v1, s74"]
        for i in range(1, n):
            L += [f"s_sub_u32 s75, s{88+i}, s88", "v_mov_b32 v2, s75", f"buffer_store_dword v2, v1, s[76:79], 0 offen offset:{4*i+4}"]
    L += ["s_waitcnt vmcnt(0)"]
    return L
def stamp_init():
    if not STAMPS: return []
    return stamp(0)
```

```python
from common import *
from attn import *
import k0

V_CA0, V_CA1, V_CV0, V_CV1 = 5, 6, 7, 12
V_TR2 = 24; V_WV0 = 28; V_SIG = 29; V_ONE = 30; V_POLL = 31; V_HST = 0; V_MODA = 23
SRD_C = 12; SRD_WQ = 68; SRD_WS = 72; SRD_DBG = 76
A_C = 128; A_W = 192; A_N = 224; A_CS = 32; A_DUM = 249
S_M0W = 40; S_M0C = 41; S_XF = 63; S_WOFF = 43
CBASE = [0x20000, 0x18000]
HUGE = 0x7ffffff0

def acc_idx(n, kv):
    if n < 8: return 2*((n >> 1)*4 + kv) + (n & 1)
    return 2*(16 + (n - 8)*2 + (kv >> 1)) + (kv & 1)
def accr(a): return vr(32 + 4*a, 4) if a < 56 else ar(4*(a-56), 4)
def cf(c, kv, k): return ar(A_C + (c & 1)*32 + (kv*2+k)*4, 4)
def wf(n, k): return ar(A_W + ((n & 3)*2+k)*4, 4)
def hf(c, q, k): return ar((((c+1) & 3)*8 + q*2 + k)*4, 4)
def qacc(d, q): return vr(QACC + (d*4+q)*4, 4)

def rd_w(sc, grp, n, tag):
    st = sc % 3
    L = []
    for k in range(2):
        base = A_W + ((n & 3)*2+k)*4
        for t in range(2):
            av = (V_TR2 if st == 2 else V_TR) + (n & 3)
            L.append(f"ds_read_b64_tr_b16 {ar(base+2*t,2)}, v{av} offset:{(st&1)*32768 + grp*8192 + k*4096 + t*2048} ; tag={tag}")
    return L
def w_issue(sc):
    L = []
    srd_ = SRD_W if sc < 8 else SRD_WQ
    if sc == 8: L.append(f"v_subrev_u32 v{V_WV}, {8*64*8192}, v{V_WV}")
    for j in range(8):
        if j % 4 == 0: L.append(f"s_add_u32 m0, s{S_M0W}, {(sc % 3)*32768 + (j >> 2)*4096}")
        L.append(f"buffer_load_dwordx4 v{V_WV}, s[{srd_}:{srd_+3}], s{44+j} offen offset:{(j&3)*1024}{nt('W' if sc < 8 else 'Q')} lds ; tag=W{sc}")
    L.append(f"v_add_u32 v{V_WV}, {(64 if sc < 8 else 128)*8192}, v{V_WV}")
    return L
def c_issue(c):
    L = []
    for j in range(8):
        if j % 4 == 0: L.append(f"s_add_u32 m0, s{S_M0W}, {CBASE[c & 1] + (j >> 2)*4096}")
        L.append(f"buffer_load_dwordx4 v{V_CV1 if j & 1 else V_CV0}, s[{SRD_C}:{SRD_C+3}], s{52+j} offen offset:{(j&3)*1024}{nt('C')} lds ; tag=C{c}")
    L += [f"v_add_u32 v{V_CV0}, 128, v{V_CV0}", f"v_add_u32 v{V_CV1}, 128, v{V_CV1}"]
    return L
def rd_c(c):
    return [f"ds_read_b128 {cf(c, kv, k)}, v{V_CA0 + k} offset:{CBASE[c & 1] - 0x18000 + kv*2048} ; tag=RC{c}" for kv in range(4) for k in range(2)]
def h_issue(c):
    L = [f"buffer_load_dwordx4 {hf(c,q,k)}, v{V_L16}, s[{SRD_WS}:{SRD_WS+3}], s{52+q} offen offset:{((2*c+k)&3)*1024} sc1 ; tag=H{c}" for q in range(4) for k in range(2)]
    if c & 1: L += [f"s_add_u32 s{52+q}, s{52+q}, 4096" for q in range(4)]
    return L
def nop_m0(L):
    out = []
    for x in L:
        out.append(x)
        if x.startswith("s_add_u32 m0"): out.append("s_nop 0")
    return out

spins = []
SLEEP = int(os.environ.get('SLEEP', '8'))
def poll_addr(n8):
    if not n8: return [], V_SIG
    return [f"v_lshrrev_b32 v{V_POLL}, 3, v{V_LANE}", f"v_lshl_or_b32 v{V_POLL}, v{V_POLL}, 26, s{S_WOFF}", f"v_lshl_or_b32 v{V_POLL}, v{V_LANE}, 7, v{V_POLL}"], V_POLL
def poll_issue(srd_, soff, tag, n8=False):
    pre, va = poll_addr(n8)
    return pre + [f"buffer_load_dword v{V_POLL}, v{va}, s[{srd_}:{srd_+3}], {soff} offen sc1" + (f" ; tag={tag}" if tag else "")]
def poll_check(name, srd_, soff, target, n8=False, bar=True, msk=None):
    if msk is None: msk = 0xff if n8 else 1
    spins.append([f"KA_spin_{name}:", f"s_cmp_lg_u32 s{S_W}, 0", f"s_cbranch_scc1 KA_ret_{name}",
                  "s_mov_b32 s29, 0x20000", f"KA_spinl_{name}:", f"s_sleep {SLEEP}"] + poll_issue(srd_, soff, None, n8) +
                 ["s_waitcnt vmcnt(0)", f"v_cmp_gt_u32 vcc, {target}, v{V_POLL}", "s_sub_u32 s29, s29, 1", "s_cmp_eq_u32 s29, 0", f"s_cbranch_scc1 KA_ret_{name}",
                  f"s_and_b32 s28, vcc_lo, {msk}", "s_cmp_lg_u32 s28, 0", f"s_cbranch_scc1 KA_spinl_{name}", f"s_branch KA_ret_{name}"])
    return [f"v_cmp_gt_u32 vcc, {target}, v{V_POLL}", (f"s_and_b32 s28, vcc_lo, {msk}", 1), f"s_cmp_lg_u32 s28, 0\ns_cbranch_scc1 KA_spin_{name}", f"KA_ret_{name}:"] + (["s_barrier"] if bar else [])
def spoll_issue(base, off, n):
    return [f"s_load_dword s{16+j}, s[{base}:{base+1}], {off + 128*j} ; spoll" for j in range(n)]
def spoll_check(name, srd_, soff, target, n):
    poll_check(name, srd_, soff, target, n > 1, msk=(1 << n) - 1)
    o = [f"s_min_u32 s16, s16, s{16+j}" for j in range(1, n)]
    return "\n".join(o + [f"s_cmp_lt_u32 s16, {target}", f"s_cbranch_scc1 KA_spin_{name}"]), f"KA_ret_{name}:"
def signal(srd_, soff, vaddr=V_SIG, val=V_ONE): return f"buffer_atomic_add v{val}, v{vaddr}, s[{srd_}:{srd_+3}], {soff} offen"

ORDER = int(os.environ.get("ORDER", "1"))
WARM = int(os.environ.get("WARM", "1"))
DST = float(os.environ.get("DST", "6"))
WARMS = {0: [('wuk', 512*8192), ('wuv', 512*8192), ('ckv', 2048*1024), ('code', 0)], 1: [('wq', 640*8192)], 5: [('wo', 4096*1280), ('wd', 1728*1280)], 6: [('wg', 640*3456), ('wu', 640*3456)]}
WARMN = [0]
PM_GAP = int(os.environ.get("PM_GAP", "88"))
PH_GAP = int(os.environ.get("PH_GAP", "88"))
CS_GAP = int(os.environ.get("CS_GAP", "32"))
HP = int(os.environ.get("HP", "5"))
MW_GAP = int(os.environ.get("MW_GAP", "8"))
LN2 = 8
WQC = int(os.environ.get("WQC", "4"))
HS_GAP = int(os.environ.get("HS_GAP", "44"))
STPOS = os.environ.get("STPOS", "p,c7,q").split(",")
def pst(name):
    if not STAMPS or name not in STPOS: return []
    return stamp(1 + STPOS.index(name)) + ["s_waitcnt lgkmcnt(0)"]

A_MW = 72; A_S = 244; A_X = 96
MACC = 14
V_MU, V_RS = 30, 4

A_PF = 124; A_MW2 = 224
_dum = [0]
DS = []
RELAX = int(os.environ.get('RELAX', '0'))
PFS = os.environ.get('PFS', 'mqijhwL')
NT = os.environ.get('NT', '')
def nt(k): return ' nt' if k in NT else ''
EVEN = int(os.environ.get('EVEN', '3'))
def dum():
    _dum[0] += 1
    return f"a{A_DUM + _dum[0] % 7}"
def pfw(step, v):
    if step < 4 and 'w' not in PFS: return []
    if step >= 4 and 'q' not in PFS: return []
    if step < 4: return [f"s_mov_b32 s41, {step*128*8192}", f"buffer_load_dword {dum()}, v{v}, s[{SRD_W}:{SRD_W+3}], s41 offen{nt('p')}"]
    return [f"s_lshr_b32 s41, s{S_W}, 1", "s_lshl_b32 s41, s41, 19", f"s_add_u32 s41, s41, {(step-4)*256*8192}", f"buffer_load_dword {dum()}, v{v}, s[{SRD_WQ}:{SRD_WQ+3}], s41 offen{nt('q')}"]
def pfc(step, v): return [] if 'c' not in PFS else [f"buffer_load_dword {dum()}, v{v}, s[{SRD_C}:{SRD_C+3}], 0 offen offset:{step*256}"]
def pf(step, v):
    if not WARM: return []
    L = [f"v_accvgpr_read_b32 v{v}, a{A_PF}"] + pfw(step, v)
    if step < 4: L += [f"v_accvgpr_read_b32 v{v}, a{A_PF+1}"] + pfc(step, v)
    return L

def prologue():
    L = []; A = L.append
    A("s_cmp_ge_u32 s2, 256"); A("s_cbranch_scc1 KA_end")
    L += stamp_init()
    A("s_load_dwordx4 s[16:19], s[0:1], 0")
    A("s_load_dwordx4 s[20:23], s[0:1], 24")
    A("s_load_dwordx4 s[32:35], s[0:1], 80")
    A("s_load_dwordx4 s[36:39], s[0:1], 104")
    A(ldptr(6, 'wq')); A(ldptr(96, 'wo')); A(ldptr(98, 'wd')); A("s_load_dwordx4 s[84:87], s[0:1], 56")
    if 'i' in PFS:
        A("s_getpc_b64 s[8:9]"); A(f"s_mov_b32 s10, KA_end-{NAME}_kernel-64"); A("s_mov_b32 s11, 0x20000")
        A("s_lshr_b32 s28, s2, 3"); A("s_lshl_b32 s28, s28, 7"); A("v_lshlrev_b32 v1, 12, v0")
        A(f"buffer_load_dword {dum()}, v1, s[8:11], s28 offen")
    L += wave_id(S_W, 1)
    A(f"v_and_b32 v{V_LANE}, 63, v0")
    A(f"s_and_b32 s{S_HEAD}, s2, 7"); A(f"s_lshl_b32 s{S_HEAD}, s{S_HEAD}, 2"); A("s_bfe_u32 s28, s2, 0x20003"); A(f"s_add_u32 s{S_HEAD}, s{S_HEAD}, s28")
    A(f"s_lshr_b32 s{S_I}, s2, 5")
    A(f"s_lshl_b32 s{S_M0W}, s{S_W}, 13")
    for j in range(8):
        A(f"s_mov_b32 s{44+j}, {(NATROW[j&3] + 32*(j>>2))*8192 - (j&3)*1024}")
        A(f"s_mov_b32 s{52+j}, {j*8192 - (j&3)*1024}")
    A("s_movk_i32 s28, 8192")
    L += wdma_voff(V_WV, V_LANE, 13, 14, "s28", nat=True)
    A(f"v_lshrrev_b32 v13, 3, v{V_LANE}"); A("v_lshrrev_b32 v16, 1, v13"); A(f"v_and_b32 v15, 7, v{V_LANE}")
    A("v_xor_b32 v14, v16, v15"); A("v_lshlrev_b32 v14, 4, v14"); A(f"v_lshl_add_u32 v{V_CV0}, v13, 10, v14")
    A(f"v_xor_b32 v{V_CV1}, 64, v{V_CV0}")
    A(f"s_lshl_b32 s30, s{S_I}, 18"); A(f"s_lshl_b32 s29, s{S_W}, 16"); A("s_add_u32 s30, s30, s29")
    A(f"s_lshl_b32 s28, s{S_HEAD}, 8"); A(f"s_and_b32 s29, s{S_W}, 1"); A("s_lshl_b32 s29, s29, 7"); A("s_add_u32 s28, s28, s29")
    A("v_and_b32 v36, 0xfe, v0")
    A("s_lshr_b32 s31, s2, 3"); A("s_lshl_b32 s31, s31, 1"); A(f"s_and_b32 s41, s{S_W}, 1"); A("s_add_u32 s31, s31, s41"); A("s_lshl_b32 s31, s31, 13")
    A("s_and_b32 s41, s28, 0x3ff"); A("s_sub_u32 s31, s31, s41")
    A("v_lshlrev_b32 v22, 19, v13"); A("v_lshl_add_u32 v22, v15, 7, v22"); A("v_add_u32 v22, s31, v22"); A("v_lshl_or_b32 v22, v16, 26, v22")
    A(f"v_lshrrev_b32 v23, 1, v{V_LANE}"); A(f"s_and_b32 s31, s{S_HEAD}, 3"); A("s_lshl_b32 s31, s31, 14"); A(f"v_lshl_add_u32 v23, v23, 10, s31")
    A(f"v_and_b32 v17, 1, v{V_LANE}"); A("v_lshl_add_u32 v23, v17, 7, v23"); A(f"v_lshrrev_b32 v17, 5, v{V_LANE}"); A("v_lshl_or_b32 v23, v17, 26, v23")
    A("s_lshr_b32 s41, s2, 3"); A("s_lshl_b32 s41, s41, 2"); A(f"s_add_u32 s41, s41, s{S_W}"); A(f"s_mul_i32 s41, s41, {5*7680}")
    A("s_and_b32 s31, s2, 7"); A("s_lshl_b32 s31, s31, 7"); A("s_add_u32 s41, s41, s31")
    A(f"v_and_b32 v18, 7, v{V_LANE}"); A("v_mul_u32_u24 v19, 7680, v18"); A(f"v_lshrrev_b32 v20, 3, v{V_LANE}"); A("v_lshl_add_u32 v19, v20, 10, v19"); A("v_add_u32 v19, s41, v19")
    A("v_add_u32 v18, 3, v18"); A("v_lshrrev_b32 v18, 3, v18"); A("v_lshl_or_b32 v19, v18, 26, v19")
    A("v_add_u32 v18, 5, v20"); A("v_lshrrev_b32 v18, 3, v18"); A("v_lshl_or_b32 v19, v18, 26, v19")
    A("s_waitcnt lgkmcnt(0)")
    L += srd(64, 34, 640*7680)
    if 'm' in PFS: A(f"buffer_load_dword {dum()}, v19, s[64:67], 0 offen{nt('m')}")
    L += srd(SRD_C, 18, 65536, "s30")
    A(f"s_cmp_ge_u32 s{S_W}, 2"); A("s_cselect_b32 s20, s22, s20"); A("s_cselect_b32 s21, s23, s21")
    A(f"s_add_u32 s{SRD_W}, s20, s28"); A(f"s_addc_u32 s{SRD_W+1}, s21, 0"); A(f"s_sub_u32 s{SRD_W+2}, {512*8192}, s28"); A(f"s_mov_b32 s{SRD_W+3}, 0x20000")
    if '0' in PFS: L += pfw(0, 22) + pfc(0, 23)
    if 'K' in PFS:
        L += [f"v_lshrrev_b32 v17, 4, v{V_LANE}", "v_lshlrev_b32 v17, 26, v17", f"v_lshl_or_b32 v17, v{V_LANE}, 7, v17", f"s_lshl_b32 s41, s{S_HEAD}, 11",
              f"buffer_load_dword {dum()}, v17, s[{SRD_C}:{SRD_C+3}], s41 offen"]
    L += srd(68, 32, 1280)
    for i in range(5): A(f"buffer_load_ushort v{40+i}, v36, s[68:71], 0 offen offset:{i*256} ; tag=MC")
    L += nop_m0(w_issue(0) + c_issue(0))
    if '1' in PFS: L += pfw(1, 22) + pfc(1, 23)
    def kpf():
        return [f"v_lshrrev_b32 v17, 4, v{V_LANE}", "v_lshlrev_b32 v17, 26, v17", f"v_lshl_or_b32 v17, v{V_LANE}, 7, v17", f"s_lshl_b32 s41, s{S_HEAD}, 11",
                f"buffer_load_dword {dum()}, v17, s[{SRD_C}:{SRD_C+3}], s41 offen"]
    if 'k' in PFS: L += kpf()
    A(f"v_accvgpr_write_b32 a{A_PF}, v22"); A(f"v_accvgpr_write_b32 a{A_PF+1}, v23")
    L += pst("p0")
    mark0 = len(L)
    A(f"v_lshlrev_b32 v{V_L16}, 4, v{V_LANE}")
    A("s_mov_b32 s4, s38"); A("s_mov_b32 s5, s39")
    A(f"s_lshr_b32 s29, s{S_W}, 1"); A("s_lshl_b32 s29, s29, 19"); A("s_add_u32 s28, s28, s29")
    A(f"s_add_u32 s{SRD_WQ}, s6, s28"); A(f"s_addc_u32 s{SRD_WQ+1}, s7, 0"); A(f"s_sub_u32 s{SRD_WQ+2}, {640*8192}, s28"); A(f"s_mov_b32 s{SRD_WQ+3}, 0x20000")
    L += srd(SRD_WS, 4, 0x1000000); L += srd(SRD_DBG, 36, 256)
    A(f"s_lshl_b32 s60, s{S_I}, 5"); A(f"s_add_u32 s60, s60, s{S_HEAD}")
    A("s_cmp_lt_u32 s60, 80"); A("s_cselect_b32 s66, s66, 0")
    L += srd(SRD_V, 16, 2048*1280)
    A("v_lshrrev_b32 v33, 1, v0"); A("s_movk_i32 s28, 7680"); A("v_mul_lo_u32 v28, v33, s28"); A("v_and_b32 v35, 1, v0")
    A("v_lshl_add_u32 v28, v35, 4, v28"); A("s_lshl_b32 s29, s60, 5"); A("v_add_u32 v28, s29, v28")
    A(f"v_lshrrev_b32 v37, 5, v{V_LANE}"); A("s_lshl_b32 s28, s2, 3"); A(f"s_lshl_b32 s29, s{S_W}, 1"); A("s_add_u32 s28, s28, s29"); A("v_add_u32 v37, s28, v37")
    A(f"v_and_b32 v38, 31, v{V_LANE}"); A("s_movk_i32 s28, 1280"); A("v_mul_lo_u32 v31, v37, s28"); A("v_lshl_add_u32 v30, v38, 3, v31"); A("v_lshl_add_u32 v31, v38, 4, v31")
    A(f"v_mov_b32 v13, {hex(HUGE)}"); A("v_cmp_eq_u32 vcc, 0, v0"); A("s_nop 1"); A(f"v_cndmask_b32 v{V_SIG}, v13, 0, vcc")
    A(f"s_getreg_b32 s{S_XF}, hwreg(HW_REG_XCC_ID, 0, 3)"); A(f"s_lshl_b32 s{S_XF}, s{S_XF}, 2")
    A("v_lshlrev_b32 v15, 7, v0"); A("s_cmp_eq_u32 s2, 0"); A("s_cselect_b32 s28, 64, 0"); A("v_cmp_gt_u32 vcc, s28, v0"); A("v_mov_b32 v16, 0"); A("v_mov_b32 v17, 0"); A("v_mov_b32 v18, 0"); A("v_mov_b32 v19, 0")
    A(f"s_movk_i32 s28, {WS_CNT}"); A("v_cndmask_b32 v15, v13, v15, vcc"); A(f"s_movk_i32 s29, {WS_CNT + 8192}")
    A(f"buffer_store_dwordx4 v[16:19], v15, s[{SRD_WS}:{SRD_WS+3}], s28 offen sc1 ; tag=ZI")
    A(f"buffer_store_dwordx4 v[16:19], v15, s[{SRD_WS}:{SRD_WS+3}], s29 offen sc1 ; tag=ZI")
    A(f"s_cmp_eq_u32 s{S_W}, 0"); A(f"s_cselect_b32 s{S_WOFF}, 0, {1 << 26}")
    A("s_cmp_eq_u32 s2, 0"); A("s_cselect_b32 s31, 0, 0x1000")
    L += tr_addr(V_TR, V_LANE, 13, 14)
    for b in range(4): A(f"v_add_u32 v{V_TR2+b}, 0x10000, v{V_TR+b}")
    A(f"v_and_b32 v13, 15, v{V_LANE}"); A(f"v_lshrrev_b32 v14, 4, v{V_LANE}"); A("v_lshrrev_b32 v15, 1, v13")
    A("v_xor_b32 v14, v14, v15"); A("v_lshlrev_b32 v14, 4, v14"); A("v_lshl_add_u32 v13, v13, 7, v14")
    A(f"s_add_u32 s28, s{S_M0W}, 0x18000"); A(f"v_add_u32 v{V_CA0}, s28, v13"); A(f"v_xor_b32 v{V_CA1}, 64, v{V_CA0}")
    A("v_lshrrev_b32 v13, 4, v37"); A("v_mul_u32_u24 v13, 20, v13"); A("v_lshrrev_b32 v14, 3, v38"); A("v_add_u32 v13, v13, v14"); A("v_lshlrev_b32 v13, 6, v13")
    A("v_bfe_u32 v14, v38, 1, 2"); A("v_lshl_add_u32 v13, v14, 4, v13"); A("v_and_b32 v14, 15, v37"); A("v_add_u32 v13, v13, v14"); A("v_lshlrev_b32 v13, 4, v13")
    A("v_and_b32 v14, 1, v38"); A("v_lshl_add_u32 v13, v14, 3, v13"); A(f"v_add_u32 v13, {WS_H + 16384}, v13"); A(f"v_accvgpr_write_b32 a{A_PF+3}, v13")
    A("v_lshrrev_b32 v13, 4, v37"); A("v_mul_u32_u24 v13, 20480, v13"); A("v_lshl_add_u32 v13, v38, 8, v13"); A("v_and_b32 v14, 15, v37"); A("v_lshl_add_u32 v13, v14, 4, v13")
    A(f"v_add_u32 v{V_HST}, {WS_H}, v13")
    if 'f' in os.environ.get("EXP", ""):
        A("s_lshl_b32 s28, s2, 2"); A(f"s_add_u32 s28, s28, s{S_W}"); A("s_lshl_b32 s28, s28, 10"); A("s_and_b32 s29, s28, 0x1fff"); A("s_andn2_b32 s28, s28, 0x1fff"); A("s_lshl_b32 s28, s28, 1"); A("s_add_u32 s28, s28, s29")
        A(f"s_add_u32 s28, s28, {WS_H}"); A(f"v_add_u32 v{V_HST}, s28, v{V_L16}")
        A("s_lshl_b32 s28, s2, 2"); A(f"s_add_u32 s28, s28, s{S_W}"); A("s_lshl_b32 s28, s28, 9"); A(f"s_add_u32 s28, s28, {WS_H + 0x200000}"); A(f"v_lshlrev_b32 v13, 3, v{V_LANE}"); A("v_add_u32 v13, s28, v13")
        A(f"v_accvgpr_write_b32 a{A_PF+3}, v13")
    A(f"s_lshl_b32 s{S_W2K}, s{S_W}, 11")
    A(f"s_lshl_b32 s{S_2D}, s{S_I}, 2"); A(f"s_add_u32 s{S_2D}, s{S_2D}, 4")
    A(f"s_sub_u32 s{S_2DM1}, s{S_2D}, 1"); A(f"s_sub_u32 s{S_2DM4}, s{S_2D}, 4"); A(f"s_mov_b32 s{S_RETRY}, 0")
    A("s_lshr_b32 s28, s2, 4"); A("s_sub_u32 s29, 15, s28"); A("s_min_u32 s28, s28, s29"); A("s_lshl_b32 s28, s28, 3"); A("s_and_b32 s29, s2, 3"); A("s_add_u32 s28, s28, s29")
    A("s_lshl_b32 s28, s28, 7"); A(f"s_add_u32 s24, s28, {WS_CNT + 8*128}")
    A(f"s_lshl_b32 s28, s{S_I}, 10"); A(f"s_add_u32 s25, s28, {WS_CNT + 8*128}")
    A(f"s_lshl_b32 s28, s{S_HEAD}, 7"); A(f"s_add_u32 s62, s28, {WS_CNT + 72*128}")
    A(f"s_lshl_b32 s28, s{S_I}, 16"); A(f"s_lshl_b32 s29, s{S_W}, 14"); A("s_add_u32 s32, s28, s29")
    for j in range(1, 4): A(f"s_add_u32 s{32+j}, s32, {j*4096}")
    A("s_and_b32 s28, s60, 3"); A("s_lshl_b32 s28, s28, 7"); A(f"s_add_u32 s28, s28, {WS_CNT}")
    A("s_cmp_lt_u32 s60, 80"); A(f"s_cselect_b32 s61, s28, 0x2000000")
    A("s_cmp_lt_u32 s60, 40"); A("s_cselect_b32 s80, 0, 1.0"); A(f"s_cselect_b32 s81, {fhex(QSCALE)}, 1.0")
    A("s_cmp_lt_u32 s60, 80"); A("s_cselect_b32 s82, 16, 0")
    A(f"s_cmp_lg_u32 s{S_W}, 0"); A("s_cmov_b32 s82, 0"); A("s_lshl_b32 s60, s60, 6")
    A(f"s_cmp_ge_u32 s{S_W}, 2"); A("s_cselect_b32 s86, s86, s84"); A("s_cselect_b32 s87, s87, s85")
    A("s_lshl_b32 s28, s2, 2"); A(f"s_add_u32 s28, s28, s{S_W}"); A("s_cmp_lt_u32 s28, 640")
    A("s_cselect_b32 s96, s96, s98"); A("s_cselect_b32 s97, s97, s99"); A(f"s_mov_b32 s98, {1728*1280}"); A(f"s_cmov_b32 s98, {4096*1280}"); A("s_mov_b32 s99, 0x20000")
    A("s_cselect_b32 s29, 0, 640"); A(f"s_mov_b32 s84, {54*1024}"); A(f"s_cmov_b32 s84, {128*1024}"); A(f"s_mov_b32 s83, {WS_WD - WS_WO}"); A("s_cmov_b32 s83, 0")
    A("s_cmp_lt_u32 s28, 910"); A("s_cselect_b32 s83, s83, 0x4000000"); A("s_cselect_b32 s28, s28, 640")
    A("s_sub_u32 s28, s28, s29"); A("s_mul_i32 s29, s28, 13108"); A("s_lshr_b32 s29, s29, 16"); A("s_mul_i32 s41, s29, 5"); A("s_sub_u32 s28, s28, s41")
    A("s_mul_i32 s41, s28, s84"); A("s_lshl_b32 s41, s41, 3"); A("s_add_u32 s83, s83, s41"); A("s_lshl_b32 s41, s29, 10"); A("s_add_u32 s83, s83, s41")
    A(f"s_mul_i32 s36, s29, {32*1280}"); A("s_lshl_b32 s28, s28, 8"); A("s_add_u32 s36, s36, s28")
    A("s_add_u32 s28, s96, s36"); A("s_addc_u32 s29, s97, 0"); A("v_mov_b32 v54, s28"); A("v_mov_b32 v55, s29"); A(f"v_mov_b32 v56, {4*1280}")
    A(f"v_lshrrev_b32 v57, 1, v{V_LANE}"); A("v_mul_u32_u24 v57, 1280, v57"); A(f"v_and_b32 v58, 1, v{V_LANE}"); A("v_lshl_add_u32 v57, v58, 7, v57")
    A(f"v_cmp_gt_u32 vcc, 8, v{V_LANE}"); A(f"v_and_b32 v58, 7, v{V_LANE}"); A(f"v_lshrrev_b32 v59, 3, v{V_LANE}"); A("v_cndmask_b32 v57, 0, v57, vcc")
    A("s_and_b32 s28, s2, 31"); A("s_min_u32 s28, s28, 26"); A("s_lshl_b32 s28, s28, 7"); A(f"s_lshl_b32 s29, s{S_I}, 1"); A(f"s_and_b32 s41, s{S_W}, 1"); A("s_add_u32 s29, s29, s41")
    A(f"s_mul_i32 s29, s29, {40*3456}"); A("s_add_u32 s28, s28, s29"); A("s_add_u32 s86, s86, s28"); A("s_addc_u32 s87, s87, 0")
    A("v_cmp_gt_u32 s[28:29], 5, v58"); A("v_cmp_eq_u32 vcc, 1, v59"); A("v_mul_u32_u24 v60, 3456, v58"); A("s_and_b64 vcc, vcc, s[28:29]")
    A("v_mov_b32 v61, s86"); A("v_cndmask_b32 v54, v54, v61, vcc"); A("v_mov_b32 v61, s87"); A("v_cndmask_b32 v55, v55, v61, vcc")
    A(f"v_mov_b32 v61, {5*3456}"); A("v_cndmask_b32 v56, v56, v61, vcc"); A("v_cndmask_b32 v57, v57, v60, vcc")
    A("v_cmp_eq_u32 vcc, 2, v59"); A("v_mul_u32_u24 v60, 7680, v58"); A("s_nop 0"); A("s_and_b64 vcc, vcc, s[28:29]")
    A("s_lshr_b32 s28, s2, 3"); A("s_lshl_b32 s28, s28, 2"); A(f"s_add_u32 s28, s28, s{S_W}"); A(f"s_mul_i32 s28, s28, {5*7680}"); A("v_add_u32 v60, s28, v60"); A(f"v_min_u32 v60, {638*7680}, v60")
    A("s_and_b32 s28, s2, 7"); A("s_lshl_b32 s28, s28, 7"); A("s_mov_b32 s6, s64"); A("s_mov_b32 s7, s65")
    A("s_add_u32 s28, s6, s28"); A("s_addc_u32 s29, s7, 0")
    A("v_mov_b32 v61, s28"); A("v_cndmask_b32 v54, v54, v61, vcc"); A("v_mov_b32 v61, s29"); A("v_cndmask_b32 v55, v55, v61, vcc")
    A("v_mov_b32 v61, 1024"); A("v_cndmask_b32 v56, v56, v61, vcc"); A("v_cndmask_b32 v57, v57, v60, vcc")
    A("v_add_co_u32 v54, vcc, v54, v57"); A("s_nop 1"); A("v_addc_co_u32 v55, vcc, 0, v55, vcc")
    for r in range(3): A(f"v_accvgpr_write_b32 a{224+r}, v{54+r}")
    A("WAITVM MC")
    for i in range(5):
        A(f"v_lshlrev_b32 v{40+i}, 16, v{40+i}"); A(f"v_mul_f32 v{70+i}, {fhex(-math.log2(math.e))}, v{40+i}")
    for i in range(5): A(f"v_exp_f32 v{70+i}, v{70+i}")
    for i in range(5): A(f"v_add_f32 v{70+i}, 1.0, v{70+i}")
    for i in range(5): A(f"v_rcp_f32 v{70+i}, v{70+i}")
    for i in range(5): A(f"v_mul_f32 v{70+i}, v{70+i}, v{40+i}")
    for i in range(5): A(f"v_cvt_pk_bf16_f32 v{70+i}, v{70+i}, v{70+i}");
    for i in range(5): A(f"v_lshlrev_b32 v{40+i}, 16, v{70+i}")
    for i in range(5): A(f"v_accvgpr_write_b32 a{A_S+i}, v{40+i}")
    L += mw_loads(A_MW, "MW")
    L += nop_m0(w_issue(1) + c_issue(1))
    L += pst("p3")
    A("WAITVM W0,C0"); A("s_barrier")
    L += pst("p")
    L += rd_c(0) + rd_w(0, 0, 0, "P0") + ["s_waitcnt lgkmcnt(2)"] + rd_w(0, 0, 1, "P1") + ["WAITLG P0"]
    return L

def mw_loads(base, tag):
    o = []
    for i in range(5): o += [f"s_mov_b32 s28, {i*128*7680}", f"buffer_load_dwordx4 a[{base+4*i}:{base+4*i+3}], v28, s[64:67], s28 offen{nt('M')} ; tag={tag}"]
    return o
def rsum32(r, t):
    o = []
    for sh in (8, 4, 2, 1): o += [(f"v_add_f32 v{r}, v{r}, v{r} row_ror:{sh}", 2)]
    o += [f"v_mov_b32 v{t}, v{r}", (f"v_permlane16_swap_b32 v{r}, v{t}", 2), f"v_add_f32 v{r}, v{r}, v{t}"]
    return o
def xunpack(j): return [f"v_accvgpr_read_b32 v22, a{A_X+j}", "v_lshlrev_b32 v23, 16, v22", "v_and_b32 v22, 0xffff0000, v22"]
def sig(srd_, soff): return ["v_mov_b32 v13, 1", signal(srd_, soff, val=13)]

def kv_store(i, reg):
    srd_ = SRD_K if i < 16 else SRD_V
    o = ((i & 3)*4 + (i >> 2))*1024 if i < 16 else ((i & 1)*8 + ((i - 16) >> 1))*1024
    return [f"buffer_store_dwordx4 v[{reg}:{reg+3}], v{V_L16}, s[{srd_}:{srd_+3}], s{32 + (o >> 12)} offen offset:{o & 0xfff} ; tag=KVST"]
def kv_cvt(i, dst):
    L = []
    for hfi in range(2):
        a = 2*i + hfi
        if a < 56: r = 32 + 4*a
        else:
            r = 13 + 4*hfi
            L += [f"v_accvgpr_read_b32 v{r+e}, a{4*(a-56)+e}" for e in range(4)]
        L += [f"v_cvt_pk_bf16_f32 v{dst+2*hfi}, v{r}, v{r+1}", f"v_cvt_pk_bf16_f32 v{dst+2*hfi+1}, v{r+2}, v{r+3}"]
    return L
def kv_dst(i): return 32 + 4*i if i < 24 else 32 + 4*(i - 24)

def k1_chunk(c):
    mf = []
    for n in range(16):
        for kv in range(4):
            for k in range(2):
                a, b = (wf(n, k), cf(c, kv, k)) if n < 8 else (cf(c, kv, k), wf(n, k))
                mf.append(mfma16(accr(acc_idx(n, kv)), a, b, "0" if (c == 0 and k == 0) else None))
    P = Packer(mf)
    for n in range(14):
        P.stream(rd_w(c, (n+2) >> 2, n+2, f"R{c}_{n+2}"), start=n*8, limit=n*8+3)
        P.stream([f"WAITLG {'P1' if n == 0 else f'R{c}_{n+1}'}"], start=n*8+7, limit=n*8+7)
    need = f"W{c+1}" + (f",C{c+1}" if c < 7 else ",H0") + ({} if 'H' in os.environ.get("EXP", "") else {4 + RELAX: ",HST"}).get(c, "")
    NOH = 'H' in os.environ.get("EXP", "")
    chk = []
    if c == 2 and not NOH: chk = list(spoll_check("mod", SRD_WS, "s41", 20, 4))
    if c == 5 + RELAX and not NOH: chk = list(spoll_check("h", SRD_WS, "s25", 8, 4))
    gb = P.stream([f"WAITVM {need} LG R{c}_15"] + chk + ["s_barrier"], start=112, limit=114)
    nx = rd_w(c+1, 0, 0, "P0") + (rd_c(c+1) + ["WAITLG P0"] if c < 7 else []) + rd_w(c+1, 0, 1, "P1")
    P.stream(nx, start=gb+1, limit=124)
    P.stream([f"WAITLG {'RC%d' % (c+1) if c < 7 else 'P0'}"], start=127, limit=127)
    wi, ci = w_issue(c+2), (c_issue(c+2) if c + 2 < 8 else [])
    def dma(dm, g, end=104):
        nd = sum(1 for x in dm if not isinstance(x, tuple) and x.startswith(('buffer', 'global')))
        return P.stream(dm, start=g+1, limit=111, dstep=min(DST, (end - g) / nd))
    def mod_fma(base):
        m = []
        for i in range(5):
            m += [f"v_accvgpr_read_b32 v28, a{A_S+i}"]
            for d in range(4):
                op = "v_mul_f32" if i == 0 else "v_fmac_f32"
                m += [f"v_accvgpr_read_b32 v22, a{base+4*i+d}", "v_lshlrev_b32 v23, 16, v22", "v_and_b32 v22, 0xffff0000, v22",
                      f"{op} v{MACC+2*d}, v23, v28", f"{op} v{MACC+2*d+1}, v22, v28"]
        for k_, sh in enumerate((2, 4)):
            for e in range(8): m.append((f"v_add_f32 v{MACC+e}, v{MACC+e}, v{MACC+e} row_ror:{sh}", 1 if (k_ == 0 and e == 0) else 0))
        return m
    def mod_fin(scr, snl, vec):
        m = [f"v_add_f32 v{MACC+e}, v{MACC+e}, v{MACC+e} row_ror:8" for e in range(8)]
        m += [f"v_lshrrev_b32 v13, 4, v{V_LANE}", "v_lshlrev_b32 v13, 6, v13", f"v_and_b32 v22, 1, v{V_LANE}", "v_lshl_add_u32 v13, v22, 5, v13", f"v_add_u32 v13, s{S_M0W}, v13",
              f"v_add_u32 v13, {scr}, v13",
              f"ds_write_b128 v13, v[{MACC}:{MACC+3}] ; tag=SW", f"ds_write_b128 v13, v[{MACC+4}:{MACC+7}] offset:16 ; tag=SW",
              f"v_and_b32 v22, 15, v{V_LANE}", f"v_lshrrev_b32 v23, 4, v{V_LANE}", "v_lshlrev_b32 v28, 2, v22", "v_lshl_add_u32 v13, v23, 13, v28", f"v_add_u32 v13, {scr}, v13",
              ("WAITLG SW", 2), "s_barrier"]
        m += [f"ds_read_b32 v{MACC+r}, v13 offset:{r*64} ; tag=SR" for r in range(4)]
        m += [f"v_cmp_gt_u32 s[16:17], s{snl}, v{V_LANE}", f"v_mov_b32 v23, {hex(HUGE)}", ("v_cndmask_b32 v28, v23, v28, s[16:17]", 1),
              ("WAITLG SR", 2), f"v_add_f32 v14, v14, v15", "v_add_f32 v16, v16, v17", "v_add_f32 v14, v14, v16",
              "v_mov_b32 v15, v14", ("v_permlane32_swap_b32 v14, v15", 2), "v_add_f32 v14, v14, v15",
              "v_mov_b32 v15, v14", ("v_permlane16_swap_b32 v14, v15", 2), "v_add_f32 v14, v14, v15",
              "v_cvt_pk_bf16_f32 v14, v14, v14", "v_lshlrev_b32 v14, 16, v14", "v_add_f32 v14, s80, v14",
              "v_cvt_pk_bf16_f32 v14, v14, v14", "v_lshlrev_b32 v14, 16, v14", "v_mul_f32 v15, s81, v14",
              f"buffer_store_dword v15, v28, s[{SRD_WS}:{SRD_WS+3}], s60 offen" + (" sc1 ; tag=MOD2" if vec else " sc1 ; tag=MOD")]
        if vec:
            m += [f"v_cmp_gt_u32 s[16:17], s83, v{V_LANE}", "v_lshrrev_b32 v16, 2, v22", "v_lshlrev_b32 v16, 8, v16", "v_and_b32 v22, 3, v22", "v_lshl_add_u32 v16, v22, 1, v16",
                  "v_cndmask_b32 v16, v23, v16, s[16:17]", "v_and_b32 v22, 1, v22", "v_lshl_or_b32 v16, v22, 28, v16", "v_mov_b32 v17, v14 quad_perm:[1,1,3,3] row_mask:0xf bank_mask:0xf",
                  "v_cvt_pk_bf16_f32 v17, v14, v17", f"buffer_store_dword v17, v16, s[{SRD_WS}:{SRD_WS+3}], s36 offen sc1"]
        return m
    if 'H' in os.environ.get("EXP", "") and c <= 5:
        dma(wi + ci + (pf(c, 13) if c >= 4 else []), 1)
        return P.emit()
    def h_part(js):
        hs = []
        for j in js:
            hs += xunpack(j) + [f"v_fma_f32 v23, v23, v{V_RS}, v{V_MU}", f"v_fma_f32 v22, v22, v{V_RS}, v{V_MU}"]
            for e in range(2):
                hs += [f"v_accvgpr_read_b32 v{14+e}, a{A_CS+20+2*j+e}", f"v_accvgpr_read_b32 v{16+e}, a{A_CS+2*j+e}"]
            hs += ["v_fma_f32 v23, v23, v14, v16", "v_fma_f32 v22, v22, v15, v17", f"v_cvt_pk_bf16_f32 v{18+(j&3)}, v23, v22"]
            if j == 7: hs += ["s_movk_i32 s29, 8192"]
            if j in (3, 7): hs += [f"buffer_store_dwordx4 v[18:21], v{V_HST}, s[{SRD_WS}:{SRD_WS+3}], {'0' if j == 3 else 's29'} offen sc1 ; tag=HST"]
            if j == 9: hs += [f"v_accvgpr_read_b32 v28, a{A_PF+3}", f"buffer_store_dwordx2 v[18:19], v28, s[{SRD_WS}:{SRD_WS+3}], 0 offen sc1 ; tag=HST"]
        return hs
    def ln1(js): return sum([xunpack(j) + ([f"v_add_f32 v{V_MU}, v23, v22"] if j == 0 else [f"v_add_f32 v{V_MU}, v{V_MU}, v23", f"v_add_f32 v{V_MU}, v{V_MU}, v22"]) for j in js], [])
    def ln2(js): return sum([xunpack(j) + [f"v_add_f32 v23, v23, v{V_MU}", f"v_add_f32 v22, v22, v{V_MU}",
                                           f"{'v_mul_f32' if j == 0 else 'v_fmac_f32'} v{V_RS}, v23, v23", f"v_fmac_f32 v{V_RS}, v22, v22"] for j in js], [])
    if c == 0:
        zi = ["WAITVM ZI"] + sig(SRD_DBG, "s31")
        xl = [f"buffer_load_dwordx4 a[{A_X+4*n}:{A_X+4*n+3}], v31, s[{SRD_V}:{SRD_V+3}], 0 offen offset:{n*512}{nt('x')} ; tag=X" for n in range(2)]
        xl += [f"buffer_load_dwordx2 a[{A_X+8}:{A_X+9}], v30, s[{SRD_V}:{SRD_V+3}], 0 offen offset:1024{nt('x')} ; tag=X"]
        kp = []
        if 'L' in PFS:
            kp = [f"v_lshrrev_b32 v13, 4, v{V_LANE}", "v_lshlrev_b32 v13, 26, v13", f"v_lshl_or_b32 v13, v{V_LANE}, 7, v13", f"s_lshl_b32 s41, s{S_HEAD}, 11",
                  f"buffer_load_dword {dum()}, v13, s[{SRD_C}:{SRD_C+3}], s41 offen"] + pf(1, 13)
        dma(zi + kp + wi + pf(2, 13) + ci + xl + poll_issue(SRD_DBG, "0", "X"), 1)
        P.stream(["WAITVM MW"] + mod_fma(A_MW)[:-16], start=MW_GAP)
    if c == 1:
        if EVEN & 1: dma(wi[:-2], 1, end=50); wi = wi[-2:]
        g = P.stream(mod_fma(A_MW)[-16:] + mod_fin(7168, 82, False), start=0)
        P.stream(["WAITVM MOD"] + poll_check("ini", SRD_DBG, "0", 1, bar=False) + sig(SRD_WS, "s61"), start=min(g + 52, 100))
        ph = []
        if 'h' in PFS:
            ph = ["s_lshr_b32 s41, s2, 1", "s_mul_i32 s41, s41, 20480", "s_and_b32 s31, s2, 1", "s_lshl_b32 s31, s31, 7", "s_add_u32 s41, s41, s31",
                  f"s_mul_i32 s31, s{S_W}, 5120", "s_add_u32 s41, s41, s31", f"s_add_u32 s41, s41, {WS_H}",
                  f"v_add_u32 v4, 44, v{V_LANE}", "v_lshrrev_b32 v4, 6, v4", "v_lshlrev_b32 v4, 26, v4", f"v_lshl_or_b32 v4, v{V_LANE}, 8, v4",
                  f"buffer_load_dword {dum()}, v4, s[{SRD_WS}:{SRD_WS+3}], s41 offen sc1"]
            P.stream(ph[:-1], start=0); ph = ph[-1:]
        dma(wi[:-2] + ci + ph, g, end=108)
    if c == 2:
        late = [f"s_add_u32 m0, s{S_M0W}, 4096"] + w_issue(3)[-2:]
        g = dma(late + pf(3, 14) + wi + ci, 1, end=92)
        P.stream([f"s_movk_i32 s41, {WS_CNT}"] + spoll_issue(4, WS_CNT, 4), start=PM_GAP)
        P.stream(ln1(range(10)) + rsum32(V_MU, 13) + [f"v_mul_f32 v{V_MU}, {fhex(-1/640)}, v{V_MU}"] + ln2(range(LN2)), start=0)
    if c == 3:
        ld_ = [f"v_and_b32 v28, 31, v{V_LANE}", "v_lshlrev_b32 v28, 4, v28", "s_movk_i32 s29, 2560"]
        for arr, so in ((0, "0"), (20, "s29")):
            ld_ += [f"buffer_load_dwordx4 a[{A_CS+arr+16}:{A_CS+arr+19}], v28, s[{SRD_WS}:{SRD_WS+3}], {so} offen offset:2048 sc1 ; tag=CS"]
        ld_ += ["v_lshlrev_b32 v28, 1, v28"]
        for arr, so in ((0, "0"), (20, "s29")):
            for n in range(4):
                ld_ += [f"buffer_load_dwordx4 a[{A_CS+arr+4*n}:{A_CS+arr+4*n+3}], v28, s[{SRD_WS}:{SRD_WS+3}], {so} offen offset:{(n>>1)*1024 + (n&1)*16} sc1 ; tag=CS"]
        g = P.stream(ld_, start=0, dstep=2)
        dma(wi + ci, g, end=106)
        ln = ln2(range(LN2, 10)) + rsum32(V_RS, 13) + [f"v_mov_b32 v13, {fhex(1e-5)}", f"v_fmac_f32 v13, {fhex(1/640)}, v{V_RS}", f"v_rsq_f32 v{V_RS}, v13",
                                                       (f"v_mul_f32 v{V_RS}, {fhex(QSCALE)}, v{V_RS}", 1), f"v_mul_f32 v{V_MU}, v{V_MU}, v{V_RS}"]
        g2 = P.stream(ln, start=0)
        P.stream(["WAITVM CS"] + h_part(range(HP)), start=max(g + CS_GAP, g2 + 1))
    if c == 4:
        if RELAX: dma(pf(4, 13) + wi + ci, 1)
        elif EVEN & 2: dma(wi, 1, end=50); wi = []
        g = P.stream(h_part(range(HP, 10)), start=0)
        if not RELAX: dma(pf(4, 13) + wi + ci, g, end=108)
    if c == 5:
        g = P.stream(sig(SRD_WS, "s24"), start=(gb + 1 if RELAX else 0))
        dma([f"s_lshl_b32 s28, 1, s{S_XF}", "v_mov_b32 v4, s28", signal(SRD_WS, "s62", val=4) + " offset:4"] + pf(5, 30) + wi + ci, 1 if RELAX else g)
    if c == 5 + RELAX:
        P.stream(["s_add_u32 s80, s4, s25\ns_addc_u32 s81, s5, 0"] + spoll_issue(80, 0, 4), start=PH_GAP)
    if c == 6:
        st = [f"s_lshl_b32 s28, s{S_I}, 3", f"s_lshl_b32 s29, s{S_W}, 1", "s_add_u32 s56, s28, s29", "s_add_u32 s57, s56, 1",
              "s_sub_u32 s58, 120, s28", "s_add_u32 s58, s58, s29", "s_add_u32 s59, s58, 1"]
        for q in range(4): st += [f"s_mul_i32 s{52+q}, s{56+q}, 20480", f"s_add_u32 s{52+q}, s{52+q}, {WS_H}"]
        g = P.stream(st, start=0)
        if RELAX:
            dma(wi + pf(6, 30), g)
            P.stream(h_issue(0)[:2], start=gb + 1)
        else: dma(wi + h_issue(0) + h_issue(1), g)
        ds = [f"s_lshl_b32 s31, s{S_HEAD}, 19", f"s_add_u32 s41, s31, {hex(WS_K)}", f"s_add_u32 s{SRD_K}, s4, s41\ns_addc_u32 s{SRD_K+1}, s5, 0",
              f"s_add_u32 s41, s31, {hex(WS_V)}", f"s_add_u32 s{SRD_V}, s4, s41\ns_addc_u32 s{SRD_V+1}, s5, 0",
              f"s_mov_b32 s{SRD_K+2}, {32*16384}", f"s_mov_b32 s{SRD_V+2}, {32*16384}", f"s_mov_b32 s{SRD_K+3}, 0x20000", f"s_mov_b32 s{SRD_V+3}, 0x20000",
              f"s_lshl_b32 s31, s{S_HEAD}, 12", f"s_add_u32 s31, s31, {hex(WS_CTX)}",
              f"s_add_u32 s{SRD_O}, s4, s31\ns_addc_u32 s{SRD_O+1}, s5, 0", f"s_mov_b32 s{SRD_O+2}, {1<<24}", f"s_mov_b32 s{SRD_O+3}, 0x20000"]
        DS[:] = [x.replace('s41', 's82') for x in ds]
        if not RELAX: P.stream(DS, start=30, step=1)
    if c == 7:
        if RELAX: P.stream(DS, start=0, limit=19)
        if RELAX: dma(h_issue(0)[2:] + h_issue(1) + wi + h_issue(2), 1, end=104)
        else: dma(pf(6, 30) + wi + h_issue(2), 1, end=70)

        g = 0
        for i in range(16):
            cv = kv_cvt(i, kv_dst(i)) + (kv_store(i, kv_dst(i)) if i < 8 else [])
            g = P.stream(cv, start=max(g + 1, (i >> 2)*16 + 16 + 4, 20 + 9*i if i < 8 else 0))
    return P.emit()

def q_chunk(c):
    sc = 8 + (c >> 1)
    mf = [mfma16(qacc(d, q), wf(d, k), hf(c, q, k), "0" if (c == 0 and k == 0) else None) for d in range(8) for q in range(4) for k in range(2)]
    P = Packer(mf)
    for d in range(6):
        P.stream(rd_w(sc, (c & 1)*2 + ((d+2) >> 2), d+2, f"Q{c}_{d+2}"), start=d*8, limit=d*8+3)
        P.stream([f"WAITLG {'P1' if d == 0 else f'Q{c}_{d+1}'}"], start=d*8+7, limit=d*8+7)
    if c < 9:
        nsc = 8 + ((c+1) >> 1)
        if c & 1:
            need = f"W{nsc},H{c+1}" + (",KVST,PX" if c == 5 else "") + (",PK" if c == 7 else "")
            P.stream([f"WAITVM {need} LG Q{c}_7", "s_barrier"], start=48, limit=49); s0 = 50
        else:
            P.stream([f"WAITVM H{c+1} LG Q{c}_7"], start=55, limit=55); s0 = 48
        P.stream(rd_w(nsc, ((c+1) & 1)*2, 0, "P0"), start=s0, limit=55)
        P.stream(rd_w(nsc, ((c+1) & 1)*2, 1, "P1"), start=56, limit=59)
        P.stream(["WAITLG P0"], start=63, limit=63)
    else:
        P.stream(["WAITVM K0 LG Q9_7", "s_barrier"], start=54, limit=55)
    g = 1
    dm = []
    if c == 6:
        xf = [f"v_readfirstlane_b32 s28, v{V_POLL}", (f"s_lshr_b32 s28, s28, s{S_XF}", 1), "s_and_b32 s28, s28, 15", "s_cmp_lg_u32 s28, 8\ns_cbranch_scc1 KA_wb" if 'H' not in os.environ.get("EXP", "") else "s_nop 0", "KA_wbr:"] + sig(SRD_WS, "s62")
        spins.append(["KA_wb:", f"s_cmp_lg_u32 s{S_W}, 0", "s_cbranch_scc1 KA_wbr", "buffer_wbl2 sc1", "s_waitcnt vmcnt(0)", "s_branch KA_wbr"])
        g = P.stream(xf, start=0)
    if c == 7: dm += poll_issue(SRD_WS, "s62", "PK")
    if c == 6 and 'j' in PFS:
        dm += ["s_getpc_b64 s[12:13]\nKA_pcq:\ns_add_u32 s12, s12, K2_PVd1-KA_pcq\ns_addc_u32 s13, s13, 0", "s_mov_b32 s14, K2_slow-K2_PVd1", "s_mov_b32 s15, 0x20000",
               "s_lshr_b32 s29, s2, 3", "s_lshl_b32 s29, s29, 2", f"s_add_u32 s29, s29, s{S_W}", "s_lshl_b32 s29, s29, 7", f"v_lshlrev_b32 v14, 14, v{V_LANE}",
               f"buffer_load_dword {dum()}, v14, s[12:15], s29 offen"]
    if c == 3: dm += ["s_add_u32 s29, s62, 4"] + poll_issue(SRD_WS, "s29", "PX")
    if c == 8:
        g = P.stream(poll_check("kv", SRD_WS, "s62", 8), start=0)
        dm += [f"s_lshl_b32 s28, s{S_I}, 15", f"s_sub_u32 s{SRD_K+2}, {32*16384}, s28", f"s_mov_b32 s{SRD_V+2}, s{SRD_K+2}"] + kv_init_state()
        for wch, idx in (('K', 0), ('K', 1), ('V', 0)):
            x = sum(kv_simple(wch, idx), [])
            if (wch, idx) == ('K', 0): x = [y.replace("tag=K", "tag=K0") for y in x]
            dm += x
    if c == 9:
        for wch, idx in (('K', 2), ('V', 1)): dm += sum(kv_simple(wch, idx), [])
    if 1 <= c <= 7: dm += h_issue(c+2)
    if c in (1, 3, 5): dm += w_issue(sc+2)
    sts = {0: list(range(8, 18)), 2: list(range(18, 25)), 4: list(range(25, 32))}.get(c, [])
    for i in sts: dm += kv_store(i, kv_dst(i))
    if c == 1: dm = dm[12:] + dm[:12]; g = 1
    nd = sum(1 for x in dm if x.startswith('buffer'))
    if dm: P.stream(dm, start=g+1, limit=63, dstep=min(DST, (58 - g) / nd))
    if c == 0:
        gg = 0
        for i in range(16, 28): gg = P.stream(kv_cvt(i, kv_dst(i)), start=gg, limit=8*((i-12)//2) - 1)
        P.stream(sum([kv_cvt(i, kv_dst(i)) for i in range(28, 29)], []), start=gg)
    if c == 1:
        lim = min(k for k, gp in enumerate(P.g) if any("tag=H3" in x[2] for x in gp))
        P.stream(sum([kv_cvt(i, kv_dst(i)) for i in range(29, 32)], []), start=0, limit=lim + 12)
        pos = {}
        for k, gp in enumerate(P.g):
            for x in gp:
                if x[2].startswith("v_accvgpr_read"): pos[int(x[2].split(", a")[1])] = k
                if "tag=H3" in x[2]:
                    lo = int(x[2].split("a[")[1].split(":")[0])
                    for r in range(lo, lo+4): assert r < 8 or (r in pos and pos[r] < k), (r, k)
    if c >= 7:
        fr = {7: [], 8: [0], 9: [1]}[c]
        if c == 7: fr = [3]
        z = [f"v_accvgpr_write_b32 a{sl*32+r}, 0" for sl in fr for r in range(32)]
        P.stream(z, start=1)
    if c == 9:
        ini = [f"v_mov_b32 v{CI+r}, 0" for r in range(16)] + [f"v_mov_b32 v{LS+r}, 0" for r in range(16)]
        P.stream(ini, start=1)
    if c == 7:
        P.stream(["s_movk_i32 s41, 1280"] + wdma_voff(V_WV, V_LANE, 15, 16, "s41", nat=False), start=1)
    if c == 5:
        ini = [f"v_and_b32 v{V_T}, 15, v{V_LANE}", f"v_lshrrev_b32 v{V_T+1}, 4, v{V_LANE}", f"v_lshlrev_b32 v{V_T+1}, 2, v{V_T+1}", f"v_sub_u32 v{V_Y}, v{V_T}, v{V_T+1}",
               f"v_mov_b32 v{V_NEG}, 0xff800000", f"v_add_u32 v{V_KVD}, s{S_W2K}, v{V_L16}", f"v_add_u32 v{V_KVD2}, 0x2000, v{V_KVD}",
               f"s_mov_b32 s{S_NE}, {EV0}", f"s_mov_b32 s{S_EV}, 0",
               f"s_lshl_b32 s{S_YA}, s56, 4", f"s_lshl_b32 s{S_YB}, s58, 4", f"s_lshl_b32 s29, s{S_2D}, 5", f"s_add_u32 s{S_YB}, s{S_YB}, s29"]
        P.stream(ini, start=1)
    return P.emit()

def ka():
    del spins[:]
    L = prologue(); A = L.append
    for c in range(8): L += k1_chunk(c) + pst(f"c{c}")
    for c in range(10): L += q_chunk(c) + pst(f"q{c}")
    for r in range(32): A(f"v_accvgpr_write_b32 a{64+r}, 0")
    for j in range(8): A(rdK(0, j))
    for r in range(4): A(f"v_mov_b32 v{ONES+r}, 0x3f803f80")
    for b in range(4): A(f"v_add_u32 v{V_TR+b}, s{S_M0W}, v{V_TR+b}")
    for q in range(4):
        for ds in range(4):
            r0 = QACC + ((2*ds)*4+q)*4; r1 = QACC + ((2*ds+1)*4+q)*4; t = V_T + 4*(ds & 1)
            A(f"v_cvt_pk_bf16_f32 v{t}, v{r0}, v{r0+1}"); A(f"v_cvt_pk_bf16_f32 v{t+1}, v{r0+2}, v{r0+3}")
            A(f"v_cvt_pk_bf16_f32 v{t+2}, v{r1}, v{r1+1}"); A(f"v_cvt_pk_bf16_f32 v{t+3}, v{r1+2}, v{r1+3}")
            for r in range(4): A(f"v_accvgpr_write_b32 a{A_Q+(q*4+ds)*4+r}, v{t+r}")
    for i in range(5): A(f"v_accvgpr_read_b32 v{250+i}, a{A_S+i}")
    for r in range(3): A(f"v_accvgpr_read_b32 v{V_PFL+r}, a{224+r}")
    A(f"v_mov_b32 v{V_PFL+3}, 0")
    L += pst("q")
    A("s_waitcnt lgkmcnt(0)")
    A("s_branch K2_QKd0")
    ex = os.environ.get("EXP", "")
    if 's' in ex: L = [("s_nop 0" if ("tag=KVST" in x and "s35 offen offset:3072" not in x) else x) for x in L]
    if 'n' in ex: L = [(x.replace(" ; tag=KVST", " nt ; tag=KVST")) for x in L]
    if 'h' in ex: L = [(x.replace(" sc1 ; tag=H", " ; tag=H") if "tag=HST" not in x else x) for x in L]
    L = resolve_waits(L)
    pre = list(L)
    for sp in spins: L += sp
    import kb
    job = [f"s_lshl_b32 s80, s{S_I}, 5", f"s_add_u32 s80, s80, s{S_HEAD}", "s_sub_u32 s81, s80, 80", "s_cmp_ge_u32 s81, 160"]
    m2l = job + ["s_cbranch_scc1 KA_nm2l", f"s_lshl_b32 s28, s{S_W}, 5", f"v_lshrrev_b32 v13, 1, v{V_LANE}", "v_add_u32 v13, s28, v13", "v_mul_u32_u24 v13, 7680, v13",
                 f"v_and_b32 v14, 1, v{V_LANE}", "v_lshl_add_u32 v13, v14, 4, v13", "s_lshl_b32 s80, s80, 5"]
    for i in range(5): m2l += [f"buffer_load_dwordx4 v[{228+4*i}:{231+4*i}], v13, s[76:79], s80 offen", f"s_add_u32 s80, s80, {128*7680}"]
    m2l += ["KA_nm2l:"]
    M2 = 192
    m2c = job + ["s_cbranch_scc1 KA_nm2c"]
    for i in range(5):
        for d in range(4):
            m2c += [f"v_lshlrev_b32 v{200+2*d}, 16, v{228+4*i+d}", f"v_and_b32 v{201+2*d}, 0xffff0000, v{228+4*i+d}"]
        for d in range(4):
            p2 = lambda x: f"v[{x}:{x+1}]"
            sv = 250 + (i & ~1)
            sel = f"op_sel:[0,{i&1}" ; selh = f"op_sel_hi:[1,{i&1}"
            if i == 0: m2c += [f"v_pk_mul_f32 {p2(M2+2*d)}, {p2(200+2*d)}, {p2(sv)} {sel}] {selh}]"]
            else: m2c += [f"v_pk_fma_f32 {p2(M2+2*d)}, {p2(200+2*d)}, {p2(sv)}, {p2(M2+2*d)} {sel},0] {selh},1]"]
    m2c += ["s_nop 0"]
    for sh in (2, 4, 8):
        for e in range(8): m2c.append(f"v_add_f32 v{M2+e}, v{M2+e}, v{M2+e} row_ror:{sh}")
    m2c += [f"v_lshrrev_b32 v15, 4, v{V_LANE}", "v_lshlrev_b32 v13, 6, v15", f"v_and_b32 v14, 1, v{V_LANE}", "v_lshl_add_u32 v13, v14, 5, v13", f"v_add_u32 v13, s{S_M0W}, v13",
            f"ds_write_b128 v13, v[{M2}:{M2+3}]", f"ds_write_b128 v13, v[{M2+4}:{M2+7}] offset:16",
            f"v_and_b32 v14, 15, v{V_LANE}", "v_lshlrev_b32 v16, 2, v14", "v_lshl_add_u32 v13, v15, 13, v16",
            "s_mul_i32 s81, s80, 1639", "s_lshr_b32 s81, s81, 16", "s_cmp_eq_u32 s81, 4", "s_cselect_b32 s82, 1.0, 0",
            "s_waitcnt lgkmcnt(0)", "s_barrier"]
    m2c += [f"ds_read_b32 v{M2+r}, v13 offset:{r*64}" for r in range(4)]
    m2c += [f"v_add_u32 v15, s{S_W}, v15", "v_lshl_or_b32 v16, v15, 26, v16",
            "v_lshrrev_b32 v17, 2, v14", "v_lshlrev_b32 v17, 8, v17", "v_and_b32 v18, 3, v14", "v_lshl_add_u32 v17, v18, 1, v17", "v_and_b32 v18, 1, v14", "v_add_u32 v15, v15, v18", "v_lshl_or_b32 v17, v15, 26, v17",
            "s_mul_i32 s83, s81, 40", "s_sub_u32 s83, s80, s83", "s_lshr_b32 s28, s83, 1", "s_lshl_b32 s28, s28, 10", "s_and_b32 s83, s83, 1", "s_lshl_b32 s83, s83, 3", "s_add_u32 s28, s28, s83",
            "s_cmp_eq_u32 s81, 3", f"s_cselect_b32 s83, 16, 0", "s_add_u32 s28, s28, s83", f"s_add_u32 s28, s28, {WS_VEC}",
            "s_sub_u32 s81, s81, 3", "s_cmp_lt_u32 s81, 2", "s_cselect_b32 s28, s28, 0x2000000", "s_lshl_b32 s80, s80, 6",
            "s_waitcnt lgkmcnt(0)", f"v_add_f32 v{M2}, v{M2}, v{M2+1}", f"v_add_f32 v{M2+2}, v{M2+2}, v{M2+3}", f"v_add_f32 v{M2}, v{M2}, v{M2+2}"] + kb.xsum(M2, 13)
    m2c += [f"v_cvt_pk_bf16_f32 v{M2}, v{M2}, v{M2}", f"v_lshlrev_b32 v{M2}, 16, v{M2}", f"v_add_f32 v{M2}, s82, v{M2}",
            f"v_cvt_pk_bf16_f32 v{M2}, v{M2}, v{M2}", f"v_lshlrev_b32 v{M2}, 16, v{M2}",
            f"buffer_store_dword v{M2}, v16, s[{SRD_WS}:{SRD_WS+3}], s80 offen sc1", "s_nop 0",
            f"v_mov_b32 v13, v{M2} quad_perm:[1,1,3,3] row_mask:0xf bank_mask:0xf", f"v_cvt_pk_bf16_f32 v13, v{M2}, v13",
            f"buffer_store_dword v13, v17, s[{SRD_WS}:{SRD_WS+3}], s28 offen sc1", "KA_nm2c:"]
    e1 = [f"v_mov_b32 v{V_PFL}, s4", f"v_mov_b32 v{V_PFL+1}, s5", f"v_mov_b32 v{V_PFL+2}, 0"]
    for u in range(2):
        e1 += [f"s_add_u32 m0, s{S_M0W}, {u*4096}"]
        for j in range(4): e1 += [f"s_add_u32 s80, s36, {u*128 + j*(8*1280-1024)}", f"buffer_load_dwordx4 v{V_WV}, s[96:99], s80 offen offset:{j*1024} lds"]
    e1 += srd(76, 6, 640*7680)
    RD = [192, 196, 200, 204, 208, 212, 216, 16]
    e2 = ["s_waitcnt lgkmcnt(0)"]
    for u in range(2):
        for b in range(4):
            r = RD[4*u+b]
            e2 += [f"ds_read_b64_tr_b16 v[{r+2*t}:{r+2*t+1}], v{V_TR+b} offset:{u*4096+t*2048}" for t in range(2)]
        if u == 0: e2 += srd(8, 4, WS_K - WS_WO, off_s=hex(WS_WO)) + ["s_waitcnt lgkmcnt(4)"]
    for k in range(8):
        e2 += [f"s_waitcnt lgkmcnt({min(12, 14-2*k)})", f"buffer_store_dwordx4 v[{RD[k]}:{RD[k]+3}], v{V_L16}, s[8:11], s83 offen sc1", "s_add_u32 s83, s83, s84"]
    e2 += ["s_nop 0"]
    e3 = ["s_and_b32 s28, s2, 7", "s_lshl_b32 s28, s28, 7", f"s_add_u32 s28, s28, {WS_CNT}", "v_mov_b32 v13, 1", signal(SRD_WS, "s28", val=13) + " offset:4"]
    after = kb.back(pst) + ["s_waitcnt vmcnt(0)"] + stamp_out(0, len(STPOS) + 2)
    def codepf(lab0, lab1, dst, t):
        return [f"s_getpc_b64 s[{t}:{t+1}]", f"KA_pc{lab0}:", f"s_add_u32 s{t}, s{t}, {lab0}-KA_pc{lab0}", f"s_addc_u32 s{t+1}, s{t+1}, 0", f"s_mov_b32 s{t+2}, {lab1}-{lab0}", f"s_mov_b32 s{t+3}, 0x20000",
                "s_lshr_b32 s28, s2, 3", "s_lshl_b32 s28, s28, 2", f"s_add_u32 s28, s28, s{S_W}", "s_lshl_b32 s28, s28, 7", f"v_lshlrev_b32 v13, 14, v{V_LANE}",
                f"buffer_load_dword {dst}, v13, s[{t}:{t+3}], s28 offen"]
    evs = [e1 + m2l, e2 + m2c, e3 + (codepf("K2_done", "KA_end", "v227", 8) if 'j' in PFS else [])]
    if 'e' in ex: evs = [e1[:3] + e3]
    L += resolve_waits(attn_part(pre, evs, [], after, pst("a")))
    L += ["KA_end:", "s_endpgm"]
    return L
```
